```python
import torch

def _softmax(x, axis=-1):
    return torch.softmax(x, dim=axis)
def _gelu(x):
    return torch.nn.functional.gelu(x, approximate="tanh")
def _silu(x):
    return torch.nn.functional.silu(x)
def _sigmoid(x):
    return torch.sigmoid(x)
def _layernorm(x, axis=-1, eps=1e-5):
    m = x.mean(dim=axis, keepdim=True)
    v = x.var(dim=axis, keepdim=True, unbiased=False)
    return (x - m) / torch.sqrt(v + eps)
def _scatter_add(tgt, idx, src, axis=0):
    return tgt.clone().index_add_(axis, idx, src)
def _segment_sum(src, seg, n):
    out = torch.zeros((n,) + src.shape[1:], dtype=src.dtype)
    return out.index_add_(0, seg, src)
def _pad(x, pw):
    flat = tuple(v for pair in reversed(pw) for v in pair)
    return torch.nn.functional.pad(x, flat)

kernel_name = 'sequential_preLN__linear_kernel_hedgehog__geglu_ffn__prompt'

def setup_inputs():

    _w = (lambda a: (lambda t: t.to(torch.bfloat16) if t.is_floating_point() else t)(torch.as_tensor(a)))
    def _A_setup():
        B, S, D, H = 1, 2048, 640, 32
        Dh = D // H
        return {
            "x": _w((lambda *s: torch.randn(*s, dtype=torch.bfloat16) * 0.05)(B, S, D)),
            "wqkv": _w((lambda *s: torch.randn(*s, dtype=torch.bfloat16) * 0.2)(D, 3 * D)),
            "w_phi": _w((lambda *s: torch.randn(*s, dtype=torch.bfloat16) * 0.2)(H, Dh, Dh) * (Dh ** -0.5)),
            "wo": _w((lambda *s: torch.randn(*s, dtype=torch.bfloat16) * 0.05)(D, D)),
        }
    _A_in = _A_setup()

    def _B_setup():
        B, S, D, F = 1, 2048, 640, 1728
        return {
            "x": _w((lambda *s: torch.randn(*s, dtype=torch.bfloat16) * 0.05)(B, S, D)),
            "w_gate": _w((lambda *s: torch.randn(*s, dtype=torch.bfloat16) * 0.05)(D, F)),
            "w_up": _w((lambda *s: torch.randn(*s, dtype=torch.bfloat16) * 0.05)(D, F)),
            "w_down": _w((lambda *s: torch.randn(*s, dtype=torch.bfloat16) * 0.05)(F, D)),
        }
    _B_in = _B_setup()

    return {
        "A_x": _A_in["x"],
        "A_wqkv": _A_in["wqkv"],
        "A_w_phi": _A_in["w_phi"],
        "A_wo": _A_in["wo"],
        "B_x": _B_in["x"],
        "B_w_gate": _B_in["w_gate"],
        "B_w_up": _B_in["w_up"],
        "B_w_down": _B_in["w_down"],
    }

def reference(A_x, A_wqkv, A_w_phi, A_wo, B_x, B_w_gate, B_w_up, B_w_down):
    def _A_ref(x, wqkv, w_phi, wo):
        B, S, D = x.shape
        H = 32; Dh = D // H
        qkv = (lambda x, *d: x.permute(*d))((x @ wqkv).reshape(B, S, 3, H, Dh), 2, 0, 3, 1, 4)
        q, k, v = qkv[0], qkv[1], qkv[2]
        pq = torch.einsum("bhsd,hdf->bhsf", q, w_phi)
        pk = torch.einsum("bhsd,hdf->bhsf", k, w_phi)
        phi_q = torch.concatenate([_softmax(pq, axis=-1), _softmax(-pq, axis=-1)], axis=-1)
        phi_k = torch.concatenate([_softmax(pk, axis=-1), _softmax(-pk, axis=-1)], axis=-1)
        kv = torch.einsum("bhsf,bhsd->bhfd", phi_k, v)
        z  = torch.einsum("bhsf->bhf", phi_k)
        num = torch.einsum("bhqf,bhfd->bhqd", phi_q, kv)
        den = torch.einsum("bhqf,bhf->bhq", phi_q, z)[..., None] + 1e-6
        o = num / den
        return (lambda x, *d: x.permute(*d))(o, 0, 2, 1, 3).reshape(B, S, D) @ wo

    def _B_ref(x, w_gate, w_up, w_down):
        return (_gelu(x @ w_gate) * (x @ w_up)) @ w_down

    x = A_x
    h = x + _A_ref(_layernorm(x, axis=-1), A_wqkv, A_w_phi, A_wo)
    h2 = h + _B_ref(_layernorm(h, axis=-1), B_w_gate, B_w_up, B_w_down)
    return h2
```

```python
import re

REG_RE = re.compile(r'\b([vas])(\d+)\b|\b([vas])\[(\d+):(\d+)\]|\b(vcc|exec|m0|scc)\b')

def regs_of(op):
    out = set()
    for m in REG_RE.finditer(op):
        if m.group(1):
            out.add((m.group(1), int(m.group(2))))
        elif m.group(3):
            for i in range(int(m.group(4)), int(m.group(5)) + 1):
                out.add((m.group(3), i))
        else:
            n = m.group(6)
            if n == 'vcc':
                out.add(('vcc', 0))
            elif n == 'exec':
                out.add(('exec', 0))
            elif n == 'm0':
                out.add(('m0', 0))
    return out

TRANS = ('v_exp_f32', 'v_log_f32', 'v_rcp_f32', 'v_rsq_f32', 'v_sqrt_f32', 'v_sin_f32', 'v_cos_f32')

def split_ops(s):
    out, depth, cur = [], 0, ''
    for ch in s:
        if ch == '[': depth += 1
        if ch == ']': depth -= 1
        if ch == ',' and depth == 0:
            out.append(cur.strip()); cur = ''
        else:
            cur += ch
    if cur.strip(): out.append(cur.strip())
    return out

class Ins:
    __slots__ = ('text', 'mn', 'kind', 'dst', 'src', 'srcc', 'states', 'wide_store', 'mfma_passes', 'lds_dma', 'sgpr_src_vmem')

def classify(text):
    t = text.split(';')[0].strip()
    parts = t.split(None, 1)
    mn = parts[0]
    rest = parts[1] if len(parts) > 1 else ''
    ops = split_ops(rest)
    I = Ins(); I.text = text; I.mn = mn; I.dst = set(); I.src = set(); I.srcc = set(); I.states = 1
    I.wide_store = False; I.mfma_passes = 0; I.lds_dma = False
    def R(i): return regs_of(ops[i]) if i < len(ops) else set()
    allsrc = lambda a: set().union(*[R(i) for i in range(a, len(ops))]) if len(ops) > a else set()
    if mn.startswith('v_mfma'):
        I.kind = 'mfma'; I.dst = R(0); I.src = R(1) | R(2); I.srcc = R(3)
        I.mfma_passes = 8 if '32x32' in mn else 4
    elif mn.startswith('v_cmp'):
        I.kind = 'valu'; I.dst = R(0); I.src = allsrc(1)
        if mn.startswith('v_cmpx'): I.dst |= {('exec', 0)}
    elif mn in ('v_readfirstlane_b32', 'v_readlane_b32'):
        I.kind = 'valu'; I.dst = R(0); I.src = allsrc(1)
    elif mn.startswith('v_permlane') and 'swap' in mn:
        I.kind = 'valu'; I.dst = R(0) | R(1); I.src = R(0) | R(1)
    elif mn.startswith('v_'):
        I.kind = 'valu'; I.dst = R(0); I.src = allsrc(1)
        if mn.startswith(('v_fmac', 'v_mac', 'v_dot2c', 'v_pk_fmac', 'v_writelane')): I.src |= R(0)
        if mn.startswith(('v_add_co', 'v_sub_co', 'v_addc_co', 'v_subb_co', 'v_subrev_co')):
            I.dst |= R(1); I.src = allsrc(2)
        if mn.startswith('v_cndmask') and len(ops) == 3: I.src |= {('vcc', 0)}
    elif mn.startswith(('buffer_load', 'global_load')):
        I.kind = 'vmem'
        if ' lds' in (' ' + rest) or '_lds_' in mn:
            I.lds_dma = True; I.src = allsrc(0) | {('m0', 0)}
        else:
            I.dst = R(0); I.src = allsrc(1)
    elif mn.startswith(('buffer_store', 'global_store')):
        I.kind = 'vmem'; I.src = allsrc(0)
        if 'x4' in mn or 'x3' in mn:
            I.wide_store = True
            I.srcc = R(0) if mn.startswith('buffer') else R(1)
    elif mn.startswith(('buffer_atomic', 'global_atomic')):
        I.kind = 'vmem'; I.src = allsrc(0)
        if 'sc0' in rest:
            I.dst = R(0)
    elif mn.startswith(('buffer_inv', 'buffer_wbl2')):
        I.kind = 'vmem'
    elif mn.startswith('ds_read') or mn.startswith('ds_bpermute') or mn.startswith('ds_swizzle') or mn.startswith('ds_permute'):
        I.kind = 'ds'; I.dst = R(0); I.src = allsrc(1)
    elif mn.startswith('ds_'):
        I.kind = 'ds'; I.src = allsrc(0)
    elif mn == 's_nop':
        I.kind = 'nop'; I.states = int(ops[0], 0) + 1
    elif mn.startswith(('s_waitcnt', 's_barrier', 's_endpgm', 's_branch', 's_cbranch', 's_setprio', 's_sleep', 's_set_gpr_idx_off')):
        I.kind = 'sctl'
    elif mn.startswith(('s_cmp', 's_bitcmp')):
        I.kind = 'salu'; I.src = allsrc(0)
    elif mn.startswith(('s_load', 's_memtime', 's_memrealtime', 's_buffer_load')):
        I.kind = 'smem'; I.dst = R(0); I.src = allsrc(1)
    elif mn.startswith('s_set_gpr_idx_on'):
        I.kind = 'salu'; I.src = R(0); I.dst = {('m0', 0)}
    elif mn.startswith('s_'):
        I.kind = 'salu'; I.dst = R(0); I.src = allsrc(1)
        if 'saveexec' in mn: I.dst |= {('exec', 0)}
    else:
        raise ValueError("unknown instr: " + text)
    return I

def isv(r): return r[0] in ('v', 'a')
def iss(r): return r[0] in ('s', 'vcc')

class Asm:
    def __init__(self):
        self.lines = []
        self.hist = []
        self.vm = []
        self.nops = 0
    def raw(self, s):
        self.lines.append(s)
    def comment(self, s):
        self.lines.append("  ; " + s)
    def label(self, name, reset=True):
        self.lines.append(name + ":")
    def need(self, I):
        need = 0
        dist = 0
        for P in reversed(self.hist):
            req = 0
            Iv_src = {r for r in (I.src | I.srcc) if isv(r)}
            Iv_dst = {r for r in I.dst if isv(r)}
            Pv_dst = {r for r in P.dst if isv(r)}
            Ps_dst = {r for r in P.dst if iss(r)}
            Is_src = {r for r in I.src if iss(r)}
            if P.kind == 'valu':
                if I.kind == 'mfma' and (Pv_dst & Iv_src): req = max(req, 2)
                if I.kind == 'vmem' and (Ps_dst & Is_src): req = max(req, 5)
                if I.kind == 'valu':
                    if I.mn in ('v_readlane_b32', 'v_readfirstlane_b32') and (Pv_dst & Iv_src): req = max(req, 1)
                    if (Ps_dst & Is_src):
                        req = max(req, 4 if I.mn in ('v_readlane_b32', 'v_writelane_b32') else 2)
                    if (I.mn.startswith('v_permlane') or 'dpp' in I.text or 'row_' in I.text or 'quad_perm' in I.text) and (Pv_dst & Iv_src): req = max(req, 2)
                    if P.mn in TRANS and (Pv_dst & Iv_src) and I.mn not in TRANS: req = max(req, 1)
                    if P.mn in TRANS and (Pv_dst & Iv_src): req = max(req, 1)
                    if ('exec', 0) in P.dst and (I.mn.startswith(('v_readlane', 'v_readfirstlane', 'v_writelane', 'v_permlane'))): req = max(req, 4)
                    if ('op_sel' in P.text or 'sdwa' in P.text) and (Pv_dst & (Iv_src | Iv_dst)): req = max(req, 1)
                if I.kind == 'salu' and (Ps_dst & Is_src): req = max(req, 4)
                if I.kind in ('mfma',) and ('exec', 0) in P.dst: req = max(req, 4)
                if I.kind in ('vmem', 'ds') and P.mn in TRANS and (Pv_dst & Iv_src): req = max(req, 1)
            if P.kind == 'valu' and P.mn.startswith('v_dot2') and I.kind in ('valu', 'vmem', 'ds', 'mfma'):
                same_c = (I.mn == P.mn and not (Pv_dst & {r for r in I.src if isv(r)} - I.dst))
                if (Pv_dst & (Iv_src | Iv_dst)) and not same_c: req = max(req, 3)
            if P.kind == 'mfma':
                p4 = P.mfma_passes == 4
                if I.kind == 'mfma':
                    if Pv_dst & {r for r in I.srcc}:
                        if not (I.srcc == P.dst and I.mfma_passes == P.mfma_passes): req = max(req, 6 if p4 else 10)
                    if Pv_dst & {r for r in I.src}: req = max(req, 8 if p4 else 12)
                elif I.kind in ('valu', 'vmem', 'ds'):
                    if Pv_dst & (Iv_src | Iv_dst): req = max(req, 8 if p4 else 12)
                    if I.kind == 'valu' and ({r for r in P.srcc} & Iv_dst): req = max(req, 3 if p4 else 7)
                    if I.kind in ('vmem', 'ds') and ({r for r in P.srcc} & Iv_dst): req = max(req, 3 if p4 else 7)
            if P.kind == 'vmem' and P.wide_store:
                if (P.srcc & Iv_dst): req = max(req, 2 if I.kind == 'valu' else 1)
            if P.kind == 'salu' and ('m0', 0) in P.dst and (I.lds_dma or I.mn.startswith('s_movrel') or 'addtid' in I.mn): req = max(req, 1)
            if P.kind == 'salu' and ('m0', 0) in P.dst and P.mn.startswith('s_set_gpr_idx_on') and I.kind == 'valu': req = max(req, 0)
            if req > dist: need = max(need, req - dist)
            dist += P.states
            if dist > 16: break
        return need
    def __call__(self, text, tag=None):
        I = classify(text)
        n = self.need(I)
        while n > 0:
            k = min(n, 16)
            self.lines.append(f"  s_nop {k - 1}")
            N = classify(f"s_nop {k - 1}"); self.hist.append(N); self.nops += 1
            n -= k
        self.lines.append("  " + text)
        self.hist.append(I)
        if len(self.hist) > 40: self.hist = self.hist[-40:]
        if I.kind == 'vmem' and not I.mn.startswith(('buffer_inv', 'buffer_wbl2')):
            self.vm.append(tag)
    def vm_wait(self, tags, extra=''):
        if not isinstance(tags, (list, set)): tags = [tags]
        last = -1
        for i, t in enumerate(self.vm):
            if t in tags: last = i
        assert last >= 0, f"vm_wait: no op with tags {tags}"
        n = len(self.vm) - 1 - last
        assert n <= 63, n
        self(f"s_waitcnt vmcnt({n}){extra}")
        return n
    def stamp(self, k):
        if not getattr(self, 'stamps', False): return
        import os
        self(f"{'s_memtime' if os.environ.get('CYC') else 's_memrealtime'} s[{80 + 2 * k}:{81 + 2 * k}]")
        self("s_waitcnt lgkmcnt(0)")
        self.nstamp = max(getattr(self, 'nstamp', 0), k + 1)
    def stamp_dump(self, ws_lo, ws_hi, off, vtmp=0):
        if not getattr(self, 'stamps', False): return
        t = vtmp
        self(f"v_lshrrev_b32 v{t + 8}, 6, v0")
        self(f"s_lshl_b32 s79, s2, 4")
        self(f"v_add_u32 v{t + 8}, s79, v{t + 8}")
        self(f"v_lshlrev_b32 v{t + 8}, 5, v{t + 8}")
        self(f"v_add_u32 v{t + 8}, {off}, v{t + 8}")
        for k in range(8):
            if k < self.nstamp: self(f"v_mov_b32 v{t + k}, s{80 + 2 * k}")
            else: self(f"v_mov_b32 v{t + k}, 0")
        self(f"global_store_dwordx4 v{t + 8}, v[{t}:{t + 3}], s[{ws_lo}:{ws_hi}]")
        self(f"global_store_dwordx4 v{t + 8}, v[{t + 4}:{t + 7}], s[{ws_lo}:{ws_hi}] offset:16")
    def flush_hist(self, states=20):
        pass
    def text(self):
        return "\n".join(self.lines) + "\n"

def v(i, n=1): return f"v{i}" if n == 1 else f"v[{i}:{i + n - 1}]"
def a(i, n=1): return f"a{i}" if n == 1 else f"a[{i}:{i + n - 1}]"
def s(i, n=1): return f"s{i}" if n == 1 else f"s[{i}:{i + n - 1}]"

def kernel_desc(name, vgpr, sgpr, accum, extra=()):
    return "\n".join([".p2align 6", f".amdhsa_kernel {name}", f"  .amdhsa_next_free_vgpr {vgpr}", f"  .amdhsa_next_free_sgpr {sgpr}",
        f"  .amdhsa_accum_offset {accum}", "  .amdhsa_group_segment_fixed_size 0", "  .amdhsa_kernarg_size 88", "  .amdhsa_user_sgpr_count 2",
        "  .amdhsa_user_sgpr_kernarg_segment_ptr 1", "  .amdhsa_system_sgpr_workgroup_id_x 1"] + list(extra) + [".end_amdhsa_kernel"]) + "\n"
```

```python
S, D, F, H, DH = 2048, 640, 1728, 32, 20
def al(x, a=4096): return (x + a - 1) // a * a
O_OFF = 0
HC_OFF = al(O_OFF + S * D * 2)
H_OFF = al(HC_OFF + S * D * 2)
ACT_OFF = al(H_OFF + S * D * 2)
WO_OFF = al(ACT_OFF + 128 * 54 * 1024)
WGU_OFF = al(WO_OFF + 8 * 20 * 5 * 1024)
WD_OFF = al(WGU_OFF + 108 * 40 * 1024)
SLAB_BYTES = 8192
SLAB_OFF = al(WD_OFF + 8 * 54 * 5 * 1024 + 65536)
MEAN1_OFF = al(SLAB_OFF + 256 * SLAB_BYTES)
VARP_OFF = al(MEAN1_OFF + S * 4)
WBAR_OFF = al(VARP_OFF + S * 8 * 4)
NONCE_OFF = al(WBAR_OFF + 4096)
FLAG_OFF = al(NONCE_OFF + 4096)
PHQ_OFF = al(FLAG_OFF + 8 * 256 * 64)
TS_OFF = al(PHQ_OFF + 128 * 16 * 5120)
WS_USED = al(TS_OFF + (2 << 20), 1 << 20)
if __name__ == "__main__":
    for k, v in list(globals().items()):
        if k.endswith("_OFF") or k == "WS_USED": print(k, hex(v), v)
```

```python
import sys, importlib
from asmlib import *
import layout
def build(kernels, path):
    head = open("sequential_preLN__linear_kernel_hedgehog__geglu_ffn__prompt.s.ref").read().split("\n")
    cm = [l for l in head if l.startswith(";") and "@launch" not in l and "Override" not in l and "grid=ceil" not in l][:13]
    out = cm[:]
    bodies, descs = [], []
    for name, (body, desc, (grid, block, lds)) in kernels:
        out.append(f"; @launch kernel={name} grid=({grid},1,1) block=({block},1,1) lds={lds}")
        bodies.append(body); descs.append(desc)
    out.append('.amdgcn_target "amdgcn-amd-amdhsa--gfx950"')
    out.append(".text")
    out += bodies
    out.append('.section .rodata,"a"')
    out += descs
    open(path, "w").write("\n".join(out))
if __name__ == "__main__":
    which = sys.argv[2].split(",")
    ks = []
    for k in which:
        m = importlib.import_module(k)
        ks.append((k + "_kernel", getattr(m, "gen_" + k)(k + "_kernel", stamps=(len(sys.argv) > 3))))
    build(ks, sys.argv[1])
```

```python
from asmlib import *
from layout import *
from k5 import prologue_common
from k4 import f32hex, bf16_round
from k3 import xlane_sum_g
import math

POS = [[0, 4, 2, 3, 1], [1, 4, 0, 2, 3], [1, 3, 2, 4, 0], [3, 0, 1, 2, 4]]
INV = [[row.index(p) for p in range(5)] for row in POS]
def pack3(tab):
    v = 0
    for r in range(4):
        for q in range(5):
            v |= tab[r][q] << (3 * (5 * r + q))
    return v
PAIRS = [(0, 0), (0, 1), (0, 2), (1, 0), (1, 1), (1, 2), (2, 0), (2, 1), (2, 2), (3, 1), (3, 2), (4, 1), (4, 2)]
SLOT = 31744
NSLOT = 5
MISC = SLOT * NSLOT
PHT = MISC
ZP = MISC + 1920
CSA = MISC + 2944
PST = 0
VST = 20480
AFR = 32768
LDS1 = 163840
L2E = math.log2(math.e)

def table_lookup3(A, dst, idx, const64, tmp2):
    A(f"v_mul_u32_u24 v{dst}, 3, v{idx}")
    A(f"v_mov_b32 v{tmp2}, 0x{const64 & 0xffffffff:08x}")
    A(f"v_mov_b32 v{tmp2 + 1}, 0x{const64 >> 32:08x}")
    A(f"v_lshrrev_b64 v[{tmp2}:{tmp2 + 1}], v{dst}, v[{tmp2}:{tmp2 + 1}]")
    A(f"v_and_b32 v{dst}, 7, v{tmp2}")

def udiv_small(A, dst, src, d, bits=16):
    m = ((1 << bits) + d - 1) // d
    A(f"v_mul_u32_u24 v{dst}, {m}, v{src}")
    A(f"v_lshrrev_b32 v{dst}, {bits}, v{dst}")

def ids_p1(A):
    A("s_and_b32 s20, s2, 7")
    A("s_lshr_b32 s21, s2, 3")
    A("s_and_b32 s24, s20, 1")
    A("s_lshl_b32 s24, s24, 3")
    A("s_and_b32 s25, s21, 7")
    A("s_add_u32 s24, s24, s25")
    A("s_lshr_b32 s23, s20, 1")
    A("s_lshl_b32 s23, s23, 2")
    A("s_lshr_b32 s25, s21, 3")
    A("s_add_u32 s23, s23, s25")

def relayout_setup(A, RL, RA):
    A("s_lshl_b32 s48, s2, 3"); A("s_add_u32 s48, s48, s22")
    A("s_mov_b32 s50, 1")
    A("s_load_dwordx2 s[52:53], s[0:1], 40")
    A("s_load_dwordx2 s[54:55], s[0:1], 48")
    A("s_load_dwordx2 s[56:57], s[0:1], 56")
    A("s_load_dwordx2 s[58:59], s[0:1], 24")

def gen_k1(name="k1_kernel", stamps=False, kidx=0, fused=False, RLC=6, dbg=""):
    A = Asm(); A.endlabel = f"L{name}_end"; A.stamps = stamps
    A.raw(f".globl {name}\n.p2align 8\n.type {name},@function\n{name}:")
    prologue_common(A)
    A.stamp(0)
    A("s_load_dwordx4 s[4:7], s[0:1], 0")
    A("s_load_dwordx4 s[64:67], s[0:1], 16")
    A("s_load_dwordx4 s[68:71], s[0:1], 40")
    A("s_load_dwordx2 s[72:73], s[0:1], 56")
    A("s_load_dwordx2 s[8:9], s[0:1], 80")
    A("v_and_b32 v1, 63, v0")
    A("v_lshrrev_b32 v2, 6, v0")
    ids_p1(A)
    A("v_readfirstlane_b32 s22, v2")
    A("v_lshrrev_b32 v3, 4, v1")
    A("v_and_b32 v21, 15, v1")
    A("v_lshrrev_b32 v22, 3, v1"); A("v_and_b32 v23, 7, v1"); A("v_xor_b32 v23, v23, v22")
    A("v_mul_u32_u24 v19, 1280, v22"); A("v_lshl_add_u32 v19, v23, 4, v19")
    T0 = 148
    udiv_small(A, T0, 1, 10); A(f"v_mul_u32_u24 v{T0 + 1}, 10, v{T0}"); A(f"v_sub_u32 v{T0 + 1}, v1, v{T0 + 1}")
    A(f"v_lshlrev_b32 v{T0 + 2}, 4, v{T0 + 1}")
    A(f"v_add_u32 v{T0 + 3}, {1280 - 80}, v{T0 + 2}")
    A(f"v_cmp_gt_u32 vcc, 5, v{T0 + 1}")
    A(f"v_cndmask_b32 v{T0 + 2}, v{T0 + 3}, v{T0 + 2}, vcc")
    A(f"v_mul_u32_u24 v20, 3840, v{T0}"); A(f"v_add_u32 v20, v20, v{T0 + 2}")
    A(f"v_subrev_u32 v{T0 + 4}, 40, v1")
    A(f"v_max_i32 v{T0 + 4}, 0, v{T0 + 4}"); A(f"v_min_u32 v{T0 + 4}, 19, v{T0 + 4}")
    table_lookup3(A, T0 + 5, T0 + 4, pack3(INV), T0 + 6)
    udiv_small(A, T0 + 8, T0 + 4, 5)
    A(f"v_mul_u32_u24 v{T0 + 8}, 3840, v{T0 + 8}")
    A(f"v_lshl_add_u32 v{T0 + 8}, v{T0 + 5}, 4, v{T0 + 8}"); A(f"v_add_u32 v{T0 + 8}, 2560, v{T0 + 8}")
    A("v_cmp_gt_u32 vcc, 40, v1")
    A(f"v_cndmask_b32 v20, v{T0 + 8}, v20, vcc")
    A("s_lshl_b32 s26, s23, 7"); A("s_lshl_b32 s27, s22, 4"); A("s_add_u32 s26, s26, s27")
    A("s_mul_i32 s27, s26, 1280")
    A("s_mul_i32 s28, s24, 80"); A(f"s_mul_i32 s29, s22, {8 * 3840}"); A("s_add_u32 s28, s28, s29")
    A("s_lshl_b32 s29, s22, 11")
    A("s_mul_i32 s30, s22, 1920"); A("s_add_u32 s30, s30, 16384")
    A("s_waitcnt lgkmcnt(0)")
    A("s_mov_b32 s36, s4"); A("s_mov_b32 s37, s5"); A(f"s_mov_b32 s38, {S * D * 2}"); A("s_mov_b32 s39, 0x20000")
    A("s_mov_b32 s40, s6"); A("s_mov_b32 s41, s7"); A(f"s_mov_b32 s42, {640 * 1920 * 2}"); A("s_mov_b32 s43, 0x20000")
    A("s_mov_b32 s12, s8"); A("s_mov_b32 s13, s9"); A(f"s_mov_b32 s14, {WS_USED}"); A("s_mov_b32 s15, 0x20000")
    A("s_mov_b32 s34, -1"); A("s_mov_b32 s35, 0x0fffffff")
    def chunk_dma(c):
        slot = c % NSLOT
        out = []
        def x(b):
            def f():
                A(f"s_add_u32 m0, s29, {slot * SLOT + b * 1024}")
                A(f"s_add_u32 s32, s27, {c * 128 + b * 10240}")
                A(f"buffer_load_dwordx4 v19, s[36:39], s32 offen lds", tag=('c', c))
            return f
        def w_(b):
            def f():
                A(f"s_add_u32 m0, s30, {slot * SLOT + b * 960}")
                A(f"s_add_u32 s32, s28, {c * 64 * 3840 + b * 4 * 3840}")
                A("s_mov_b64 exec, s[34:35]")
                A(f"buffer_load_dwordx4 v20, s[40:43], s32 offen lds", tag=('c', c))
                A("s_mov_b64 exec, -1")
            return f
        return [w_(0), x(0), w_(1), x(1)]
    for c in range(4):
        for f in chunk_dma(c): f()
    A.stamp(1)
    A("v_lshrrev_b32 v22, 2, v21"); A("v_and_b32 v23, 3, v21")
    AQ = [4, 5, 6]; AV = [[7, 8, 9], [10, 11, 12], [13, 14, 15]]; AX = [[16, 17, 18], [24, 25, 26]]; AC = [27, 28, 29]
    SB = [0, 2 * SLOT, 4 * SLOT]
    A(f"v_mul_u32_u24 v4, 1920, v3"); A(f"v_mul_u32_u24 v{T0}, 160, v22"); A(f"v_mul_u32_u24 v{T0 + 1}, 40, v23")
    A(f"v_add3_u32 v4, v4, v{T0}, v{T0 + 1}"); A("v_add_u32 v4, 16384, v4")
    for b in range(3):
        if b < 2:
            A(f"v_lshrrev_b32 v{T0}, 1, v23"); A(f"v_add_u32 v{T0}, {2 * b}, v{T0}")
        else:
            A(f"v_mov_b32 v{T0}, 4")
        A(f"v_mul_u32_u24 v{T0 + 1}, 5, v22"); A(f"v_add_u32 v{T0}, v{T0}, v{T0 + 1}")
        table_lookup3(A, T0 + 2, T0, pack3(POS), T0 + 4)
        A(f"v_mul_u32_u24 v{T0}, 1920, v3"); A(f"v_mul_u32_u24 v{T0 + 1}, 80, v22")
        A(f"v_add3_u32 v{T0}, v{T0}, v{T0 + 1}, 0"); A(f"v_lshl_add_u32 v{T0}, v{T0 + 2}, 4, v{T0}")
        A(f"v_and_b32 v{T0 + 1}, 1, v23"); A(f"v_lshl_add_u32 v{T0}, v{T0 + 1}, 3, v{T0}")
        A(f"v_add_u32 v{AV[b][0]}, {16384 + 640}, v{T0}")
    A(f"v_lshrrev_b32 v{T0}, 3, v21"); A(f"v_and_b32 v{T0 + 1}, 7, v21"); A(f"v_xor_b32 v{T0 + 2}, v3, v{T0 + 1}")
    A(f"v_lshlrev_b32 v{T0}, 10, v{T0}"); A(f"v_lshl_add_u32 v{T0}, v{T0 + 1}, 7, v{T0}"); A(f"v_add_u32 v{T0}, s29, v{T0}")
    A(f"v_lshl_add_u32 v16, v{T0 + 2}, 4, v{T0}")
    A(f"v_xor_b32 v{T0 + 2}, 4, v{T0 + 2}"); A(f"v_lshl_add_u32 v24, v{T0 + 2}, 4, v{T0}")
    A("s_lshl_b32 s31, s22, 3"); A("v_add_u32 v27, s31, v4")
    for b in range(3):
        A(f"s_cmp_eq_u32 s22, {5 + b}"); A("s_cselect_b64 vcc, -1, 0")
        A(f"v_cndmask_b32 v27, v27, v{AV[b][0]}, vcc")
    for regs in [AQ] + AV + AX + [AC]:
        for k in (1, 2): A(f"v_add_u32 v{regs[k]}, {SB[k]}, v{regs[0]}")
    XF = 30; WF = 40; CF = 104; ACC = 112; CS = 144; ONES = 148; ST = 152; RL = 156; RA = 172
    XF = 32; SX = 224; GR = 228
    for k in range(4): A(f"v_mov_b32 v{ONES + k}, 0x3f803f80")
    for k in range(4): A(f"v_mov_b32 v{ST + k}, 0")
    A("s_mov_b32 s33, 0x3f803f80")
    PT = 176
    A(f"v_mov_b32 v{PT}, 0")
    A(f"v_lshlrev_b32 v{PT + 1}, 2, v0")
    A(f"v_min_u32 v{PT + 1}, 1020, v{PT + 1}"); A(f"v_add_u32 v{PT + 1}, {ZP}, v{PT + 1}")
    A(f"ds_write_b32 v{PT + 1}, v{PT}")
    A("s_mul_i32 s31, s24, 1600")
    for rep in range(2):
        e = PT + 2 + 8 * rep
        A(f"v_add_u32 v{e}, {512 * rep}, v0"); A(f"v_min_u32 v{e}, 959, v{e}")
        udiv_small(A, e + 1, e, 24, 16)
        A(f"v_mul_u32_u24 v{e + 2}, 24, v{e + 1}"); A(f"v_sub_u32 v{e + 2}, v{e}, v{e + 2}")
        udiv_small(A, e + 3, e + 1, 20, 16)
        A(f"v_mul_u32_u24 v{e + 4}, 20, v{e + 3}"); A(f"v_sub_u32 v{e + 4}, v{e + 1}, v{e + 4}")
        A(f"v_mul_u32_u24 v{e + 5}, 800, v{e + 3}"); A(f"v_mul_u32_u24 v{e + 6}, 40, v{e + 2}")
        A(f"v_add3_u32 v{e + 5}, v{e + 5}, v{e + 6}, s31"); A(f"v_lshl_add_u32 v{e + 5}, v{e + 4}, 1, v{e + 5}")
        A(f"v_min_u32 v{e + 5}, {32 * 800 - 2}, v{e + 5}")
        A(f"global_load_ushort v{e + 6}, v{e + 5}, s[64:65]", tag='phi')
        A(f"v_lshlrev_b32 v{e}, 1, v{e}"); A(f"v_add_u32 v{e}, {PHT}, v{e}")
        A(f"v_cmp_gt_u32 s[{76 + 2 * rep}:{77 + 2 * rep}], 20, v{e + 2}")
    A("s_lshl_b32 s48, s2, 3"); A("s_add_u32 s48, s48, s22")
    rl_lbl = f"L{name}_rl"
    A("s_mov_b32 s50, 0")
    A(f"s_cmp_ge_u32 s48, 1980"); A(f"s_cbranch_scc1 {rl_lbl}_none")
    A(f"s_cmp_ge_u32 s48, 1820"); A(f"s_cbranch_scc1 {rl_lbl}_wbar")
    R0 = RA + 2
    R0 = 200; RAD = 216
    A(f"s_cmp_ge_u32 s48, 1080"); A(f"s_cbranch_scc1 {rl_lbl}_n640")
    A("s_mov_b32 s50, 1")
    A("s_cmp_ge_u32 s48, 540"); A("s_cselect_b32 s44, s70, s68"); A("s_cselect_b32 s45, s71, s69"); A("s_cselect_b32 s51, 1024, 0"); A("s_cselect_b32 s49, 540, 0")
    A(f"s_mov_b32 s46, {640 * 1728 * 2}"); A("s_mov_b32 s47, 0x20000")
    A("s_sub_u32 s49, s48, s49"); A("s_lshl_b32 s49, s49, 6")
    A(f"v_add_u32 v{R0}, s49, v1")
    A(f"s_mov_b32 s52, {(1 << 24) // 432 + 1}")
    A(f"v_mul_hi_u32 v{R0 + 1}, v{R0}, s52") if False else None
    A(f"v_mul_lo_u32 v{R0 + 1}, v{R0}, s52"); A(f"v_lshrrev_b32 v{R0 + 1}, 24, v{R0 + 1}")
    A(f"v_mul_u32_u24 v{R0 + 2}, 432, v{R0 + 1}"); A(f"v_sub_u32 v{R0 + 2}, v{R0}, v{R0 + 2}")
    A(f"v_lshrrev_b32 v{R0 + 3}, 2, v{R0 + 1}"); A(f"v_and_b32 v{R0 + 4}, 3, v{R0 + 1}")
    udiv_small(A, R0 + 5, R0 + 3, 5); A(f"v_mul_u32_u24 v{R0 + 6}, 5, v{R0 + 5}"); A(f"v_sub_u32 v{R0 + 6}, v{R0 + 3}, v{R0 + 6}")
    A(f"v_mul_u32_u24 v{R0 + 5}, 160, v{R0 + 5}"); A(f"v_mul_u32_u24 v{R0 + 7}, 20, v{R0 + 4}"); A(f"v_add_u32 v{R0 + 5}, v{R0 + 5}, v{R0 + 7}")
    A(f"v_lshlrev_b32 v{R0 + 6}, 3, v{R0 + 6}")
    for jj in range(8):
        A(f"v_add_u32 v{R0 + 7}, {jj}, v{R0 + 6}")
        A(f"v_add_u32 v{R0 + 8}, 60, v{R0 + 7}"); A(f"v_cmp_gt_u32 vcc, 20, v{R0 + 7}"); A(f"v_cndmask_b32 v{R0 + 7}, v{R0 + 8}, v{R0 + 7}, vcc")
        A(f"v_add_u32 v{R0 + 7}, v{R0 + 7}, v{R0 + 5}")
        A(f"v_mul_u32_u24 v{R0 + 7}, 3456, v{R0 + 7}"); A(f"v_lshl_add_u32 v{RAD + jj}, v{R0 + 2}, 3, v{R0 + 7}")
    A(f"v_lshrrev_b32 v{R0 + 7}, 2, v{R0 + 2}"); A(f"v_mul_u32_u24 v{R0 + 7}, 20, v{R0 + 7}"); A(f"v_add_u32 v{R0 + 7}, v{R0 + 7}, v{R0 + 3}")
    A(f"v_lshlrev_b32 v{R0 + 7}, 11, v{R0 + 7}")
    A(f"v_and_b32 v{R0 + 8}, 3, v{R0 + 2}"); A(f"v_lshlrev_b32 v{R0 + 8}, 6, v{R0 + 8}"); A(f"v_lshl_add_u32 v{R0 + 8}, v{R0 + 4}, 8, v{R0 + 8}")
    A(f"v_add3_u32 v{RA}, v{R0 + 7}, v{R0 + 8}, s51"); A(f"v_add_u32 v{RA}, {WGU_OFF}, v{RA}")
    A(f"s_branch {rl_lbl}_done")
    A.raw(f"{rl_lbl}_n640:")
    A("s_mov_b32 s49, 1080"); A(f"s_mov_b32 s46, {1728 * 640 * 2}")
    A("s_cmp_ge_u32 s48, 1620"); A("s_cselect_b32 s44, s66, s72"); A("s_cselect_b32 s45, s67, s73"); A("s_cselect_b32 s50, 3, 2"); A("s_cselect_b32 s49, 1620, s49")
    A(f"s_cselect_b32 s46, {640 * 640 * 2}, s46"); A("s_mov_b32 s47, 0x20000")
    A("s_sub_u32 s49, s48, s49"); A("s_lshl_b32 s49, s49, 6")
    A(f"v_add_u32 v{R0}, s49, v1")
    A(f"s_mov_b32 s52, {(1 << 24) // 160 + 1}")
    A(f"v_mul_lo_u32 v{R0 + 1}, v{R0}, s52"); A(f"v_lshrrev_b32 v{R0 + 1}, 24, v{R0 + 1}")
    A(f"v_mul_u32_u24 v{R0 + 2}, 160, v{R0 + 1}"); A(f"v_sub_u32 v{R0 + 2}, v{R0}, v{R0 + 2}")
    A(f"v_lshrrev_b32 v{R0 + 3}, 2, v{R0 + 1}"); A(f"v_and_b32 v{R0 + 4}, 3, v{R0 + 1}")
    A("s_cmp_eq_u32 s50, 3"); A("s_cselect_b64 s[54:55], -1, 0")
    udiv_small(A, R0 + 5, R0 + 3, 5); A(f"v_mul_u32_u24 v{R0 + 6}, 5, v{R0 + 5}"); A(f"v_sub_u32 v{R0 + 6}, v{R0 + 3}, v{R0 + 6}")
    A(f"v_mul_u32_u24 v{R0 + 5}, 160, v{R0 + 5}"); A(f"v_mul_u32_u24 v{R0 + 7}, 10, v{R0 + 4}"); A(f"v_add_u32 v{R0 + 5}, v{R0 + 5}, v{R0 + 7}")
    A(f"v_lshlrev_b32 v{R0 + 6}, 3, v{R0 + 6}")
    A(f"v_lshlrev_b32 v{R0 + 9}, 5, v{R0 + 3}"); A(f"v_lshl_add_u32 v{R0 + 9}, v{R0 + 4}, 2, v{R0 + 9}")
    for jj in range(8):
        A(f"v_add_u32 v{R0 + 7}, {jj}, v{R0 + 6}")
        A(f"v_mul_u32_u24 v{R0 + 8}, 26, v{R0 + 7}"); A(f"v_lshrrev_b32 v{R0 + 8}, 8, v{R0 + 8}"); A(f"v_mul_u32_u24 v{R0 + 8}, 30, v{R0 + 8}")
        A(f"v_add3_u32 v{R0 + 7}, v{R0 + 7}, v{R0 + 8}, v{R0 + 5}")
        A(f"v_add_u32 v{R0 + 8}, {16 * (jj >> 2) + (jj & 3)}, v{R0 + 9}")
        A(f"v_cndmask_b32 v{R0 + 7}, v{R0 + 8}, v{R0 + 7}, s[54:55]")
        A(f"v_mul_u32_u24 v{R0 + 7}, 1280, v{R0 + 7}"); A(f"v_lshl_add_u32 v{RAD + jj}, v{R0 + 2}, 3, v{R0 + 7}")
    udiv_small(A, R0 + 7, R0 + 2, 20); A(f"v_mul_u32_u24 v{R0 + 8}, 20, v{R0 + 7}"); A(f"v_sub_u32 v{R0 + 8}, v{R0 + 2}, v{R0 + 8}")
    udiv_small(A, R0 + 9, R0 + 8, 5); A(f"v_mul_u32_u24 v{R0 + 5}, 5, v{R0 + 9}"); A(f"v_sub_u32 v{R0 + 5}, v{R0 + 8}, v{R0 + 5}")
    A(f"s_mov_b32 s53, {WD_OFF}"); A("s_cmp_eq_u32 s50, 3"); A("s_cselect_b32 s52, 20, 54"); A(f"s_cselect_b32 s53, {WO_OFF}, s53")
    A(f"v_mul_lo_u32 v{R0 + 7}, v{R0 + 7}, s52"); A(f"v_add_u32 v{R0 + 7}, v{R0 + 7}, v{R0 + 3}")
    A(f"v_mul_u32_u24 v{R0 + 7}, 5, v{R0 + 7}"); A(f"v_add_u32 v{R0 + 7}, v{R0 + 7}, v{R0 + 5}"); A(f"v_lshlrev_b32 v{R0 + 7}, 10, v{R0 + 7}")
    A(f"v_lshlrev_b32 v{R0 + 8}, 8, v{R0 + 4}"); A(f"v_lshl_add_u32 v{R0 + 8}, v{R0 + 9}, 6, v{R0 + 8}")
    A(f"v_add3_u32 v{RA}, v{R0 + 7}, v{R0 + 8}, s53")
    A(f"s_branch {rl_lbl}_done")
    A.raw(f"{rl_lbl}_wbar:")
    A("s_mov_b32 s50, 4")
    A("s_mov_b32 s44, s66"); A("s_mov_b32 s45, s67"); A(f"s_mov_b32 s46, {640 * 640 * 2}"); A("s_mov_b32 s47, 0x20000")
    A("s_sub_u32 s49, s48, 1820"); A("s_lshl_b32 s49, s49, 2")
    A(f"v_add_u32 v{R0}, s49, v3")
    A(f"v_mul_u32_u24 v{R0 + 1}, 1280, v{R0}"); A(f"v_lshl_add_u32 v{RAD}, v21, 4, v{R0 + 1}")
    udiv_small(A, R0 + 1, R0, 160); A(f"v_mul_u32_u24 v{R0 + 2}, 160, v{R0 + 1}"); A(f"v_sub_u32 v{R0 + 2}, v{R0}, v{R0 + 2}")
    udiv_small(A, R0 + 3, R0 + 2, 40); A(f"v_mul_u32_u24 v{R0 + 8}, 40, v{R0 + 3}"); A(f"v_sub_u32 v{R0 + 8}, v{R0 + 2}, v{R0 + 8}")
    udiv_small(A, R0 + 9, R0 + 8, 10); A(f"v_mul_u32_u24 v{R0 + 2}, 10, v{R0 + 9}"); A(f"v_sub_u32 v{R0 + 2}, v{R0 + 8}, v{R0 + 2}")
    A(f"v_mul_u32_u24 v{R0 + 3}, 10, v{R0 + 3}"); A(f"v_add_u32 v{R0 + 3}, v{R0 + 3}, v{R0 + 2}")
    A(f"v_lshrrev_b32 v{R0 + 2}, 3, v{R0 + 3}"); A(f"v_mul_u32_u24 v{R0 + 1}, 5, v{R0 + 1}"); A(f"v_add_u32 v{R0 + 1}, v{R0 + 1}, v{R0 + 2}")
    A(f"v_lshl_add_u32 v{R0 + 1}, v{R0 + 1}, 2, v{R0 + 9}"); A(f"v_and_b32 v{R0 + 3}, 7, v{R0 + 3}"); A(f"v_lshl_add_u32 v{R0 + 1}, v{R0 + 1}, 3, v{R0 + 3}")
    A(f"v_lshlrev_b32 v{RA}, 1, v{R0 + 1}"); A(f"v_add_u32 v{RA}, {WBAR_OFF}, v{RA}")
    A(f"s_branch {rl_lbl}_done")
    A.raw(f"{rl_lbl}_none:")
    A("s_mov_b32 s44, s8"); A("s_mov_b32 s45, s9"); A("s_mov_b32 s46, 4096"); A("s_mov_b32 s47, 0x20000")
    for n in range(8): A(f"v_lshlrev_b32 v{RAD + n}, 2, v1")
    A.raw(f"{rl_lbl}_done:")
    def rl_issue():
        vmb = list(A.vm)
        A("s_cmp_eq_u32 s50, 4"); A(f"s_cbranch_scc1 {rl_lbl}_i4")
        for jj in range(8): A(f"buffer_load_dwordx2 {v(RL + 2 * jj, 2)}, v{RAD + jj}, s[44:47], 0 offen")
        A(f"s_branch {rl_lbl}_idone")
        A.raw(f"{rl_lbl}_i4:")
        for n in range(4): A(f"buffer_load_dwordx4 {v(RL + 4 * n, 4)}, v{RAD}, s[44:47], 0 offen offset:{256 * n}")
        A(f"buffer_load_dwordx4 v[174:177], v{RAD}, s[44:47], 0 offen offset:1024")
        for n in range(3): A(f"buffer_load_dword v173, v{RAD}, s[44:47], 0 offen")
        A.raw(f"{rl_lbl}_idone:")
        A.vm = vmb + ['rl'] * 8
    A.stamp(2)
    NCH = 10
    SBI = lambda slot: (0, slot * SLOT) if slot < 2 else ((1, (slot - 2) * SLOT) if slot < 4 else (2, 0))
    for c in range(NCH + 1):
        rds = []; dma = []
        if c < NCH:
            if "nodma" not in dbg or c < 4: A.vm_wait(('c', c))
            A("s_waitcnt lgkmcnt(0)")
            A("s_barrier")
            if c == 0: A.stamp(3)
            if c + 4 < NCH and "nodma" not in dbg: dma = chunk_dma(c + 4)
            if c == RLC: rl_issue()
            k, off = SBI(c % NSLOT)
        else:
            A("s_waitcnt lgkmcnt(0)")
        for e in range(2):
            slots = []
            for t in range(9):
                if c >= 1 and "nomfma" not in dbg:
                    first = (c == 1 and e == 0)
                    if t < 8:
                        acc = v(ACC + 4 * t, 4)
                        A(f"v_mfma_f32_16x16x32_bf16 {acc}, {v(WF + (e * 8 + t) * 4, 4)}, {v(XF + 4 * e, 4)}, {acc if not first else 0}")
                        if t == 3:
                            A(f"v_mfma_f32_16x16x32_bf16 {v(SX, 4)}, {v(ONES, 4)}, {v(XF + 4 * e, 4)}, {v(SX, 4) if not first else 0}")
                        if t == 6:
                            A(f"v_mfma_f32_16x16x32_bf16 {v(GR, 4)}, {v(XF + 4 * e, 4)}, {v(XF + 4 * e, 4)}, {v(GR, 4) if not first else 0}")
                    else:
                        A(f"v_mfma_f32_16x16x32_bf16 {v(CS, 4)}, {v(CF + 4 * e, 4)}, {v(ONES, 4)}, {v(CS, 4) if not first else 0}")
                if c < NCH and not ("nords" in dbg and c > 0):
                    for hf in range(2):
                        imm = off + e * 7680 + hf * 960
                        if t < 5:
                            A(f"ds_read_b64_tr_b16 {v(WF + (e * 8 + t) * 4 + 2 * hf, 2)}, v{AQ[k]} offset:{imm + 8 * t}")
                        elif t < 8:
                            A(f"ds_read_b64_tr_b16 {v(WF + (e * 8 + t) * 4 + 2 * hf, 2)}, v{AV[t - 5][k]} offset:{imm}")
                        else:
                            A(f"ds_read_b64_tr_b16 {v(CF + 4 * e + 2 * hf, 2)}, v{AC[k]} offset:{imm}")
                    if t == 8:
                        A(f"ds_read_b128 {v(XF + 4 * e, 4)}, v{AX[e][k]} offset:{off}")
                if t in (1, 5) and dma: dma.pop(0)()
    A.stamp(4)
    E = 40
    A(f"v_mov_b32 v{ST}, v{SX}")
    A(f"v_and_b32 v{ST + 1}, 3, v21")
    A(f"v_cmp_eq_u32 vcc, 1, v{ST + 1}"); A(f"v_cndmask_b32 v{ST + 2}, v{GR}, v{GR + 1}, vcc")
    A(f"v_cmp_eq_u32 vcc, 2, v{ST + 1}"); A(f"v_cndmask_b32 v{ST + 2}, v{ST + 2}, v{GR + 2}, vcc")
    A(f"v_cmp_eq_u32 vcc, 3, v{ST + 1}"); A(f"v_cndmask_b32 v{ST + 2}, v{ST + 2}, v{GR + 3}, vcc")
    A(f"v_lshrrev_b32 v{ST + 1}, 2, v21"); A(f"v_cmp_eq_u32 vcc, v{ST + 1}, v3"); A(f"v_cndmask_b32 v{ST + 2}, 0, v{ST + 2}, vcc")
    xlane_sum_g(A, ST + 2, ST + 3)
    MEAN = ST; VAR = ST + 2
    A(f"v_mul_f32 v{MEAN}, {f32hex(1.0 / 640)}, v{MEAN}")
    A(f"v_mul_f32 v{VAR}, {f32hex(1.0 / 640)}, v{VAR}")
    A(f"v_fma_f32 v{VAR}, -v{MEAN}, v{MEAN}, v{VAR}"); A(f"v_max_f32 v{VAR}, 0, v{VAR}")
    bf16_round(A, VAR, VAR, ST + 1); A(f"v_add_f32 v{VAR}, {f32hex(1e-5)}, v{VAR}"); bf16_round(A, VAR, VAR, ST + 1)
    A(f"v_sqrt_f32 v{VAR}, v{VAR}"); bf16_round(A, VAR, VAR, ST + 1); A(f"v_rcp_f32 v{VAR}, v{VAR}")
    bf16_round(A, ST + 1, MEAN, ST + 3)
    RSTD = VAR; MB = ST + 1
    A.vm_wait('phi')
    for rep in range(2):
        e = PT + 2 + 8 * rep
        A(f"v_cndmask_b32 v{e + 6}, 0, v{e + 6}, s[{76 + 2 * rep}:{77 + 2 * rep}]")
        A(f"ds_write_b16 v{e}, v{e + 6}")
    A(f"v_lshlrev_b32 v{E}, 4, v3"); A("s_lshl_b32 s31, s22, 6"); A(f"v_add_u32 v{E}, s31, v{E}"); A(f"v_add_u32 v{E}, {CSA}, v{E}")
    A(f"ds_write_b128 v{E}, {v(CS, 4)}")
    A("s_cmp_lg_u32 s24, 0"); A(f"s_cbranch_scc1 L{name}_nomean")
    A(f"v_add_u32 v{E + 1}, s26, v21"); A(f"v_lshlrev_b32 v{E + 1}, 2, v{E + 1}"); A(f"s_mov_b32 s31, {MEAN1_OFF}")
    A(f"buffer_store_dword v{MEAN}, v{E + 1}, s[12:15], s31 offen")
    A.raw(f"L{name}_nomean:")
    A("s_waitcnt lgkmcnt(0)")
    A("s_barrier")
    CSR = E + 4
    A(f"v_lshlrev_b32 v{E}, 4, v3"); A(f"v_add_u32 v{E}, {CSA}, v{E}")
    for t in range(8): A(f"ds_read_b128 {v(CSR + 4 * t, 4)}, v{E} offset:{64 * t}")
    PA = E + 1
    A(f"v_lshrrev_b32 v{E + 2}, 2, v21"); A(f"v_and_b32 v{E + 3}, 3, v21"); A(f"v_mul_u32_u24 v{E + 3}, 48, v{E + 3}")
    A(f"v_and_b32 v{PA}, 1, v3"); A(f"v_mul_u32_u24 v{PA}, 960, v{PA}"); A(f"v_add3_u32 v{PA}, v{PA}, v{E + 3}, 0"); A(f"v_add_u32 v{PA}, {PHT}, v{PA}")
    A(f"v_cmp_eq_u32 vcc, v{E + 2}, v3"); A(f"v_mov_b32 v{E + 3}, {ZP}"); A(f"v_cndmask_b32 v{PA}, v{E + 3}, v{PA}, vcc")
    A("s_waitcnt lgkmcnt(0)")
    for i in range(32):
        A(f"v_fma_f32 v{ACC + i}, -v{MB}, v{CSR + i}, v{ACC + i}")
    for i in range(32):
        A(f"v_mul_f32 v{ACC + i}, v{ACC + i}, v{RSTD}")
    QP = 76
    VP = 88
    for p in range(10): A(f"v_cvt_pk_bf16_f32 v{QP + p}, v{ACC + 2 * p}, v{ACC + 2 * p + 1}")
    A(f"v_mov_b32 v{QP + 10}, 0"); A(f"v_mov_b32 v{QP + 11}, 0")
    for p in range(6): A(f"v_cvt_pk_bf16_f32 v{VP + p}, v{ACC + 20 + 2 * p}, v{ACC + 21 + 2 * p}")
    A(f"v_cmp_eq_u32 vcc, 2, v3"); A(f"v_mov_b32 v{E + 2}, 0x3f80"); A(f"v_cndmask_b32 v{E + 2}, 0, v{E + 2}, vcc")
    A(f"v_cmp_gt_u32 vcc, 2, v3"); A(f"v_cndmask_b32 v{VP + 4}, v{E + 2}, v{VP + 4}, vcc"); A(f"v_cndmask_b32 v{VP + 5}, 0, v{VP + 5}, vcc")
    PF = 196
    for t in range(5):
        for s_ in range(3):
            A(f"ds_read_b128 {v(PF + (t * 3 + s_) * 4, 4)}, v{PA} offset:{t * 192 + s_ * 16}")
    A(f"s_lshl_b32 s31, s22, 4"); A(f"v_add_u32 v{E + 2}, s31, v21")
    A(f"v_mul_u32_u24 v{E + 3}, 96, v{E + 2}"); A(f"v_lshl_add_u32 v{E + 3}, v3, 3, v{E + 3}"); A(f"v_add_u32 v{E + 3}, {VST}, v{E + 3}")
    for b in range(3): A(f"ds_write_b64 v{E + 3}, {v(VP + 2 * b, 2)} offset:{32 * b}")
    A("s_waitcnt lgkmcnt(3)")
    P = ACC
    for s_ in range(3):
        for t in range(5):
            A(f"v_mfma_f32_16x16x32_bf16 {v(P + 4 * t, 4)}, {v(PF + (t * 3 + s_) * 4, 4)}, {v(QP + 4 * s_, 4)}, {v(P + 4 * t, 4) if s_ > 0 else 0}")
    MX = 94; MN = 95; SP = 96; SN = 97; TM = 98
    A(f"v_max3_f32 v{MX}, v{P}, v{P + 1}, v{P + 2}"); A(f"v_min3_f32 v{MN}, v{P}, v{P + 1}, v{P + 2}")
    for i in range(3, 19, 2):
        A(f"v_max3_f32 v{MX}, v{MX}, v{P + i}, v{P + i + 1}"); A(f"v_min3_f32 v{MN}, v{MN}, v{P + i}, v{P + i + 1}")
    A(f"v_max_f32 v{MX}, v{MX}, v{P + 19}"); A(f"v_min_f32 v{MN}, v{MN}, v{P + 19}")
    A(f"s_mov_b32 s31, {f32hex(L2E)}")
    A(f"v_mul_f32 v{MX}, s31, v{MX}"); A(f"v_mul_f32 v{MN}, s31, v{MN}")
    EP = PF; EN = PF + 20
    for i in range(20):
        A(f"v_fma_f32 v{EP + i}, v{P + i}, s31, -v{MX}")
        A(f"v_fma_f32 v{EN + i}, -v{P + i}, s31, v{MN}")
    for i in range(20):
        A(f"v_exp_f32 v{EP + i}, v{EP + i}"); A(f"v_exp_f32 v{EN + i}, v{EN + i}")
    A(f"v_add_f32 v{SP}, v{EP}, v{EP + 1}"); A(f"v_add_f32 v{SN}, v{EN}, v{EN + 1}")
    A(f"v_add_f32 v{TM}, v{EP + 2}, v{EP + 3}"); A(f"v_add_f32 v{TM + 1}, v{EN + 2}, v{EN + 3}")
    for i in range(4, 20, 2):
        A(f"v_add_f32 v{SP}, v{SP}, v{EP + i}"); A(f"v_add_f32 v{SN}, v{SN}, v{EN + i}")
        A(f"v_add_f32 v{TM}, v{TM}, v{EP + i + 1}"); A(f"v_add_f32 v{TM + 1}, v{TM + 1}, v{EN + i + 1}")
    A(f"v_add_f32 v{SP}, v{SP}, v{TM}"); A(f"v_add_f32 v{SN}, v{SN}, v{TM + 1}")
    A(f"v_rcp_f32 v{SP}, v{SP}"); A(f"v_rcp_f32 v{SN}, v{SN}")
    for i in range(20):
        A(f"v_mul_f32 v{EP + i}, v{EP + i}, v{SP}"); A(f"v_mul_f32 v{EN + i}, v{EN + i}, v{SN}")
    PH = 44
    for p in range(10): A(f"v_cvt_pk_bf16_f32 v{PH + p}, v{EP + 2 * p}, v{EP + 2 * p + 1}")
    for p in range(10): A(f"v_cvt_pk_bf16_f32 v{PH + 10 + p}, v{EN + 2 * p}, v{EN + 2 * p + 1}")
    A(f"v_mul_u32_u24 v{E + 3}, 160, v{E + 2}"); A(f"v_and_b32 v{E + 1}, 1, v3"); A(f"v_mul_u32_u24 v{E + 1}, 80, v{E + 1}")
    A(f"v_add_u32 v{E + 3}, v{E + 3}, v{E + 1}")
    A("s_mov_b32 exec_lo, 0")
    for q in range(5): A(f"ds_write_b128 v{E + 3}, {v(PH + 4 * q, 4)} offset:{PST + 16 * q}")
    A("s_mov_b64 exec, -1")
    if not fused:
        A("s_lshr_b32 s31, s26, 4"); A("s_lshl_b32 s31, s31, 4"); A("s_add_u32 s31, s31, s24"); A("s_mul_i32 s31, s31, 5120"); A(f"s_add_u32 s31, s31, {PHQ_OFF}")
        A(f"v_lshlrev_b32 v{E}, 4, v1")
        for q in range(4): A(f"buffer_store_dwordx4 {v(PH + 4 * q, 4)}, v{E}, s[12:15], s31 offen offset:{1024 * q}")
        A("s_add_u32 s31, s31, 4096")
        A(f"buffer_store_dwordx4 {v(PH + 16, 4)}, v{E}, s[12:15], s31 offen")
    A.stamp(5)
    A("s_waitcnt vmcnt(0)")
    A("s_cmp_eq_u32 s50, 0"); A(f"s_cbranch_scc1 {rl_lbl}_fin")
    A("s_cmp_eq_u32 s50, 4"); A(f"s_cbranch_scc1 {rl_lbl}_wb2")
    RO = 64
    A("s_mov_b32 s52, 0x05040100"); A("s_mov_b32 s53, 0x07060302")
    for e_ in range(4):
        for m_ in range(4):
            lo = RL + 2 * (2 * m_) + (e_ >> 1); hi = RL + 2 * (2 * m_ + 1) + (e_ >> 1)
            A(f"v_perm_b32 v{RO + 4 * e_ + m_}, v{hi}, v{lo}, s{52 + (e_ & 1)}")
    for e_ in range(4):
        A(f"buffer_store_dwordx4 {v(RO + 4 * e_, 4)}, v{RA}, s[12:15], 0 offen offset:{16 * e_}")
    A(f"s_branch {rl_lbl}_fin")
    A.raw(f"{rl_lbl}_wb2:")
    A(f"v_mov_b32 v{RO}, 0"); A(f"v_mov_b32 v{RO + 1}, 0")
    for n in range(16): A(f"v_dot2c_f32_bf16 v{RO + (n & 1)}, s33, v{RL + n}")
    for n in range(4): A(f"v_dot2c_f32_bf16 v{RO + (n & 1)}, s33, v{174 + n}")
    A(f"v_add_f32 v{RO}, v{RO}, v{RO + 1}")
    for sh in (8, 4, 2, 1):
        A(f"v_add_f32_dpp v{RO + 1}, v{RO}, v{RO} row_ror:{sh} row_mask:0xf bank_mask:0xf")
        A(f"v_mov_b32 v{RO}, v{RO + 1}")
    A(f"v_mul_f32 v{RO}, {f32hex(1.0 / 640)}, v{RO}")
    A(f"v_cvt_pk_bf16_f32 v{RO}, v{RO}, v{RO}")
    A(f"buffer_store_short v{RO}, v{RA}, s[12:15], 0 offen")
    A.raw(f"{rl_lbl}_fin:")
    A("s_waitcnt lgkmcnt(0)")
    A("s_barrier")
    atab = sum(a << (4 * n) for n, (a, b) in enumerate(PAIRS + [(4, 2)] * 3)); btab = sum(b << (4 * n) for n, (a, b) in enumerate(PAIRS + [(4, 2)] * 3))
    A(f"s_mov_b32 s52, 0x{atab & 0xffffffff:08x}"); A(f"s_mov_b32 s53, 0x{atab >> 32:08x}")
    A(f"s_mov_b32 s54, 0x{btab & 0xffffffff:08x}"); A(f"s_mov_b32 s55, 0x{btab >> 32:08x}")
    A("s_lshl_b32 s56, s22, 3")
    A("s_lshr_b64 s[52:53], s[52:53], s56"); A("s_lshr_b64 s[54:55], s[54:55], s56")
    A(f"v_lshrrev_b32 v{E}, 2, v21"); A(f"v_lshl_add_u32 v{E}, v3, 2, v{E}")
    A(f"v_and_b32 v{E + 1}, 3, v21"); A(f"v_lshlrev_b32 v{E + 1}, 3, v{E + 1}")
    A(f"v_mul_u32_u24 v{E + 2}, 160, v{E}"); A(f"v_add_u32 v{E + 2}, v{E + 2}, v{E + 1}")
    A(f"v_mul_u32_u24 v{E + 3}, 96, v{E}"); A(f"v_add_u32 v{E + 3}, v{E + 3}, v{E + 1}"); A(f"v_add_u32 v{E + 3}, {VST}, v{E + 3}")
    KA = 64; KB = 96; KD = 128
    for q in range(2):
        A(f"s_lshr_b32 s57, s52, {4 * q}"); A("s_and_b32 s57, s57, 15"); A("s_lshl_b32 s58, s57, 5")
        A(f"s_lshr_b32 s59, s54, {4 * q}"); A("s_and_b32 s59, s59, 15"); A("s_lshl_b32 s60, s59, 5")
        A(f"v_add_u32 v{E + 4 + 2 * q}, s58, v{E + 2}"); A(f"v_add_u32 v{E + 5 + 2 * q}, s60, v{E + 3}")
        for sg in range(4):
            for hf in range(2):
                row = 32 * sg + 16 * hf
                A(f"ds_read_b64_tr_b16 {v(KA + (q * 4 + sg) * 4 + 2 * hf, 2)}, v{E + 4 + 2 * q} offset:{PST + row * 160}")
                A(f"ds_read_b64_tr_b16 {v(KB + (q * 4 + sg) * 4 + 2 * hf, 2)}, v{E + 5 + 2 * q} offset:{row * 96}")
        o = E + 8 + q; t1 = E + 10; t2 = E + 11; t3 = E + 12; t4 = E + 13
        A(f"s_lshl_b32 s61, s57, 4"); A(f"v_lshl_add_u32 v{t1}, v3, 2, s61")
        A(f"s_lshl_b32 s61, s59, 4"); A(f"v_add_u32 v{t2}, s61, v21")
        A(f"v_cmp_le_u32 vcc, 40, v{t1}"); A(f"v_cndmask_b32 v{t3}, 0, 1, vcc")
        A(f"v_mul_u32_u24 v{t4}, 40, v{t3}"); A(f"v_sub_u32 v{t1}, v{t1}, v{t4}")
        A(f"v_mul_u32_u24 v{t4}, 20, v{t3}"); A(f"v_sub_u32 v{t4}, v{t2}, v{t4}")
        A(f"v_cmp_eq_u32 vcc, 40, v{t2}"); A(f"v_cndmask_b32 v{t4}, v{t4}, 20, vcc") if False else None
        A(f"v_cmp_eq_u32 vcc, 40, v{t2}"); A(f"v_mov_b32 v{o}, 20"); A(f"v_cndmask_b32 v{t4}, v{t4}, v{o}, vcc")
        A(f"v_cmp_gt_u32 s[62:63], 20, v{t4}"); A(f"v_cmp_gt_u32 s[74:75], 40, v{t2}"); A("s_and_b64 s[62:63], s[62:63], s[74:75]"); A("s_or_b64 s[62:63], s[62:63], vcc")
        A(f"v_mul_u32_u24 v{o}, 21, v{t3}"); A(f"v_add_u32 v{o}, v{o}, v{t4}"); A(f"v_mul_u32_u24 v{o}, 160, v{o}"); A(f"v_lshl_add_u32 v{o}, v{t1}, 2, v{o}")
        A(f"v_mov_b32 v{t1}, 0x40000000"); A(f"v_cndmask_b32 v{o}, v{t1}, v{o}, s[62:63]")
        A(f"s_lshl_b32 s61, s22, 1"); A(f"s_add_u32 s61, s61, {q}"); A("s_cmp_ge_u32 s61, 13"); A("s_cselect_b64 vcc, -1, 0")
        A(f"v_cndmask_b32 v{o}, v{o}, v{t1}, vcc")
    A("s_waitcnt lgkmcnt(0)")
    for sg in range(4):
        for q in range(2):
            A(f"v_mfma_f32_16x16x32_bf16 {v(KD + 4 * q, 4)}, {v(KA + (q * 4 + sg) * 4, 4)}, {v(KB + (q * 4 + sg) * 4, 4)}, {v(KD + 4 * q, 4) if sg > 0 else 0}")
    A("s_lshl_b32 s31, s24, 4"); A("s_add_u32 s31, s31, s23"); A(f"s_mul_i32 s31, s31, {SLAB_BYTES}"); A(f"s_add_u32 s31, s31, {SLAB_OFF}")
    for q in range(2):
        A(f"buffer_store_dwordx4 {v(KD + 4 * q, 4)}, v{E + 8 + q}, s[12:15], s31 offen")
    if stamps:
        A("s_waitcnt vmcnt(0)")
        A.stamp(6)
        A.stamp_dump(8, 9, TS_OFF + kidx * 131072, 0)
    A.raw(A.endlabel + ":")
    A("s_endpgm")
    return A.text(), kernel_desc(name, 256, 100, 256), (256, 512, LDS1)
```

```python
from asmlib import *
from layout import *
from k5 import prologue_common
from k4 import f32hex, bf16_round
from k1 import ids_p1, udiv_small, AFR

def p2_body(A, name, PH, sc="", osc="", after_bar=None):
    E = 64
    SL = 100
    A(f"v_min_u32 v{E}, 419, v0"); A(f"v_lshlrev_b32 v{E + 1}, 4, v{E}")
    A("s_lshl_b32 s31, s24, 4"); A(f"s_mul_i32 s31, s31, {SLAB_BYTES}"); A(f"s_add_u32 s31, s31, {SLAB_OFF}")
    for i in range(16):
        A(f"buffer_load_dwordx4 {v(SL + 4 * i, 4)}, v{E + 1}, s[12:15], s31 offen{sc}", tag='slab')
        if i < 15: A(f"s_add_u32 s31, s31, {SLAB_BYTES}")
    udiv_small(A, E + 2, E, 10); A(f"v_mul_u32_u24 v{E + 3}, 10, v{E + 2}"); A(f"v_sub_u32 v{E + 3}, v{E}, v{E + 3}")
    A(f"v_cmp_le_u32 vcc, 21, v{E + 2}"); A(f"v_cndmask_b32 v{E + 4}, 0, 1, vcc")
    A(f"v_mul_u32_u24 v{E + 5}, 21, v{E + 4}"); A(f"v_sub_u32 v{E + 5}, v{E + 2}, v{E + 5}")
    A(f"v_cmp_le_u32 vcc, 10, v{E + 5}"); A(f"v_cndmask_b32 v{E + 6}, 0, 1, vcc")
    A(f"v_cmp_eq_u32 s[52:53], 20, v{E + 5}"); A(f"v_cndmask_b32 v{E + 6}, v{E + 6}, 0, s[52:53]")
    A(f"v_mul_u32_u24 v{E + 7}, 10, v{E + 6}"); A(f"v_sub_u32 v{E + 7}, v{E + 5}, v{E + 7}")
    A(f"v_mov_b32 v{E + 8}, 10"); A(f"v_cndmask_b32 v{E + 7}, v{E + 7}, v{E + 8}, s[52:53]")
    A(f"v_lshrrev_b32 v{E + 8}, 2, v{E + 7}"); A(f"v_mul_u32_u24 v{E + 8}, 5, v{E + 8}"); A(f"v_lshrrev_b32 v{E + 9}, 1, v{E + 3}")
    A(f"v_add_u32 v{E + 8}, v{E + 8}, v{E + 9}"); A(f"v_lshlrev_b32 v{E + 8}, 10, v{E + 8}")
    A(f"v_lshl_add_u32 v{E + 9}, v{E + 4}, 1, v{E + 6}"); A(f"v_lshlrev_b32 v{E + 9}, 2, v{E + 9}"); A(f"v_and_b32 v{E + 10}, 3, v{E + 7}")
    A(f"v_add_u32 v{E + 9}, v{E + 9}, v{E + 10}"); A(f"v_lshl_add_u32 v{E + 9}, v{E + 4}, 4, v{E + 9}")
    A(f"v_lshl_add_u32 v{E + 8}, v{E + 9}, 4, v{E + 8}"); A(f"v_and_b32 v{E + 10}, 1, v{E + 3}"); A(f"v_lshl_add_u32 v{E + 8}, v{E + 10}, 3, v{E + 8}")
    A(f"v_add_u32 v{E + 8}, {AFR}, v{E + 8}")
    A.vm_wait('slab')
    n = 16
    while n > 1:
        for i in range(n // 2):
            for k in range(4):
                A(f"v_add_f32 v{SL + 4 * i + k}, v{SL + 4 * i + k}, v{SL + 4 * (i + n // 2) + k}")
        n //= 2
    A(f"v_cvt_pk_bf16_f32 v{E + 12}, v{SL}, v{SL + 1}"); A(f"v_cvt_pk_bf16_f32 v{E + 13}, v{SL + 2}, v{SL + 3}")
    A("v_cmp_gt_u32 vcc, 420, v0")
    A("s_and_saveexec_b64 s[54:55], vcc")
    A(f"ds_write_b64 v{E + 8}, {v(E + 12, 2)}")
    A("s_and_b64 exec, exec, s[52:53]")
    A(f"ds_write_b64 v{E + 8}, {v(E + 12, 2)} offset:64")
    A("s_mov_b64 exec, s[54:55]")
    A("s_waitcnt lgkmcnt(0)")
    A("s_barrier")
    if after_bar: after_bar()
    OF = 100
    A(f"v_lshlrev_b32 v{E}, 4, v1")
    for fr in range(15): A(f"ds_read_b128 {v(OF + 4 * fr, 4)}, v{E} offset:{AFR + 1024 * fr}")
    OD = 68
    for s_ in range(5):
        A(f"s_waitcnt lgkmcnt(0)") if s_ == 0 else None
        for t in range(3):
            A(f"v_mfma_f32_16x16x32_bf16 {v(OD + 4 * t, 4)}, {v(OF + (t * 5 + s_) * 4, 4)}, {v(PH + 4 * s_, 4)}, {v(OD + 4 * t, 4) if s_ > 0 else 0}")
    A(f"v_add_f32 v{OD + 10}, {f32hex(1e-6)}, v{OD + 10}")
    A(f"v_rcp_f32 v{OD + 10}, v{OD + 10}")
    for k in range(10): A(f"v_mul_f32 v{OD + k}, v{OD + k}, v{OD + 10}")
    OP = 80
    for p in range(5): A(f"v_cvt_pk_bf16_f32 v{OP + p}, v{OD + 2 * p}, v{OD + 2 * p + 1}")
    A("s_lshl_b32 s52, s22, 11"); A("s_add_u32 s52, s52, 65536")
    A(f"v_mul_u32_u24 v{OP + 8}, 20, v1"); A(f"v_add_u32 v{OP + 8}, s52, v{OP + 8}")
    for d in range(5): A(f"ds_write_b32 v{OP + 8}, v{OP + d} offset:{4 * d}")
    A(f"v_add_u32 v{OP + 9}, s52, v{E}")
    A("s_waitcnt lgkmcnt(0)")
    A(f"ds_read_b128 {v(OP + 12, 4)}, v{OP + 9}")
    A(f"ds_read_b128 {v(OP + 16, 4)}, v{OP + 9} offset:1024")
    A("s_lshr_b32 s31, s26, 4"); A("s_lshl_b32 s31, s31, 4"); A("s_add_u32 s31, s31, s24"); A("s_mul_i32 s31, s31, 1280"); A(f"s_add_u32 s31, s31, {O_OFF}")
    A("s_waitcnt lgkmcnt(0)")
    A(f"buffer_store_dwordx4 {v(OP + 12, 4)}, v{E}, s[12:15], s31 offen{osc}", tag='ost')
    A("s_mov_b64 exec, 0xffff")
    A(f"buffer_store_dwordx4 {v(OP + 16, 4)}, v{E}, s[12:15], s31 offen offset:1024{osc}", tag='ost')
    A("s_mov_b64 exec, -1")

def zero_afr(A, t):
    A(f"v_mov_b32 v{t}, 0"); A(f"v_mov_b32 v{t + 1}, 0"); A(f"v_mov_b32 v{t + 2}, 0"); A(f"v_mov_b32 v{t + 3}, 0")
    A(f"v_lshlrev_b32 v{t + 4}, 4, v0")
    A(f"ds_write_b128 v{t + 4}, {v(t, 4)} offset:{AFR}")
    A(f"ds_write_b128 v{t + 4}, {v(t, 4)} offset:{AFR + 8192}")

def gen_k2(name="k2_kernel", stamps=False, kidx=1):
    A = Asm(); A.endlabel = f"L{name}_end"; A.stamps = stamps
    A.raw(f".globl {name}\n.p2align 8\n.type {name},@function\n{name}:")
    prologue_common(A)
    A.stamp(0)
    A("s_load_dwordx2 s[8:9], s[0:1], 80")
    A("v_and_b32 v1, 63, v0"); A("v_lshrrev_b32 v2, 6, v0")
    ids_p1(A)
    A("v_readfirstlane_b32 s22, v2")
    A("v_lshrrev_b32 v3, 4, v1"); A("v_and_b32 v21, 15, v1")
    A("s_lshl_b32 s26, s23, 7"); A("s_lshl_b32 s27, s22, 4"); A("s_add_u32 s26, s26, s27")
    A("s_waitcnt lgkmcnt(0)")
    A("s_mov_b32 s12, s8"); A("s_mov_b32 s13, s9"); A(f"s_mov_b32 s14, {WS_USED}"); A("s_mov_b32 s15, 0x20000")
    PH = 44
    A("s_lshr_b32 s31, s26, 4"); A("s_lshl_b32 s31, s31, 4"); A("s_add_u32 s31, s31, s24"); A("s_mul_i32 s31, s31, 5120"); A(f"s_add_u32 s31, s31, {PHQ_OFF}")
    A("v_lshlrev_b32 v4, 4, v1")
    for q in range(4): A(f"buffer_load_dwordx4 {v(PH + 4 * q, 4)}, v4, s[12:15], s31 offen offset:{1024 * q}")
    A("s_add_u32 s31, s31, 4096")
    A(f"buffer_load_dwordx4 {v(PH + 16, 4)}, v4, s[12:15], s31 offen")
    zero_afr(A, 8)
    A("s_waitcnt lgkmcnt(0)")
    A("s_barrier")
    p2_body(A, name, PH)
    if stamps:
        A("s_waitcnt vmcnt(0)")
        A.stamp(1)
        A.stamp_dump(8, 9, TS_OFF + kidx * 131072, 0)
    A.raw(A.endlabel + ":")
    A("s_endpgm")
    return A.text(), kernel_desc(name, 176, 100, 176), (256, 512, 65536)
```

```python
from asmlib import *
from layout import *
from k5 import prologue_common
from k4 import f32hex, bf16_round

def xlane_sum_g(A, val, tmp):
    A(f"v_mov_b32 v{tmp}, v{val}")
    A(f"v_permlane16_swap_b32 v{tmp}, v{val}")
    A(f"v_add_f32 v{val}, v{val}, v{tmp}")
    A(f"v_mov_b32 v{tmp}, v{val}")
    A(f"v_permlane32_swap_b32 v{tmp}, v{val}")
    A(f"v_add_f32 v{val}, v{val}, v{tmp}")

def gen_k3(name="k3_kernel", stamps=False, kidx=2):
    A = Asm(); A.endlabel = f"L{name}_end"; A.stamps = stamps
    A.raw(f".globl {name}\n.p2align 8\n.type {name},@function\n{name}:")
    prologue_common(A)
    A.stamp(0)
    A("s_load_dwordx2 s[4:5], s[0:1], 0")
    A("s_load_dwordx2 s[8:9], s[0:1], 80")
    A("v_and_b32 v1, 63, v0")
    A("v_lshrrev_b32 v2, 6, v0")
    A("s_and_b32 s20, s2, 7")
    A("s_lshr_b32 s21, s2, 3")
    A("v_readfirstlane_b32 s22, v2")
    A("s_lshr_b32 s23, s20, 1")
    A("s_lshl_b32 s23, s23, 3")
    A("s_lshr_b32 s24, s21, 2")
    A("s_add_u32 s23, s23, s24")
    A("s_and_b32 s24, s20, 1")
    A("s_lshl_b32 s24, s24, 2")
    A("s_and_b32 s25, s21, 3")
    A("s_add_u32 s24, s24, s25")
    A("v_lshlrev_b32 v3, 4, v1")
    A("v_add_u32 v4, 61440, v3")
    A("v_lshrrev_b32 v7, 4, v1")
    A("v_lshlrev_b32 v5, 4, v7")
    A("s_lshl_b32 s26, s23, 2")
    A("s_add_u32 s26, s26, s22")
    A("s_mul_i32 s27, s26, 20480")
    A(f"s_add_u32 s27, s27, {O_OFF}")
    A("s_mul_i32 s28, s24, 102400")
    A("s_mul_i32 s29, s22, 5120")
    A("s_add_u32 s28, s28, s29")
    A(f"s_add_u32 s28, s28, {WO_OFF}")
    A("s_mul_i32 s29, s22, 6144")
    A("s_lshl_b32 s30, s22, 6")
    A(f"s_add_u32 s30, s30, {WBAR_OFF}")
    A("s_waitcnt lgkmcnt(0)")
    A("s_mov_b32 s12, s8"); A("s_mov_b32 s13, s9"); A(f"s_mov_b32 s14, {WS_USED}"); A("s_mov_b32 s15, 0x20000")
    A("s_mov_b32 s16, s4"); A("s_mov_b32 s17, s5"); A(f"s_mov_b32 s18, {S * D * 2}"); A("s_mov_b32 s19, 0x20000")
    BR = 16; AF = 96; ACC = 192; XR = 216; MR = 226
    for r in range(5):
        A(f"s_add_u32 m0, s29, {r * 4 * 6144}")
        for t in range(4):
            A(f"buffer_load_dwordx4 v3, s[12:15], s28 offen offset:{t * 1024} lds", tag=('r', r))
        A(f"s_add_u32 m0, s29, {r * 4 * 6144 + 4096}")
        A("s_add_u32 s32, s28, 4096")
        A(f"buffer_load_dwordx4 v3, s[12:15], s32 offen lds", tag=('r', r))
        A(f"s_add_u32 m0, s29, {r * 4 * 6144 + 5120}")
        A(f"buffer_load_dwordx4 v5, s[12:15], s30 offen lds", tag=('r', r))
        A("s_add_u32 s28, s28, 20480")
        A("s_add_u32 s30, s30, 256")
        for i in range(4):
            A(f"buffer_load_dwordx4 {v(BR + (4 * r + i) * 4, 4)}, v3, s[12:15], s27 offen offset:{i * 1024}", tag=('r', r))
        A("s_add_u32 s27, s27, 4096")
    A("v_and_b32 v6, 15, v1")
    A("s_lshl_b32 s31, s26, 4")
    A("v_add_u32 v6, s31, v6")
    A("v_mul_u32_u24 v8, 1280, v6")
    A("v_mul_u32_u24 v9, 40, v7")
    A("s_mul_i32 s33, s24, 160")
    A("v_add3_u32 v8, v8, v9, s33")
    A(f"buffer_load_dwordx4 {v(XR, 4)}, v8, s[16:19], 0 offen", tag='x')
    A(f"buffer_load_dwordx4 {v(XR + 4, 4)}, v8, s[16:19], 0 offen offset:16", tag='x')
    A(f"buffer_load_dwordx2 {v(XR + 8, 2)}, v8, s[16:19], 0 offen offset:32", tag='x')
    A("v_lshlrev_b32 v10, 2, v6")
    A(f"s_mov_b32 s34, {MEAN1_OFF}")
    A(f"buffer_load_dword v{MR}, v10, s[12:15], s34 offen", tag='x')
    A.stamp(1)
    for r in range(6):
        rds, mfs = [], []
        if r < 5:
            A.vm_wait(('r', r))
            A("s_waitcnt lgkmcnt(0)")
            A("s_barrier")
            if r == 0: A.stamp(2)
            for k in range(24):
                st = 4 * r + k // 6
                base, off = (3, st * 6144) if st < 10 else (4, (st - 10) * 6144)
                rds.append((k, base, off + (k % 6) * 1024))
        else:
            A("s_waitcnt lgkmcnt(0)")
        if r >= 1:
            mfs = list(range(24))
        for k in range(24):
            if mfs:
                st = 4 * (r - 1) + k // 6; t = k % 6
                c = v(ACC + 4 * t, 4) if st > 0 else "0"
                A(f"v_mfma_f32_16x16x32_bf16 {v(ACC + 4 * t, 4)}, {v(AF + k * 4, 4)}, {v(BR + st * 4, 4)}, {c}")
            if rds:
                kk, base, off = rds[k]
                A(f"ds_read_b128 {v(AF + kk * 4, 4)}, v{base} offset:{off}")
    A.stamp(3)
    A.vm_wait('x')
    T = 16
    AB = T
    HF = T + 16
    XF = T + 40
    for p in range(10):
        t, r = divmod(2 * p, 4); a0 = ACC + 4 * t + r
        A(f"v_cvt_pk_bf16_f32 v{AB + p}, v{a0}, v{a0 + 1}")
    for p in range(10):
        A(f"v_lshlrev_b32 v{HF + 2 * p}, 16, v{AB + p}")
        A(f"v_and_b32 v{HF + 2 * p + 1}, 0xffff0000, v{AB + p}")
        A(f"v_lshlrev_b32 v{XF + 2 * p}, 16, v{XR + p}")
        A(f"v_and_b32 v{XF + 2 * p + 1}, 0xffff0000, v{XR + p}")
    for e in range(20): A(f"v_add_f32 v{HF + e}, v{HF + e}, v{XF + e}")
    HP = T + 64
    for p in range(10): A(f"v_cvt_pk_bf16_f32 v{HP + p}, v{HF + 2 * p}, v{HF + 2 * p + 1}")
    A(f"v_add_f32 v{MR}, v{MR}, v{ACC + 20}")
    bf16_round(A, MR + 1, MR, MR + 2)
    A("s_lshl_b32 s35, s23, 3"); A("s_add_u32 s35, s35, s24"); A("s_lshl_b32 s35, s35, 2"); A("s_add_u32 s35, s35, s22")
    A("s_mul_i32 s35, s35, 2560"); A(f"s_add_u32 s35, s35, {H_OFF}")
    A("v_lshlrev_b32 v11, 3, v1")
    A(f"buffer_store_dwordx4 {v(HP, 4)}, v3, s[12:15], s35 offen")
    A(f"buffer_store_dwordx4 {v(HP + 4, 4)}, v3, s[12:15], s35 offen offset:1024")
    A(f"buffer_store_dwordx2 {v(HP + 8, 2)}, v11, s[12:15], s35 offen offset:2048")
    for p in range(10):
        A(f"v_lshlrev_b32 v{HF + 2 * p}, 16, v{HP + p}")
        A(f"v_and_b32 v{HF + 2 * p + 1}, 0xffff0000, v{HP + p}")
    for e in range(20): A(f"v_sub_f32 v{XF + e}, v{HF + e}, v{MR + 1}")
    CP = T + 76
    for p in range(10): A(f"v_cvt_pk_bf16_f32 v{CP + p}, v{XF + 2 * p}, v{XF + 2 * p + 1}")
    for e in range(20): A(f"v_sub_f32 v{HF + e}, v{HF + e}, v{MR}")
    A(f"v_mul_f32 v{MR + 2}, v{HF}, v{HF}")
    A(f"v_mul_f32 v{MR + 3}, v{HF + 1}, v{HF + 1}")
    for e in range(2, 20): A(f"v_fmac_f32 v{MR + 2 + (e & 1)}, v{HF + e}, v{HF + e}")
    A(f"v_add_f32 v{MR + 2}, v{MR + 2}, v{MR + 3}")
    xlane_sum_g(A, MR + 2, MR + 3)
    A("s_lshr_b32 s36, s24, 1"); A("s_mul_i32 s36, s36, 5120"); A("s_mul_i32 s37, s26, 20480"); A("s_add_u32 s36, s36, s37")
    A(f"s_add_u32 s36, s36, {HC_OFF}")
    A("s_bitcmp1_b32 s24, 0")
    A(f"s_cbranch_scc1 L{name}_odd")
    A(f"buffer_store_dwordx4 {v(CP, 4)}, v3, s[12:15], s36 offen")
    A(f"buffer_store_dwordx4 {v(CP + 4, 4)}, v3, s[12:15], s36 offen offset:1024")
    A(f"buffer_store_dwordx2 {v(CP + 8, 2)}, v3, s[12:15], s36 offen offset:2048")
    A(f"s_branch L{name}_st")
    A.raw(f"L{name}_odd:")
    A(f"buffer_store_dwordx2 {v(CP, 2)}, v3, s[12:15], s36 offen offset:2056")
    A(f"buffer_store_dwordx4 {v(CP + 2, 4)}, v3, s[12:15], s36 offen offset:3072")
    A("s_add_u32 s36, s36, 4096")
    A(f"buffer_store_dwordx4 {v(CP + 6, 4)}, v3, s[12:15], s36 offen")
    A.raw(f"L{name}_st:")
    A("v_lshlrev_b32 v10, 5, v6")
    A("s_lshl_b32 s37, s24, 2"); A(f"s_add_u32 s37, s37, {VARP_OFF}")
    A(f"buffer_store_dword v{MR + 2}, v10, s[12:15], s37 offen")
    if stamps:
        A("s_waitcnt vmcnt(0)")
        A.stamp(4)
        A.stamp_dump(8, 9, TS_OFF + kidx * 131072, 0)
    A.raw(A.endlabel + ":")
    A("s_endpgm")
    return A.text(), kernel_desc(name, 232, 100, 232), (256, 256, 120 * 1024)
```

```python
from asmlib import *
from layout import *
from k5 import prologue_common
import math

K0 = -2.0 * 0.7978845608028654 * math.log2(math.e)
K1 = K0 * 0.044715
def f32hex(x):
    import struct
    return "0x%08x" % struct.unpack("<I", struct.pack("<f", x))[0]

def bf16_round(A, dst, src, tmp):
    A(f"v_cvt_pk_bf16_f32 v{tmp}, v{src}, v{src}")
    A(f"v_lshlrev_b32 v{dst}, 16, v{tmp}")

def gen_k4(name="k4_kernel", stamps=False, kidx=3, NT=7, LOOK=4):
    A = Asm(); A.endlabel = f"L{name}_end"; A.stamps = stamps
    A.raw(f".globl {name}\n.p2align 8\n.type {name},@function\n{name}:")
    prologue_common(A)
    A.stamp(0)
    A("s_load_dwordx2 s[8:9], s[0:1], 80")
    A("v_and_b32 v1, 63, v0")
    A("v_lshrrev_b32 v2, 6, v0")
    A("s_and_b32 s20, s2, 7")
    A("s_lshr_b32 s21, s2, 3")
    A("v_readfirstlane_b32 s22, v2")
    A("s_lshr_b32 s23, s20, 2")
    A("s_lshl_b32 s23, s23, 3")
    A("s_lshr_b32 s24, s21, 2")
    A("s_add_u32 s23, s23, s24")
    A("s_and_b32 s24, s20, 3")
    A("s_lshl_b32 s24, s24, 2")
    A("s_and_b32 s25, s21, 3")
    A("s_add_u32 s24, s24, s25")
    A("s_mul_i32 s24, s24, 7")
    A("s_min_u32 s24, s24, 101")
    A("v_lshlrev_b32 v3, 4, v1")
    A("v_add_u32 v4, 40960, v3")
    A("v_add_u32 v5, 81920, v3")
    A("s_mul_i32 s28, s24, 40960")
    A("s_mul_i32 s29, s22, 10240")
    A("s_add_u32 s28, s28, s29")
    A(f"s_add_u32 s28, s28, {WGU_OFF}")
    A("s_lshl_b32 s26, s23, 7")
    A("s_lshl_b32 s27, s22, 5")
    A("s_add_u32 s26, s26, s27")
    A("v_and_b32 v6, 15, v1")
    A("v_lshrrev_b32 v7, 4, v1")
    A("v_add_u32 v8, s26, v6")
    A("s_lshr_b32 s38, s26, 4")
    A("s_mul_i32 s38, s38, 20480")
    A(f"s_add_u32 s38, s38, {HC_OFF}")
    A("v_lshlrev_b32 v11, 5, v8")
    A("s_waitcnt lgkmcnt(0)")
    A("s_mov_b32 s12, s8"); A("s_mov_b32 s13, s9"); A(f"s_mov_b32 s14, {WS_USED}"); A("s_mov_b32 s15, 0x20000")
    HB = 16; AF = 176; ACC = 208; T = 240
    RING = 3
    def tile_dma(f):
        slot = f % RING
        out = []
        for n in range(10):
            def fn(n=n):
                if n % 4 == 0:
                    A(f"s_add_u32 m0, s29, {slot * 40960 + n * 1024}")
                    A(f"s_add_u32 s32, s28, {n * 1024}")
                A(f"buffer_load_dwordx4 v3, s[12:15], s32 offen offset:{(n % 4) * 1024} lds", tag=('w', f))
                if n == 9: A("s_add_u32 s28, s28, 40960")
            out.append(fn)
        return out
    A(f"s_mov_b32 s34, {VARP_OFF}")
    for fn in tile_dma(0): fn()
    for s4 in range(5):
        for a_ in range(2):
            A(f"s_add_u32 s33, s38, {a_ * 20480 + s4 * 4096}")
            for q in range(4):
                s_ = 4 * s4 + q
                A(f"buffer_load_dwordx4 {v(HB + (a_ * 20 + s_) * 4, 4)}, v3, s[12:15], s33 offen offset:{q * 1024}", tag=('h', s4))
    A(f"buffer_load_dwordx4 v[240:243], v11, s[12:15], s34 offen", tag='var')
    A(f"buffer_load_dwordx4 v[244:247], v11, s[12:15], s34 offen offset:16", tag='var')
    A(f"buffer_load_dwordx4 v[248:251], v11, s[12:15], s34 offen offset:512", tag='var')
    A(f"buffer_load_dwordx4 v[252:255], v11, s[12:15], s34 offen offset:528", tag='var')
    for fn in tile_dma(1): fn()
    A("s_lshr_b32 s35, s26, 4")
    A(f"s_mul_i32 s35, s35, {54 * 1024}")
    A(f"s_add_u32 s35, s35, {ACT_OFF}")
    A.stamp(1)
    A.vm_wait('var')
    for a_ in range(2):
        b = 240 + 8 * a_
        A(f"v_add_f32 v{b}, v{b}, v{b + 1}"); A(f"v_add_f32 v{b + 2}, v{b + 2}, v{b + 3}")
        A(f"v_add_f32 v{b + 4}, v{b + 4}, v{b + 5}"); A(f"v_add_f32 v{b + 6}, v{b + 6}, v{b + 7}")
        A(f"v_add_f32 v{b}, v{b}, v{b + 2}"); A(f"v_add_f32 v{b + 4}, v{b + 4}, v{b + 6}")
        A(f"v_add_f32 v{b}, v{b}, v{b + 4}")
        A(f"v_mul_f32 v{b}, {f32hex(1.0 / 640)}, v{b}")
        bf16_round(A, b, b, b + 1)
        A(f"v_add_f32 v{b}, {f32hex(1e-5)}, v{b}")
        bf16_round(A, b, b, b + 1)
        A(f"v_sqrt_f32 v{b}, v{b}")
        bf16_round(A, b, b, b + 1)
        A(f"v_mul_f32 v{b + 2}, v{b}, v{b}")
        A(f"v_rcp_f32 v{b + 1}, v{b}")
        A(f"v_mul_f32 v{7 + 3 * a_}, {f32hex(K0)}, v{b + 1}")
        A(f"v_mul_f32 v{b + 3}, v{b + 1}, v{b + 1}")
        A(f"v_mul_f32 v{b + 3}, v{b + 3}, v{b + 1}")
        A(f"v_mul_f32 v{8 + 3 * a_}, {f32hex(K1)}, v{b + 3}")
        A(f"v_mov_b32 v{9 + 3 * a_}, v{b + 2}")
    C0 = [7, 10]; C1 = [8, 11]; IR = [9, 12]
    bases = [3, 4, 5]
    total = NT * 20
    def rd(sig):
        f, s_ = divmod(sig, 20)
        slot = f % RING
        k = (sig % LOOK) * 2
        A(f"ds_read_b128 {v(AF + k * 4, 4)}, v{bases[slot]} offset:{s_ * 2048}")
        A(f"ds_read_b128 {v(AF + (k + 1) * 4, 4)}, v{bases[slot]} offset:{s_ * 2048 + 1024}")
    def epilogue_ops(f):
        p = f % 2
        ops = []
        def add(txt, tag=None): ops.append(lambda txt=txt, tag=tag: A(txt, tag=tag))
        for a_ in range(2):
            gb = ACC + p * 16 + a_ * 8; ub = gb + 4
            tq = [T + r for r in range(4)]; ty = [T + 4 + r for r in range(4)]
            for r in range(4): add(f"v_mul_f32 v{tq[r]}, v{gb + r}, v{gb + r}")
            for r in range(4): add(f"v_mul_f32 v{ty[r]}, v{gb + r}, v{ub + r}")
            for r in range(4): add(f"v_fma_f32 v{tq[r]}, v{tq[r]}, v{C1[a_]}, v{C0[a_]}")
            for r in range(4): add(f"v_mul_f32 v{tq[r]}, v{tq[r]}, v{gb + r}")
            for r in range(4): add(f"v_exp_f32 v{tq[r]}, v{tq[r]}")
            for r in range(4): add(f"v_fma_f32 v{tq[r]}, v{tq[r]}, v{IR[a_]}, v{IR[a_]}")
            for r in range(4): add(f"v_rcp_f32 v{tq[r]}, v{tq[r]}")
            for r in range(4): add(f"v_mul_f32 v{ty[r]}, v{ty[r]}, v{tq[r]}")
            o = T + 8 + 2 * a_
            add(f"v_cvt_pk_bf16_f32 v{o}, v{ty[0]}, v{ty[1]}")
            add(f"v_cvt_pk_bf16_f32 v{o + 1}, v{ty[2]}, v{ty[3]}")
            if a_ == 0:
                add(f"s_add_u32 s37, s24, {f}")
                add("s_lshr_b32 s36, s37, 1")
                add("s_lshl_b32 s36, s36, 10")
                add("s_and_b32 s37, s37, 1")
                add("s_lshl_b32 s37, s37, 3")
                add("s_add_u32 s36, s36, s37")
                add("s_add_u32 s36, s36, s35")
                add(f"s_add_u32 s37, s36, {54 * 1024}")
            add(f"buffer_store_dwordx2 {v(o, 2)}, v3, s[12:15], s{36 + a_} offen", tag=('st', f))
        return ops
    A.vm_wait(('w', 0))
    A("s_barrier")
    A.stamp(2)
    for sig in range(LOOK): rd(sig)
    epi = []
    dma = []
    for sig in range(total):
        f, s_ = divmod(sig, 20)
        p = f % 2
        if s_ == 0:
            epi = epilogue_ops(f - 1) if f >= 1 else []
            if f == 3: A.stamp(3)
        if f == 0 and s_ % 4 == 0: A.vm_wait(('h', s_ // 4))
        if s_ == 20 - LOOK and f + 1 < NT:
            A.vm_wait(('w', f + 1))
            A("s_waitcnt lgkmcnt(0)")
            A("s_barrier")
            assert not dma
            dma = tile_dma(f + 3) if f + 3 < NT else []
        if f == 0 and s_ == 0:
            dma = tile_dma(2)
        k = (sig % LOOK) * 2
        nxt = min(total, sig + LOOK) - (sig + 1)
        if not (s_ >= 20 - LOOK and f + 1 < NT and False):
            if s_ >= 20 - LOOK and f + 1 < NT:
                later = (s_ - (20 - LOOK)) * 2
                later = None
            else:
                later = 2 * nxt
            if later is not None: A(f"s_waitcnt lgkmcnt({min(15, later)})")
        for a_ in range(2):
            for gu in range(2):
                acc = ACC + p * 16 + a_ * 8 + gu * 4
                A(f"v_mfma_f32_16x16x32_bf16 {v(acc, 4)}, {v(AF + (k + gu) * 4, 4)}, {v(HB + (a_ * 20 + s_) * 4, 4)}, {v(acc, 4) if s_ > 0 else 0}")
                for _ in range(1 if (a_, gu) != (0, 0) else (2 if s_ % 4 == 0 else 1)):
                    if epi and s_ >= 1: epi.pop(0)()
            if a_ == 0 and dma: dma.pop(0)()
        if sig + LOOK < total: rd(sig + LOOK)
        if s_ == 19:
            while epi: epi.pop(0)()
    A.stamp(4)
    for fn in epilogue_ops(NT - 1): fn()
    if stamps:
        A("s_waitcnt vmcnt(0)")
        A.stamp(5)
        A.stamp_dump(8, 9, TS_OFF + kidx * 131072, 0)
    A.raw(A.endlabel + ":")
    A("s_endpgm")
    return A.text(), kernel_desc(name, 256, 100, 256), (256, 256, RING * 40960)
```

```python
from asmlib import *
from layout import *

def prologue_common(A, nwg=256):
    A(f"s_cmp_ge_u32 s2, {nwg}")
    A("s_cbranch_scc1 " + A.endlabel)

def gen_k5(name="k5_kernel", stamps=False, kidx=4, AHEAD=4, RING=7):
    A = Asm(); A.endlabel = f"L{name}_end"; A.stamps = stamps
    A.raw(f".globl {name}\n.p2align 8\n.type {name},@function\n{name}:")
    prologue_common(A)
    A.stamp(0)
    A("s_load_dwordx2 s[4:5], s[0:1], 64")
    A("s_load_dwordx2 s[8:9], s[0:1], 80")
    A("v_and_b32 v1, 63, v0")
    A("v_lshrrev_b32 v2, 6, v0")
    A("s_and_b32 s20, s2, 7")
    A("s_lshr_b32 s21, s2, 3")
    A("v_readfirstlane_b32 s22, v2")
    A("s_lshr_b32 s23, s20, 1")
    A("s_lshl_b32 s23, s23, 3")
    A("s_lshr_b32 s24, s21, 2")
    A("s_add_u32 s23, s23, s24")
    A("s_and_b32 s24, s20, 1")
    A("s_lshl_b32 s24, s24, 2")
    A("s_and_b32 s25, s21, 3")
    A("s_add_u32 s24, s24, s25")
    A("v_lshlrev_b32 v3, 4, v1")
    A("v_add_u32 v4, 61440, v3")
    A("v_add_u32 v5, 122880, v3")
    A("s_lshl_b32 s26, s23, 2")
    A("s_add_u32 s26, s26, s22")
    A(f"s_mul_i32 s27, s26, {54 * 1024}")
    A(f"s_add_u32 s27, s27, {ACT_OFF}")
    A(f"s_mul_i32 s28, s24, {54 * 5120}")
    A("s_mul_i32 s29, s22, 5120")
    A("s_add_u32 s28, s28, s29")
    A(f"s_add_u32 s28, s28, {WD_OFF}")
    A("s_waitcnt lgkmcnt(0)")
    A("s_mov_b32 s12, s8"); A("s_mov_b32 s13, s9"); A(f"s_mov_b32 s14, {WS_USED}"); A("s_mov_b32 s15, 0x20000")
    NR = 14
    BREG = 16
    AFR = BREG + RING * 16
    ACC = AFR + 80
    HREG = ACC + 20
    NV = HREG + 10
    def round_loads(r):
        slot = r % RING
        out = []
        def dma(t):
            def f():
                if t == 0: A(f"s_add_u32 m0, s29, {slot * 20480}")
                if t == 4:
                    A(f"s_add_u32 m0, s29, {slot * 20480 + 4096}")
                    A("s_add_u32 s32, s28, 4096")
                    A(f"buffer_load_dwordx4 v3, s[12:15], s32 offen lds", tag=('r', r))
                    A("s_add_u32 s28, s28, 20480")
                else:
                    A(f"buffer_load_dwordx4 v3, s[12:15], s28 offen offset:{t * 1024} lds", tag=('r', r))
            return f
        def bl(i):
            def f():
                b = BREG + (slot * 4 + i) * 4
                A(f"buffer_load_dwordx4 {v(b, 4)}, v3, s[12:15], s27 offen offset:{i * 1024}", tag=('r', r))
                if i == 3 or 4 * r + i == 53: A("s_add_u32 s27, s27, 4096")
            return f
        for t in range(5): out.append(dma(t))
        for i in range(4):
            if 4 * r + i < 54: out.append(bl(i))
        return out
    for r in range(AHEAD):
        for f in round_loads(r): f()
    A("s_mov_b32 s16, s4"); A("s_mov_b32 s17, s5"); A(f"s_mov_b32 s18, {S * D * 2}"); A("s_mov_b32 s19, 0x20000")
    A("v_and_b32 v6, 15, v1")
    A("v_lshrrev_b32 v7, 4, v1")
    A("s_lshl_b32 s30, s26, 4")
    A("v_add_u32 v6, s30, v6")
    A("v_mul_u32_u24 v6, 1280, v6")
    A("v_mul_u32_u24 v7, 40, v7")
    A("s_mul_i32 s31, s24, 160")
    A("v_add3_u32 v6, v6, v7, s31")
    for i in range(20): A(f"v_mov_b32 v{ACC + i}, 0")
    A.stamp(1)
    def nst(r): return 4 if 4 * r + 3 < 54 else 54 - 4 * r
    for r in range(NR + 1):
        pend = []
        rds = []
        if r < NR:
            slot = r % RING
            A.vm_wait(('r', r))
            A("s_waitcnt lgkmcnt(0)")
            A("s_barrier")
            if r == 0: A.stamp(2)
            if r == 5: A.stamp(3)
            if r == 10: A.stamp(4)
            if r == 12: A.stamp(5)
            pend = round_loads(r + AHEAD) if r + AHEAD < NR else []
            if r == NR - AHEAD:
                def hl():
                    A("s_lshl_b32 s33, s23, 3"); A("s_add_u32 s33, s33, s24"); A("s_lshl_b32 s33, s33, 2"); A("s_add_u32 s33, s33, s22")
                    A("s_mul_i32 s33, s33, 2560"); A(f"s_add_u32 s33, s33, {H_OFF}")
                    A("v_lshlrev_b32 v7, 3, v1")
                    A(f"buffer_load_dwordx4 {v(HREG, 4)}, v3, s[12:15], s33 offen", tag='h')
                    A(f"buffer_load_dwordx4 {v(HREG + 4, 4)}, v3, s[12:15], s33 offen offset:1024", tag='h')
                    A(f"buffer_load_dwordx2 {v(HREG + 8, 2)}, v7, s[12:15], s33 offen offset:2048", tag='h')
                pend = [hl]
            ldsoff = slot * 20480
            base, off0 = (3, ldsoff) if ldsoff < 61440 else ((4, ldsoff - 61440) if ldsoff < 122880 else (5, ldsoff - 122880))
            rds = [(k, base, off0 + (k // 5) * 5120 + (k % 5) * 1024) for k in range(nst(r) * 5)]
        else:
            A("s_waitcnt lgkmcnt(0)")
        mfs = []
        if r >= 1:
            pslot = (r - 1) % RING
            mfs = [(k, BREG + (pslot * 4 + k // 5) * 4) for k in range(nst(r - 1) * 5)]
        n = max(len(rds), len(mfs))
        for k in range(n):
            if k < len(mfs):
                kk, b = mfs[k]
                t = kk % 5
                A(f"v_mfma_f32_16x16x32_bf16 {v(ACC + 4 * t, 4)}, {v(AFR + kk * 4, 4)}, {v(b, 4)}, {v(ACC + 4 * t, 4)}")
            if k < len(rds):
                kk, base, off = rds[k]
                A(f"ds_read_b128 {v(AFR + kk * 4, 4)}, v{base} offset:{off}")
            if k % 2 == 1 and pend: pend.pop(0)()
        while pend: pend.pop(0)()
    A.vm_wait('h')
    A.stamp(6)
    T = 16
    for p in range(10):
        t, r = divmod(2 * p, 4)
        a0 = ACC + 4 * t + r
        A(f"v_cvt_pk_bf16_f32 v{T + p}, v{a0}, v{a0 + 1}")
    for p in range(10):
        A(f"v_lshlrev_b32 v{T + 16 + 2 * p}, 16, v{T + p}")
        A(f"v_and_b32 v{T + 17 + 2 * p}, 0xffff0000, v{T + p}")
        A(f"v_lshlrev_b32 v{T + 40 + 2 * p}, 16, v{HREG + p}")
        A(f"v_and_b32 v{T + 41 + 2 * p}, 0xffff0000, v{HREG + p}")
    for p in range(10):
        A(f"v_add_f32 v{T + 16 + 2 * p}, v{T + 16 + 2 * p}, v{T + 40 + 2 * p}")
        A(f"v_add_f32 v{T + 17 + 2 * p}, v{T + 17 + 2 * p}, v{T + 41 + 2 * p}")
    O = 80
    for p in range(10):
        A(f"v_cvt_pk_bf16_f32 v{O + p}, v{T + 16 + 2 * p}, v{T + 17 + 2 * p}")
    A(f"buffer_store_dwordx4 {v(O, 4)}, v6, s[16:19], 0 offen")
    A(f"buffer_store_dwordx4 {v(O + 4, 4)}, v6, s[16:19], 0 offen offset:16")
    A(f"buffer_store_dwordx2 {v(O + 8, 2)}, v6, s[16:19], 0 offen offset:32")
    if stamps:
        A("s_waitcnt vmcnt(0)")
        A.stamp(7)
        A.stamp_dump(8, 9, TS_OFF + kidx * 131072, 0)
    A.raw(A.endlabel + ":")
    A("s_endpgm")
    nv = (NV + 7) // 8 * 8
    return A.text(), kernel_desc(name, nv, 100, nv), (256, 256, RING * 20480)
```

```python
from asmlib import *
from layout import *
from k4 import f32hex, bf16_round
from k3 import xlane_sum_g
import p1 as P1
import p4 as P4
from k2 import p2_body, zero_afr

SC = (" sc1", " sc0 sc1")
FA, FW, FO, FH, FG = 0, 1, 2, 3, 4

def flag_set(A, phase, sidx):
    A(f"s_lshl_b32 s31, s{sidx}, 6"); A(f"s_add_u32 s31, s31, {FLAG_OFF + phase * 16384}")
    A("v_mov_b32 v8, 0"); A("v_mov_b32 v9, s96")
    A("s_mov_b64 exec, 1")
    A("buffer_store_dword v9, v8, s[12:15], s31 offen sc0 sc1")
    A("s_mov_b64 exec, -1")

def flag_wait(A, lbl, phase, sbase, n):
    if sbase is None: A(f"s_mov_b32 s31, {FLAG_OFF + phase * 16384}")
    else:
        A(f"s_lshl_b32 s31, s{sbase}, 6"); A(f"s_add_u32 s31, s31, {FLAG_OFF + phase * 16384}")
    A("v_lshlrev_b32 v8, 6, v1")
    A("s_mov_b32 s97, 0")
    if n == 16: A("s_mov_b64 exec, 0xffff")
    A.raw(f"{lbl}:")
    nl = 1 if n == 16 else 4
    for k in range(nl):
        if k: A(f"s_add_u32 s30, s31, {4096 * k}")
        A(f"buffer_load_dword v{9 + k}, v8, s[12:15], s{31 if k == 0 else 30} offen sc1")
    A("s_add_u32 s97, s97, 1")
    A("s_waitcnt vmcnt(0)")
    for k in range(nl): A(f"v_xor_b32 v{9 + k}, s96, v{9 + k}")
    for k in range(1, nl): A(f"v_or_b32 v9, v9, v{9 + k}")
    A("v_cmp_ne_u32 vcc, 0, v9")
    A("s_cmp_gt_u32 s97, 0x40000")
    A(f"s_cbranch_scc1 {lbl}_x")
    A(f"s_cbranch_vccnz {lbl}")
    A.raw(f"{lbl}_x:")
    A("s_mov_b64 exec, -1")

def ids_p35(A):
    A("s_and_b32 s20, s2, 7"); A("s_lshr_b32 s21, s2, 3")
    A("s_lshr_b32 s23, s20, 1"); A("s_lshl_b32 s23, s23, 3"); A("s_lshr_b32 s24, s21, 2"); A("s_add_u32 s23, s23, s24")
    A("s_and_b32 s24, s20, 1"); A("s_lshl_b32 s24, s24, 2"); A("s_and_b32 s27, s21, 3"); A("s_add_u32 s24, s24, s27")
    A("s_lshl_b32 s26, s23, 2"); A("s_add_u32 s26, s26, s25")

def p3_H_dma(A):
    A("v_lshlrev_b32 v4, 4, v1"); A("v_lshlrev_b32 v5, 4, v3")
    A("s_mul_i32 s28, s24, 102400"); A("s_mul_i32 s29, s25, 5120"); A("s_add_u32 s28, s28, s29"); A(f"s_add_u32 s28, s28, {WO_OFF}")
    A("s_mul_i32 s29, s25, 6144")
    A("s_lshl_b32 s30, s25, 6"); A(f"s_add_u32 s30, s30, {WBAR_OFF}")
    for r in range(5):
        A(f"s_add_u32 m0, s29, {r * 4 * 6144}")
        for t in range(4):
            A(f"buffer_load_dwordx4 v4, s[12:15], s28 offen offset:{t * 1024}{SC[0]} lds", tag=('r', r))
        A(f"s_add_u32 m0, s29, {r * 4 * 6144 + 4096}")
        A("s_add_u32 s32, s28, 4096")
        A(f"buffer_load_dwordx4 v4, s[12:15], s32 offen{SC[0]} lds", tag=('r', r))
        A(f"s_add_u32 m0, s29, {r * 4 * 6144 + 5120}")
        A(f"buffer_load_dwordx4 v5, s[12:15], s30 offen{SC[0]} lds", tag=('r', r))
        A("s_add_u32 s28, s28, 20480"); A("s_add_u32 s30, s30, 256")

def p3_H_loop(A):
    for r in range(5):
        A.vm_wait(('r', r))
        A("s_barrier")
    A("s_barrier")

XR3 = 216
def p3_C_pre(A):
    A("v_lshlrev_b32 v4, 4, v1"); A("v_add_u32 v5, 61440, v4")
    A("s_lshl_b32 s31, s26, 4"); A("v_add_u32 v6, s31, v21")
    A("v_mul_u32_u24 v8, 1280, v6"); A("v_mul_u32_u24 v9, 40, v3"); A("s_mul_i32 s33, s24, 160"); A("v_add3_u32 v8, v8, v9, s33")
    A("s_mov_b32 s16, s4"); A("s_mov_b32 s17, s5"); A(f"s_mov_b32 s18, {S * D * 2}"); A("s_mov_b32 s19, 0x20000")
    A(f"buffer_load_dwordx4 {v(XR3, 4)}, v8, s[16:19], 0 offen", tag='x')
    A(f"buffer_load_dwordx4 {v(XR3 + 4, 4)}, v8, s[16:19], 0 offen offset:16", tag='x')
    A(f"buffer_load_dwordx2 {v(XR3 + 8, 2)}, v8, s[16:19], 0 offen offset:32", tag='x')

def p3_C(A, name):
    BR = 16; AF = 96; ACC = 192; XR = XR3; MR = 226
    A("v_mov_b32 v7, v21"); A("v_mov_b32 v2, v3")
    A("s_mul_i32 s27, s26, 20480"); A(f"s_add_u32 s27, s27, {O_OFF}")
    A("v_mul_u32_u24 v12, 20, v1")
    for J in range(4):
        for jj in range(4):
            st = 5 * J + jj
            A(f"buffer_load_dwordx4 {v(BR + st * 4, 4)}, v12, s[12:15], s27 offen offset:{jj * 1280}{SC[0]}", tag=('b', st))
        for jj in range(4):
            st = 5 * J + 4
            A(f"buffer_load_dword v{BR + st * 4 + jj}, v12, s[12:15], s27 offen offset:{jj * 1280 + 16}{SC[0]}", tag=('b', st))
        A("s_add_u32 s27, s27, 5120")
    A("v_lshlrev_b32 v10, 2, v6"); A(f"s_mov_b32 s34, {MEAN1_OFF}")
    A(f"buffer_load_dword v{MR}, v10, s[12:15], s34 offen{SC[0]}", tag='m')
    for r in range(6):
        rds, mfs = [], []
        A("s_waitcnt lgkmcnt(0)")
        A("s_barrier")
        if r < 5:
            for k in range(24):
                st = 4 * r + k // 6
                base, off = (4, st * 6144) if st < 10 else (5, (st - 10) * 6144)
                rds.append((k, base, off + (k % 6) * 1024))
        if r >= 1:
            mfs = list(range(24)); A.vm_wait([('b', 4 * (r - 1) + i) for i in range(4)])
        for k in range(24):
            if mfs:
                st = 4 * (r - 1) + k // 6; t = k % 6
                c = v(ACC + 4 * t, 4) if st > 0 else "0"
                A(f"v_mfma_f32_16x16x32_bf16 {v(ACC + 4 * t, 4)}, {v(AF + k * 4, 4)}, {v(BR + st * 4, 4)}, {c}")
            if rds:
                kk, base, off = rds[k]
                A(f"ds_read_b128 {v(AF + kk * 4, 4)}, v{base} offset:{off}")
    A.vm_wait('m')
    T = 16; AB = T; HF = T + 16; XF = T + 40
    for p in range(10):
        t, r = divmod(2 * p, 4); a0 = ACC + 4 * t + r
        A(f"v_cvt_pk_bf16_f32 v{AB + p}, v{a0}, v{a0 + 1}")
    for p in range(10):
        A(f"v_lshlrev_b32 v{HF + 2 * p}, 16, v{AB + p}"); A(f"v_and_b32 v{HF + 2 * p + 1}, 0xffff0000, v{AB + p}")
        A(f"v_lshlrev_b32 v{XF + 2 * p}, 16, v{XR + p}"); A(f"v_and_b32 v{XF + 2 * p + 1}, 0xffff0000, v{XR + p}")
    for e in range(0, 20, 2): A(f"v_pk_add_f32 {v(HF + e, 2)}, {v(HF + e, 2)}, {v(XF + e, 2)}")
    HP = T + 64
    for p in range(10): A(f"v_cvt_pk_bf16_f32 v{HP + p}, v{HF + 2 * p}, v{HF + 2 * p + 1}")
    A(f"v_add_f32 v{MR}, v{MR}, v{ACC + 20}")
    bf16_round(A, MR + 1, MR, MR + 2)
    for p in range(10):
        A(f"v_lshlrev_b32 v{HF + 2 * p}, 16, v{HP + p}"); A(f"v_and_b32 v{HF + 2 * p + 1}, 0xffff0000, v{HP + p}")
    for e in range(20): A(f"v_sub_f32 v{XF + e}, v{HF + e}, v{MR + 1}")
    CP = T + 76
    for p in range(10): A(f"v_cvt_pk_bf16_f32 v{CP + p}, v{XF + 2 * p}, v{XF + 2 * p + 1}")
    A("s_lshr_b32 s36, s24, 1"); A("s_mul_i32 s36, s36, 5120"); A("s_mul_i32 s37, s26, 20480"); A("s_add_u32 s36, s36, s37")
    A(f"s_add_u32 s36, s36, {HC_OFF}")
    A("v_lshlrev_b32 v11, 3, v1")
    A("s_bitcmp1_b32 s24, 0"); A(f"s_cbranch_scc1 L{name}_odd")
    A(f"buffer_store_dwordx4 {v(CP, 4)}, v4, s[12:15], s36 offen{SC[1]}")
    A(f"buffer_store_dwordx4 {v(CP + 4, 4)}, v4, s[12:15], s36 offen offset:1024{SC[1]}")
    A(f"buffer_store_dwordx2 {v(CP + 8, 2)}, v11, s[12:15], s36 offen offset:2048{SC[1]}")
    A(f"s_branch L{name}_st")
    A.raw(f"L{name}_odd:")
    A(f"buffer_store_dwordx2 {v(CP, 2)}, v11, s[12:15], s36 offen offset:2560{SC[1]}")
    A(f"buffer_store_dwordx4 {v(CP + 2, 4)}, v4, s[12:15], s36 offen offset:3072{SC[1]}")
    A("s_add_u32 s36, s36, 4096")
    A(f"buffer_store_dwordx4 {v(CP + 6, 4)}, v4, s[12:15], s36 offen{SC[1]}")
    A.raw(f"L{name}_st:")
    for e in range(20): A(f"v_sub_f32 v{HF + e}, v{HF + e}, v{MR}")
    A(f"v_mul_f32 v{MR + 2}, v{HF}, v{HF}"); A(f"v_mul_f32 v{MR + 3}, v{HF + 1}, v{HF + 1}")
    for e in range(2, 20): A(f"v_fmac_f32 v{MR + 2 + (e & 1)}, v{HF + e}, v{HF + e}")
    A(f"v_add_f32 v{MR + 2}, v{MR + 2}, v{MR + 3}")
    xlane_sum_g(A, MR + 2, MR + 3)
    A("v_lshlrev_b32 v10, 2, v6"); A("s_lshl_b32 s37, s24, 13"); A(f"s_add_u32 s37, s37, {VARP_OFF}")
    A(f"buffer_store_dword v{MR + 2}, v10, s[12:15], s37 offen{SC[1]}")
    A("s_lshl_b32 s35, s23, 3"); A("s_add_u32 s35, s35, s24"); A("s_lshl_b32 s35, s35, 2"); A("s_add_u32 s35, s35, s25")
    A("s_mul_i32 s35, s35, 2560"); A(f"s_add_u32 s35, s35, {H_OFF}")
    A("v_lshlrev_b32 v11, 3, v1")
    A(f"buffer_store_dwordx4 {v(HP, 4)}, v4, s[12:15], s35 offen{SC[1]}")
    A(f"buffer_store_dwordx4 {v(HP + 4, 4)}, v4, s[12:15], s35 offen offset:1024{SC[1]}")
    A(f"buffer_store_dwordx2 {v(HP + 8, 2)}, v11, s[12:15], s35 offen offset:2048{SC[1]}")
    A("v_mov_b32 v21, v7"); A("v_mov_b32 v3, v2")

SL5 = [122880, 40960, 61440, 81920, 102400, 0, 20480]
NR5 = 14
def p5_H_setup(A):
    A("v_lshlrev_b32 v4, 4, v1")
    A(f"s_mul_i32 s40, s24, {54 * 5120}"); A("s_mul_i32 s41, s25, 5120"); A("s_add_u32 s40, s40, s41"); A(f"s_add_u32 s40, s40, {WD_OFF}")
def p5_round_dma(A, r):
    base = SL5[r % 7]
    out = []
    for t in range(5):
        def f(t=t):
            if t == 0:
                A(f"s_add_u32 m0, s41, {base}"); A(f"s_add_u32 s42, s40, {r * 20480}")
            if t == 4:
                A(f"s_add_u32 m0, s41, {base + 4096}"); A(f"s_add_u32 s42, s40, {r * 20480 + 4096}")
                A(f"buffer_load_dwordx4 v4, s[12:15], s42 offen{SC[0]} lds", tag=('r5', r))
            else:
                A(f"buffer_load_dwordx4 v4, s[12:15], s42 offen offset:{t * 1024}{SC[0]} lds", tag=('r5', r))
        out.append(f)
    return out
def p5_H(A, issued):
    for r in range(NR5):
        A.vm_wait(('r5', r))
        A("s_barrier")
        if r >= 1 and issued < NR5 and issued == r + 6:
            for f in p5_round_dma(A, issued): f()
            issued += 1

def p5_C(A, name):
    RING = 7; AHEAD = 5
    BREG = 16; AFR = BREG + RING * 16; ACC = AFR + 80; HREG = ACC + 20
    A("v_mov_b32 v7, v21"); A("v_mov_b32 v2, v3")
    A("v_lshlrev_b32 v4, 4, v1"); A("v_add_u32 v5, 61440, v4"); A("v_add_u32 v6, 122880, v4")
    A(f"s_mul_i32 s27, s26, {54 * 1024}"); A(f"s_add_u32 s27, s27, {ACT_OFF}")
    A("v_lshlrev_b32 v8, 3, v1")
    def loads(r):
        out = []
        for i in range(4):
            if 4 * r + i < 54:
                def f(i=i):
                    b = BREG + ((r % RING) * 4 + i) * 4
                    A(f"buffer_load_dwordx2 {v(b, 2)}, v8, s[12:15], s27 offen offset:{i * 1024}{SC[0]}", tag=('b5', r))
                    A(f"buffer_load_dwordx2 {v(b + 2, 2)}, v8, s[12:15], s27 offen offset:{i * 1024 + 512}{SC[0]}", tag=('b5', r))
                    if i == 3 or 4 * r + i == 53: A("s_add_u32 s27, s27, 4096")
                out.append(f)
        return out
    for r in range(AHEAD):
        for f in loads(r): f()
    A("s_load_dwordx2 s[4:5], s[0:1], 64")
    A("s_lshl_b32 s30, s26, 4"); A("v_add_u32 v9, s30, v7"); A("v_mul_u32_u24 v9, 1280, v9"); A("v_mul_u32_u24 v10, 40, v2")
    A("s_mul_i32 s31, s24, 160"); A("v_add3_u32 v9, v9, v10, s31")
    A("s_waitcnt lgkmcnt(0)")
    A("s_mov_b32 s16, s4"); A("s_mov_b32 s17, s5"); A(f"s_mov_b32 s18, {S * D * 2}"); A("s_mov_b32 s19, 0x20000")
    def nst(r): return 4 if 4 * r + 3 < 54 else 54 - 4 * r
    for r in range(NR5 + 1):
        pend, rds, mfs = [], [], []
        A("s_waitcnt lgkmcnt(0)")
        if r < NR5:
            A("s_barrier")
            pend = loads(r + AHEAD) if r + AHEAD < NR5 else []
            if r == NR5 - AHEAD:
                def hl():
                    A("s_lshl_b32 s33, s23, 3"); A("s_add_u32 s33, s33, s24"); A("s_lshl_b32 s33, s33, 2"); A("s_add_u32 s33, s33, s25")
                    A("s_mul_i32 s33, s33, 2560"); A(f"s_add_u32 s33, s33, {H_OFF}")
                    A("v_lshlrev_b32 v10, 3, v1")
                    A(f"buffer_load_dwordx4 {v(HREG, 4)}, v4, s[12:15], s33 offen{SC[0]}", tag='h')
                    A(f"buffer_load_dwordx4 {v(HREG + 4, 4)}, v4, s[12:15], s33 offen offset:1024{SC[0]}", tag='h')
                    A(f"buffer_load_dwordx2 {v(HREG + 8, 2)}, v10, s[12:15], s33 offen offset:2048{SC[0]}", tag='h')
                pend = [hl]
            lo = SL5[r % 7]
            base, off0 = (4, lo) if lo < 61440 else ((5, lo - 61440) if lo < 122880 else (6, lo - 122880))
            rds = [(k, base, off0 + (k // 5) * 5120 + (k % 5) * 1024) for k in range(nst(r) * 5)]
        if r >= 1:
            ps = (r - 1) % RING
            mfs = [(k, BREG + (ps * 4 + k // 5) * 4) for k in range(nst(r - 1) * 5)]
            A.vm_wait(('b5', r - 1))
        n = max(len(rds), len(mfs))
        for k in range(n):
            if k < len(mfs):
                kk, b = mfs[k]; t = kk % 5
                first = (r == 1 and kk < 5)
                A(f"v_mfma_f32_16x16x32_bf16 {v(ACC + 4 * t, 4)}, {v(AFR + kk * 4, 4)}, {v(b, 4)}, {v(ACC + 4 * t, 4) if not first else 0}")
            if k < len(rds):
                kk, base, off = rds[k]
                A(f"ds_read_b128 {v(AFR + kk * 4, 4)}, v{base} offset:{off}")
            if k % 4 == 3 and pend: pend.pop(0)()
        while pend: pend.pop(0)()
    A.vm_wait('h')
    T = 16
    for p in range(10):
        t, r = divmod(2 * p, 4); a0 = ACC + 4 * t + r
        A(f"v_cvt_pk_bf16_f32 v{T + p}, v{a0}, v{a0 + 1}")
    for p in range(10):
        A(f"v_lshlrev_b32 v{T + 16 + 2 * p}, 16, v{T + p}"); A(f"v_and_b32 v{T + 17 + 2 * p}, 0xffff0000, v{T + p}")
        A(f"v_lshlrev_b32 v{T + 40 + 2 * p}, 16, v{HREG + p}"); A(f"v_and_b32 v{T + 41 + 2 * p}, 0xffff0000, v{HREG + p}")
    for p in range(10): A(f"v_pk_add_f32 {v(T + 16 + 2 * p, 2)}, {v(T + 16 + 2 * p, 2)}, {v(T + 40 + 2 * p, 2)}")
    O = 80
    for p in range(10): A(f"v_cvt_pk_bf16_f32 v{O + p}, v{T + 16 + 2 * p}, v{T + 17 + 2 * p}")
    A(f"buffer_store_dwordx4 {v(O, 4)}, v9, s[16:19], 0 offen")
    A(f"buffer_store_dwordx4 {v(O + 4, 4)}, v9, s[16:19], 0 offen offset:16")
    A(f"buffer_store_dwordx2 {v(O + 8, 2)}, v9, s[16:19], 0 offen offset:32")

def w0(A, lbl):
    A("s_cmp_lg_u32 s22, 0"); A(f"s_cbranch_scc1 {lbl}")

NPF = 12
def gen_mega(name="mega_kernel", stamps=False, kidx=0):
    A = Asm(); A.endlabel = f"L{name}_end"; A.stamps = False; A.rl_sc = SC[1]; A.nonce_c = True
    def mstamp(k):
        A.stamps = stamps; A.stamp(k); A.stamps = False
    A.raw(f".globl {name}\n.p2align 8\n.type {name},@function\n{name}:")
    A("s_cmp_ge_u32 s2, 256"); A("s_cbranch_scc1 " + A.endlabel)
    mstamp(0)
    P1.p1_common_setup(A)
    A("s_cmp_ge_u32 s22, 4"); A(f"s_cbranch_scc1 L{name}_H1")
    import os
    if not os.environ.get("NOPF"):
        A("s_getpc_b64 s[50:51]")
        A.raw(f"L{name}_pc:")
        A(f"s_sub_u32 s50, s50, (L{name}_pc - {name})"); A("s_subb_u32 s51, s51, 0")
        A("v_lshlrev_b32 v30, 4, v1"); A("s_mul_i32 s52, s25, CODE_Q"); A("v_add_u32 v30, s52, v30")
        for k in range(NPF):
            A(f"global_load_dwordx4 v[232:235], v30, s[50:51] offset:{(k % 4) * 1024}")
            if k % 4 == 3: A("v_add_u32 v30, 4096, v30")
    R = P1.p1_C(A, name)
    A("s_waitcnt lgkmcnt(0)")
    A("s_barrier")
    A(f"s_branch L{name}_epi")
    A.raw(f"L{name}_H1:")
    A.hist = []; A.vm = []
    P1.p1_H(A, name)
    A("s_barrier")
    R_ = R
    A(f"s_mul_i32 s31, s25, 9216"); A(f"v_lshlrev_b32 v228, 4, v1"); A(f"v_add_u32 v228, s31, v228")
    for t in range(8): A(f"ds_read_b128 {v(R['ACC'] + 4 * t, 4)}, v228 offset:{P1.HO + 1024 * t}")
    A(f"s_lshl_b32 s31, s25, 11"); A(f"s_add_u32 s31, s31, {P1.HO2}"); A(f"v_lshlrev_b32 v229, 4, v1"); A(f"v_add_u32 v229, s31, v229")
    A(f"ds_read_b128 {v(R['GR'], 4)}, v229"); A(f"ds_read_b128 {v(R['SX'], 4)}, v229 offset:1024")
    A("s_waitcnt lgkmcnt(0)")
    A.raw(f"L{name}_epi:")
    A.hist = []; A.vm = []
    A("s_nop 7")
    PH = P1.p1_epilogue(A, name, R, True)
    A("s_waitcnt vmcnt(0)")
    A("s_barrier")
    mstamp(1)
    zero_afr(A, 8)
    A("s_cmp_ge_u32 s22, 4"); A(f"s_cbranch_scc1 L{name}_rf")
    w0(A, f"L{name}_a1")
    P1.nonce_get(A, name, 239, 8)
    A("s_lshl_b32 s33, s24, 4"); A("s_add_u32 s33, s33, s23")
    flag_set(A, FA, 33)
    A("s_lshl_b32 s33, s24, 4")
    flag_wait(A, f"L{name}_pa", FA, 33, 16)
    A(f"s_branch L{name}_a1")
    A.raw(f"L{name}_rf:")
    A.vm = [('rl', 0), ('rl', 1)]
    A.rl_finish(0, A.rl_sc); A.rl_finish(1, A.rl_sc)
    A("s_waitcnt vmcnt(0)")
    A.raw(f"L{name}_a1:")
    A("s_waitcnt lgkmcnt(0)")
    A("s_barrier")
    mstamp(2)
    w0(A, f"L{name}_a2")
    flag_set(A, FW, 2)
    A.raw(f"L{name}_a2:")
    A.vm = []
    p2_body(A, name, PH, sc=SC[0], osc=SC[1])
    A("s_waitcnt vmcnt(0)")
    A("s_barrier")
    mstamp(3)
    w0(A, f"L{name}_a3")
    A("s_lshl_b32 s33, s23, 4"); A("s_add_u32 s33, s33, s24")
    flag_set(A, FO, 33)
    flag_wait(A, f"L{name}_pw", FW, None, 256)
    A.raw(f"L{name}_a3:")
    ids_p35(A)
    A("s_barrier")
    A("s_cmp_ge_u32 s22, 4"); A(f"s_cbranch_scc1 L{name}_H3")
    A.hist = []; A.vm = []
    p3_C_pre(A)
    w0(A, f"L{name}_a4")
    A("s_waitcnt vmcnt(0)") if False else None
    A("s_lshr_b32 s33, s23, 1"); A("s_lshl_b32 s33, s33, 4")
    flag_wait(A, f"L{name}_po", FO, 33, 16)
    A.raw(f"L{name}_a4:")
    A("s_barrier")
    mstamp(4)
    A.vm = ['x', 'x', 'x']
    p3_C(A, name)
    A("s_waitcnt vmcnt(0)")
    A("s_barrier")
    w0(A, f"L{name}_a5")
    A("s_lshl_b32 s33, s23, 3"); A("s_add_u32 s33, s33, s24")
    flag_set(A, FH, 33)
    A.raw(f"L{name}_a5:")
    P4.ids_p4(A)
    w0(A, f"L{name}_a6")
    A("s_lshl_b32 s33, s23, 4")
    flag_wait(A, f"L{name}_ph", FH, 33, 16)
    A.raw(f"L{name}_a6:")
    A("s_barrier")
    mstamp(5)
    A.hist = []; A.vm = []
    A.p4_pre_hc = lambda: None
    P4.p4_C(A, SC)
    A("s_waitcnt vmcnt(0)")
    A("s_barrier")
    w0(A, f"L{name}_a7")
    A("s_lshl_b32 s33, s23, 4"); A("s_add_u32 s33, s33, s18")
    flag_set(A, FG, 33)
    A.raw(f"L{name}_a7:")
    A("v_and_b32 v21, 15, v1"); A("v_lshrrev_b32 v3, 4, v1")
    ids_p35(A)
    w0(A, f"L{name}_a8")
    A("s_lshr_b32 s33, s23, 1"); A("s_lshl_b32 s33, s33, 4")
    flag_wait(A, f"L{name}_pg", FG, 33, 16)
    A.raw(f"L{name}_a8:")
    A("s_barrier")
    mstamp(6)
    A.hist = []; A.vm = []
    p5_C(A, name)
    A(f"s_branch L{name}_fin")
    A.raw(f"L{name}_H3:")
    A.hist = []; A.vm = []
    p3_H_dma(A)
    A("s_barrier")
    mstamp(4)
    p3_H_loop(A)
    P4.ids_p4(A)
    P4.p4_H_setup(A)
    for f in range(3):
        for fn in P4.p4_tile_dma(A, f, SC): fn()
    A("s_barrier")
    A("s_barrier")
    mstamp(5)
    A.p4_pre_var = lambda: None
    A("s_mov_b32 s44, s23"); A("s_mov_b32 s45, s24"); A("s_mov_b32 s46, s26")
    ids_p35(A); p5_H_setup(A)
    A("s_mov_b32 s23, s44"); A("s_mov_b32 s24, s45"); A("s_mov_b32 s26, s46")
    state = {'n': 0}
    def tail(f):
        rounds = {4: [0, 1, 2], 5: [3, 4]}.get(f, [])
        out = []
        for r in rounds: out += p5_round_dma(A, r)
        state['n'] += len(rounds)
        return out
    A.p4_tail_dma = tail
    P4.p4_H(A, SC, prefetched=3)
    A("s_barrier")
    for r in (5, 6):
        for f in p5_round_dma(A, r): f()
    A("s_barrier")
    mstamp(6)
    p5_H(A, 7)
    A.raw(f"L{name}_fin:")
    if stamps:
        A("s_waitcnt vmcnt(0)")
        mstamp(7); A.stamps = True
        A("v_lshlrev_b32 v0, 6, s22") if False else None
        A("v_mov_b32 v0, s22"); A("v_lshlrev_b32 v0, 6, v0")
        A.stamp_dump(8, 9, TS_OFF + kidx * 131072, 8)
    A.raw(A.endlabel + ":")
    A("s_endpgm")
    A.raw(f"L{name}_last:")
    A.raw(".fill 1024, 4, 0xbf800000")
    txt = A.text().replace("CODE_Q", str(NPF * 1024))
    return txt, kernel_desc(name, 256, 102, 256), (256, 512, 163840)
```

```python
from asmlib import *
from layout import *
from k4 import f32hex, bf16_round
from k3 import xlane_sum_g
from k1 import POS, INV, pack3, PAIRS, SLOT, NSLOT, MISC, PHT, ZP, CSA, PST, VST, AFR, L2E, table_lookup3, udiv_small, ids_p1
import math

HO = 40960
NCH = 10

def poll_flags(A, lbl, nfl, vaddr, vdat, sbase):
    A("s_mov_b32 s97, 0")
    A(f"s_mov_b64 exec, {hex((1 << nfl) - 1) if nfl <= 32 else '-1'}")
    A.raw(f"{lbl}:")
    A(f"buffer_load_dword v{vdat}, v{vaddr}, s[12:15], s{sbase} offen sc1")
    A("s_add_u32 s97, s97, 1")
    A("s_waitcnt vmcnt(0)")
    A(f"v_cmp_ne_u32 vcc, s96, v{vdat}")
    A(f"s_cmp_gt_u32 s97, 0x40000")
    A(f"s_cbranch_scc1 {lbl}_x")
    A(f"s_cbranch_vccnz {lbl}")
    A.raw(f"{lbl}_x:")
    A("s_mov_b64 exec, -1")

def nonce_publish(A, name, vt):
    A("s_cmp_lg_u32 s2, 0"); A(f"s_cbranch_scc1 L{name}_n1")
    A("s_cmp_lg_u32 s22, 0"); A(f"s_cbranch_scc1 L{name}_n1")
    A(f"v_mov_b32 v{vt}, 0"); A(f"s_mov_b32 s97, {NONCE_OFF}")
    A(f"buffer_load_dword v{vt + 1}, v{vt}, s[12:15], s97 offen sc1")
    A("s_waitcnt vmcnt(0)")
    A(f"s_mov_b32 s96, 0x9e3779b1"); A(f"v_mul_lo_u32 v{vt + 1}, v{vt + 1}, s96"); A(f"v_add_u32 v{vt + 1}, 0x7f4a7c15, v{vt + 1}")
    A(f"v_max_u32 v{vt + 1}, 1, v{vt + 1}")
    A(f"buffer_store_dword v{vt + 1}, v{vt}, s[12:15], s97 offen sc0 sc1")
    A(f"global_store_dword v{vt}, v{vt + 1}, s[98:99] sc0 sc1")
    A.raw(f"L{name}_n1:")

def nonce_get(A, name, vpre, vt):
    A(f"v_readfirstlane_b32 s96, v{vpre}")
    A("s_cmp_lg_u32 s96, 0"); A(f"s_cbranch_scc1 L{name}_n3")
    A(f"v_mov_b32 v{vt}, 0"); A("s_mov_b32 s97, 0")
    A.raw(f"L{name}_n2:")
    A(f"global_load_dword v{vt + 1}, v{vt}, s[98:99] sc1")
    A("s_add_u32 s97, s97, 1")
    A("s_waitcnt vmcnt(0)")
    A(f"v_readfirstlane_b32 s96, v{vt + 1}")
    A("s_cmp_gt_u32 s97, 0x40000"); A(f"s_cbranch_scc1 L{name}_n3")
    A("s_cmp_eq_u32 s96, 0"); A(f"s_cbranch_scc1 L{name}_n2")
    A.raw(f"L{name}_n3:")

def p1_common_setup(A):
    A("s_load_dwordx4 s[4:7], s[0:1], 0")
    A("s_load_dwordx4 s[64:67], s[0:1], 16")
    A("s_load_dwordx4 s[68:71], s[0:1], 40")
    A("s_load_dwordx2 s[72:73], s[0:1], 56")
    A("s_load_dwordx2 s[8:9], s[0:1], 80")
    A("s_load_dwordx2 s[98:99], s[0:1], 72")
    A("v_and_b32 v1, 63, v0")
    A("v_lshrrev_b32 v2, 6, v0")
    ids_p1(A)
    A("v_readfirstlane_b32 s22, v2")
    A("v_lshrrev_b32 v3, 4, v1")
    A("v_and_b32 v21, 15, v1")
    A("s_and_b32 s25, s22, 3")
    A("s_lshl_b32 s26, s23, 7"); A("s_lshl_b32 s27, s25, 5"); A("s_add_u32 s26, s26, s27"); A("s_lshr_b32 s27, s22, 2"); A("s_lshl_b32 s27, s27, 4"); A("s_add_u32 s26, s26, s27")
    A("s_and_b32 s19, s26, 127")

def p1_H(A, name, RLC=1):
    T0 = 148
    A("v_lshrrev_b32 v22, 3, v1"); A("v_and_b32 v23, 7, v1"); A("v_xor_b32 v23, v23, v22")
    A("v_mul_u32_u24 v19, 1280, v22"); A("v_lshl_add_u32 v19, v23, 4, v19")
    udiv_small(A, T0, 1, 10); A(f"v_mul_u32_u24 v{T0 + 1}, 10, v{T0}"); A(f"v_sub_u32 v{T0 + 1}, v1, v{T0 + 1}")
    A(f"v_lshlrev_b32 v{T0 + 2}, 4, v{T0 + 1}")
    A(f"v_add_u32 v{T0 + 3}, {1280 - 80}, v{T0 + 2}")
    A(f"v_cmp_gt_u32 vcc, 5, v{T0 + 1}")
    A(f"v_cndmask_b32 v{T0 + 2}, v{T0 + 3}, v{T0 + 2}, vcc")
    A(f"v_mul_u32_u24 v20, 3840, v{T0}"); A(f"v_add_u32 v20, v20, v{T0 + 2}")
    A(f"v_subrev_u32 v{T0 + 4}, 40, v1")
    A(f"v_max_i32 v{T0 + 4}, 0, v{T0 + 4}"); A(f"v_min_u32 v{T0 + 4}, 19, v{T0 + 4}")
    table_lookup3(A, T0 + 5, T0 + 4, pack3(INV), T0 + 6)
    udiv_small(A, T0 + 8, T0 + 4, 5)
    A(f"v_mul_u32_u24 v{T0 + 8}, 3840, v{T0 + 8}")
    A(f"v_lshl_add_u32 v{T0 + 8}, v{T0 + 5}, 4, v{T0 + 8}"); A(f"v_add_u32 v{T0 + 8}, 2560, v{T0 + 8}")
    A("v_cmp_gt_u32 vcc, 40, v1")
    A(f"v_cndmask_b32 v20, v{T0 + 8}, v20, vcc")
    A("s_lshl_b32 s27, s23, 7"); A("s_lshl_b32 s28, s25, 5"); A("s_add_u32 s27, s27, s28"); A("s_mul_i32 s27, s27, 1280")
    A("s_mul_i32 s28, s24, 80"); A(f"s_mul_i32 s29, s25, {16 * 3840}"); A("s_add_u32 s28, s28, s29")
    A("s_lshl_b32 s29, s25, 12")
    A("s_mul_i32 s30, s25, 3840"); A("s_add_u32 s30, s30, 16384")
    A("s_waitcnt lgkmcnt(0)")
    A("s_mov_b32 s36, s4"); A("s_mov_b32 s37, s5"); A(f"s_mov_b32 s38, {S * D * 2}"); A("s_mov_b32 s39, 0x20000")
    A("s_mov_b32 s40, s6"); A("s_mov_b32 s41, s7"); A(f"s_mov_b32 s42, {640 * 1920 * 2}"); A("s_mov_b32 s43, 0x20000")
    A("s_mov_b32 s12, s8"); A("s_mov_b32 s13, s9"); A(f"s_mov_b32 s14, {WS_USED}"); A("s_mov_b32 s15, 0x20000")
    A("s_mov_b32 s34, -1"); A("s_mov_b32 s35, 0x0fffffff")
    def chunk_dma(c):
        slot = c % NSLOT
        for b in range(4):
            A(f"s_add_u32 m0, s30, {slot * SLOT + b * 960}")
            A(f"s_add_u32 s32, s28, {c * 64 * 3840 + b * 4 * 3840}")
            A("s_mov_b64 exec, s[34:35]")
            A(f"buffer_load_dwordx4 v20, s[40:43], s32 offen lds", tag=('c', c))
            A("s_mov_b64 exec, -1")
            A(f"s_add_u32 m0, s29, {slot * SLOT + b * 1024}")
            A(f"s_add_u32 s32, s27, {c * 128 + b * 10240}")
            A(f"buffer_load_dwordx4 v19, s[36:39], s32 offen lds", tag=('c', c))
    A("s_mov_b32 s33, 0x3f803f80")
    PT = 176
    def phi_issue():
        A(f"v_subrev_u32 v{PT + 1}, 256, v0")
        A(f"v_mov_b32 v{PT}, 0")
        A(f"v_lshlrev_b32 v{PT + 2}, 2, v{PT + 1}"); A(f"v_add_u32 v{PT + 2}, {ZP}, v{PT + 2}")
        A(f"ds_write_b32 v{PT + 2}, v{PT}")
        A("s_mul_i32 s31, s24, 1600")
        for rep in range(4):
            e = 24 + 8 * rep
            A(f"v_add_u32 v{e}, {256 * rep}, v{PT + 1}"); A(f"v_min_u32 v{e}, 959, v{e}")
            udiv_small(A, e + 1, e, 24, 16)
            A(f"v_mul_u32_u24 v{e + 2}, 24, v{e + 1}"); A(f"v_sub_u32 v{e + 2}, v{e}, v{e + 2}")
            udiv_small(A, e + 3, e + 1, 20, 16)
            A(f"v_mul_u32_u24 v{e + 4}, 20, v{e + 3}"); A(f"v_sub_u32 v{e + 4}, v{e + 1}, v{e + 4}")
            A(f"v_mul_u32_u24 v{e + 5}, 800, v{e + 3}"); A(f"v_mul_u32_u24 v{e + 6}, 40, v{e + 2}")
            A(f"v_add3_u32 v{e + 5}, v{e + 5}, v{e + 6}, s31"); A(f"v_lshl_add_u32 v{e + 5}, v{e + 4}, 1, v{e + 5}")
            A(f"v_min_u32 v{e + 5}, {32 * 800 - 2}, v{e + 5}")
            A(f"global_load_ushort v{e + 6}, v{e + 5}, s[64:65]", tag='phi')
            A(f"v_lshlrev_b32 v{e}, 1, v{e}"); A(f"v_add_u32 v{e}, {PHT}, v{e}")
    R0 = 200; RAD = 216
    RLk = [152, 236]; RAk = [172, 174]; MD = ['s16', 's17']
    rl = f"L{name}_rl"
    def rl_setup(k):
        L = f"{rl}{k}"; RA = RAk[k]
        A("s_lshl_b32 s48, s2, 2"); A("s_add_u32 s48, s48, s25");
        if k: A(f"s_add_u32 s48, s48, {1024 * k}")
        A("s_mov_b32 s50, 0")
        A(f"s_cmp_ge_u32 s48, 1980"); A(f"s_cbranch_scc1 {L}_none")
        A(f"s_cmp_ge_u32 s48, 1440"); A(f"s_cbranch_scc1 {L}_n640")
        A(f"s_cmp_ge_u32 s48, 360"); A(f"s_cbranch_scc1 {L}_gu")
        A(f"s_cmp_ge_u32 s48, 200"); A(f"s_cbranch_scc1 {L}_wbar")
        A(f"s_branch {L}_n640")
        A.raw(f"{L}_gu:")
        A("s_mov_b32 s50, 1"); A("s_mov_b32 s49, 360")
        A("s_cmp_ge_u32 s48, 900"); A("s_cselect_b32 s44, s70, s68"); A("s_cselect_b32 s45, s71, s69"); A("s_cselect_b32 s51, 1024, 0"); A("s_cselect_b32 s49, 900, s49")
        A(f"s_mov_b32 s46, {640 * 1728 * 2}"); A("s_mov_b32 s47, 0x20000")
        A("s_sub_u32 s49, s48, s49"); A("s_lshl_b32 s49, s49, 6")
        A(f"v_add_u32 v{R0}, s49, v1")
        A(f"s_mov_b32 s52, {(1 << 24) // 432 + 1}")
        A(f"v_mul_lo_u32 v{R0 + 1}, v{R0}, s52"); A(f"v_lshrrev_b32 v{R0 + 1}, 24, v{R0 + 1}")
        A(f"v_mul_u32_u24 v{R0 + 2}, 432, v{R0 + 1}"); A(f"v_sub_u32 v{R0 + 2}, v{R0}, v{R0 + 2}")
        A(f"v_lshrrev_b32 v{R0 + 3}, 2, v{R0 + 1}"); A(f"v_and_b32 v{R0 + 4}, 3, v{R0 + 1}")
        udiv_small(A, R0 + 5, R0 + 3, 5); A(f"v_mul_u32_u24 v{R0 + 6}, 5, v{R0 + 5}"); A(f"v_sub_u32 v{R0 + 6}, v{R0 + 3}, v{R0 + 6}")
        A(f"v_mul_u32_u24 v{R0 + 5}, 160, v{R0 + 5}"); A(f"v_mul_u32_u24 v{R0 + 7}, 20, v{R0 + 4}"); A(f"v_add_u32 v{R0 + 5}, v{R0 + 5}, v{R0 + 7}")
        A(f"v_lshlrev_b32 v{R0 + 6}, 3, v{R0 + 6}")
        for jj in range(8):
            A(f"v_add_u32 v{R0 + 7}, {jj}, v{R0 + 6}")
            A(f"v_add_u32 v{R0 + 8}, 60, v{R0 + 7}"); A(f"v_cmp_gt_u32 vcc, 20, v{R0 + 7}"); A(f"v_cndmask_b32 v{R0 + 7}, v{R0 + 8}, v{R0 + 7}, vcc")
            A(f"v_add_u32 v{R0 + 7}, v{R0 + 7}, v{R0 + 5}")
            A(f"v_mul_u32_u24 v{R0 + 7}, 3456, v{R0 + 7}"); A(f"v_lshl_add_u32 v{RAD + jj}, v{R0 + 2}, 3, v{R0 + 7}")
        A(f"v_lshrrev_b32 v{R0 + 7}, 2, v{R0 + 2}"); A(f"v_mul_u32_u24 v{R0 + 7}, 20, v{R0 + 7}"); A(f"v_add_u32 v{R0 + 7}, v{R0 + 7}, v{R0 + 3}")
        A(f"v_lshlrev_b32 v{R0 + 7}, 11, v{R0 + 7}")
        A(f"v_and_b32 v{R0 + 8}, 3, v{R0 + 2}"); A(f"v_lshlrev_b32 v{R0 + 8}, 6, v{R0 + 8}"); A(f"v_lshl_add_u32 v{R0 + 8}, v{R0 + 4}, 8, v{R0 + 8}")
        A(f"v_add3_u32 v{RA}, v{R0 + 7}, v{R0 + 8}, s51"); A(f"v_add_u32 v{RA}, {WGU_OFF}, v{RA}")
        A(f"s_branch {L}_done")
        A.raw(f"{L}_n640:")
        A("s_mov_b32 s49, 1440"); A(f"s_mov_b32 s46, {1728 * 640 * 2}")
        A("s_cmp_lt_u32 s48, 200"); A("s_cselect_b32 s44, s66, s72"); A("s_cselect_b32 s45, s67, s73"); A("s_cselect_b32 s50, 3, 2"); A("s_cselect_b32 s49, 0, s49")
        A(f"s_cselect_b32 s46, {640 * 640 * 2}, s46"); A("s_mov_b32 s47, 0x20000")
        A("s_sub_u32 s49, s48, s49"); A("s_lshl_b32 s49, s49, 6")
        A(f"v_add_u32 v{R0}, s49, v1")
        A(f"s_mov_b32 s52, {(1 << 24) // 160 + 1}")
        A(f"v_mul_lo_u32 v{R0 + 1}, v{R0}, s52"); A(f"v_lshrrev_b32 v{R0 + 1}, 24, v{R0 + 1}")
        A(f"v_mul_u32_u24 v{R0 + 2}, 160, v{R0 + 1}"); A(f"v_sub_u32 v{R0 + 2}, v{R0}, v{R0 + 2}")
        A(f"v_lshrrev_b32 v{R0 + 3}, 2, v{R0 + 1}"); A(f"v_and_b32 v{R0 + 4}, 3, v{R0 + 1}")
        A("s_cmp_eq_u32 s50, 3"); A("s_cselect_b64 s[54:55], -1, 0")
        udiv_small(A, R0 + 5, R0 + 3, 5); A(f"v_mul_u32_u24 v{R0 + 6}, 5, v{R0 + 5}"); A(f"v_sub_u32 v{R0 + 6}, v{R0 + 3}, v{R0 + 6}")
        A(f"v_mul_u32_u24 v{R0 + 5}, 160, v{R0 + 5}"); A(f"v_mul_u32_u24 v{R0 + 7}, 10, v{R0 + 4}"); A(f"v_add_u32 v{R0 + 5}, v{R0 + 5}, v{R0 + 7}")
        A(f"v_cmp_gt_u32 s[56:57], 4, v{R0 + 6}")
        A(f"v_mul_u32_u24 v{R0 + 6}, 40, v{R0 + 6}"); A(f"v_add_u32 v{R0 + 6}, v{R0 + 6}, v{R0 + 5}")
        A(f"v_lshlrev_b32 v{R0 + 9}, 5, v{R0 + 3}"); A(f"v_lshl_add_u32 v{R0 + 9}, v{R0 + 4}, 2, v{R0 + 9}")
        for jj in range(8):
            A(f"v_add_u32 v{R0 + 7}, {jj}, v{R0 + 6}")
            A(f"v_add_u32 v{R0 + 8}, {40 * (jj >> 1) + 8 + (jj & 1)}, v{R0 + 5}")
            A(f"v_cndmask_b32 v{R0 + 7}, v{R0 + 8}, v{R0 + 7}, s[56:57]")
            A(f"v_add_u32 v{R0 + 8}, {16 * (jj >> 2) + (jj & 3)}, v{R0 + 9}")
            A(f"v_cndmask_b32 v{R0 + 7}, v{R0 + 8}, v{R0 + 7}, s[54:55]")
            A(f"v_mul_u32_u24 v{R0 + 7}, 1280, v{R0 + 7}"); A(f"v_lshl_add_u32 v{RAD + jj}, v{R0 + 2}, 3, v{R0 + 7}")
        udiv_small(A, R0 + 7, R0 + 2, 20); A(f"v_mul_u32_u24 v{R0 + 8}, 20, v{R0 + 7}"); A(f"v_sub_u32 v{R0 + 8}, v{R0 + 2}, v{R0 + 8}")
        udiv_small(A, R0 + 9, R0 + 8, 5); A(f"v_mul_u32_u24 v{R0 + 5}, 5, v{R0 + 9}"); A(f"v_sub_u32 v{R0 + 5}, v{R0 + 8}, v{R0 + 5}")
        A(f"s_mov_b32 s53, {WD_OFF}"); A("s_cmp_eq_u32 s50, 3"); A("s_cselect_b32 s52, 20, 54"); A(f"s_cselect_b32 s53, {WO_OFF}, s53")
        A(f"v_mul_lo_u32 v{R0 + 7}, v{R0 + 7}, s52"); A(f"v_add_u32 v{R0 + 7}, v{R0 + 7}, v{R0 + 3}")
        A(f"v_mul_u32_u24 v{R0 + 7}, 5, v{R0 + 7}"); A(f"v_add_u32 v{R0 + 7}, v{R0 + 7}, v{R0 + 5}"); A(f"v_lshlrev_b32 v{R0 + 7}, 10, v{R0 + 7}")
        A(f"v_lshlrev_b32 v{R0 + 8}, 8, v{R0 + 4}"); A(f"v_lshl_add_u32 v{R0 + 8}, v{R0 + 9}, 6, v{R0 + 8}")
        A(f"v_add3_u32 v{RA}, v{R0 + 7}, v{R0 + 8}, s53")
        A(f"s_branch {L}_done")
        A.raw(f"{L}_wbar:")
        A("s_mov_b32 s50, 4")
        A("s_mov_b32 s44, s66"); A("s_mov_b32 s45, s67"); A(f"s_mov_b32 s46, {640 * 640 * 2}"); A("s_mov_b32 s47, 0x20000")
        A("s_sub_u32 s49, s48, 200"); A("s_lshl_b32 s49, s49, 2")
        A(f"v_add_u32 v{R0}, s49, v3")
        A(f"v_mul_u32_u24 v{R0 + 1}, 1280, v{R0}"); A(f"v_lshl_add_u32 v{RAD}, v21, 4, v{R0 + 1}")
        for n in range(1, 8): A(f"v_mov_b32 v{RAD + n}, v{RAD}")
        udiv_small(A, R0 + 1, R0, 160); A(f"v_mul_u32_u24 v{R0 + 2}, 160, v{R0 + 1}"); A(f"v_sub_u32 v{R0 + 2}, v{R0}, v{R0 + 2}")
        udiv_small(A, R0 + 3, R0 + 2, 40); A(f"v_mul_u32_u24 v{R0 + 8}, 40, v{R0 + 3}"); A(f"v_sub_u32 v{R0 + 8}, v{R0 + 2}, v{R0 + 8}")
        udiv_small(A, R0 + 9, R0 + 8, 10); A(f"v_mul_u32_u24 v{R0 + 2}, 10, v{R0 + 9}"); A(f"v_sub_u32 v{R0 + 2}, v{R0 + 8}, v{R0 + 2}")
        A(f"v_cmp_gt_u32 vcc, 8, v{R0 + 2}")
        A(f"v_mov_b32 v{R0 + 8}, 4"); A(f"v_cndmask_b32 v{R0 + 8}, v{R0 + 8}, v{R0 + 3}, vcc")
        A(f"v_lshl_add_u32 v{R0 + 4}, v{R0 + 3}, 1, v{R0 + 2}"); A(f"v_subrev_u32 v{R0 + 4}, 8, v{R0 + 4}")
        A(f"v_cndmask_b32 v{R0 + 3}, v{R0 + 4}, v{R0 + 2}, vcc")
        A(f"v_mul_u32_u24 v{R0 + 1}, 5, v{R0 + 1}"); A(f"v_add_u32 v{R0 + 1}, v{R0 + 1}, v{R0 + 8}")
        A(f"v_lshl_add_u32 v{R0 + 1}, v{R0 + 1}, 2, v{R0 + 9}"); A(f"v_lshl_add_u32 v{R0 + 1}, v{R0 + 1}, 3, v{R0 + 3}")
        A(f"v_lshlrev_b32 v{RA}, 1, v{R0 + 1}"); A(f"v_add_u32 v{RA}, {WBAR_OFF}, v{RA}")
        A(f"s_branch {L}_done")
        A.raw(f"{L}_none:")
        A("s_mov_b32 s44, s8"); A("s_mov_b32 s45, s9"); A("s_mov_b32 s46, 4096"); A("s_mov_b32 s47, 0x20000")
        for n in range(8): A(f"v_lshlrev_b32 v{RAD + n}, 2, v1")
        A(f"v_mov_b32 v{RA}, 0")
        A.raw(f"{L}_done:")
        A(f"s_mov_b32 {MD[k]}, s50")
    def rl_issue(k):
        L = f"{rl}{k}"; RL = RLk[k]
        vmb = list(A.vm)
        A("s_cmp_eq_u32 s50, 4"); A(f"s_cbranch_scc1 {L}_i4")
        for jj in range(8): A(f"buffer_load_dwordx2 {v(RL + 2 * jj, 2)}, v{RAD + jj}, s[44:47], 0 offen")
        A(f"s_branch {L}_idone")
        A.raw(f"{L}_i4:")
        for n in range(5): A(f"buffer_load_dwordx4 {v(RL + 4 * n, 4)}, v{RAD}, s[44:47], 0 offen offset:{256 * n}")
        for n in range(3): A(f"buffer_load_dword v173, v{RAD}, s[44:47], 0 offen")
        A.raw(f"{L}_idone:")
        A.vm = vmb + [('rl', k)] * 8
    def rl_finish(k, sc):
        L = f"{rl}{k}"; RL = RLk[k]; RA = RAk[k]
        A.vm_wait(('rl', k))
        vmb = list(A.vm)
        RO = 64
        A(f"s_cmp_eq_u32 {MD[k]}, 4"); A(f"s_cbranch_scc1 {L}_wb2")
        A(f"s_cmp_eq_u32 {MD[k]}, 0"); A(f"s_cbranch_scc1 {L}_f0")
        A("s_mov_b32 s52, 0x05040100"); A("s_mov_b32 s53, 0x07060302")
        for e_ in range(4):
            for m_ in range(4):
                lo = RL + 2 * (2 * m_) + (e_ >> 1); hi = RL + 2 * (2 * m_ + 1) + (e_ >> 1)
                A(f"v_perm_b32 v{RO + 4 * e_ + m_}, v{hi}, v{lo}, s{52 + (e_ & 1)}")
        A(f"s_lshl_b32 s52, s25, 12"); A(f"s_add_u32 s52, s52, 98304")
        A(f"v_lshlrev_b32 v{RO + 16}, 6, v1"); A(f"v_add_u32 v{RO + 16}, s52, v{RO + 16}")
        for e_ in range(4): A(f"ds_write_b128 v{RO + 16}, {v(RO + 4 * e_, 4)} offset:{16 * e_}")
        A(f"v_lshrrev_b32 v{RO + 17}, 2, v1"); A(f"v_lshlrev_b32 v{RO + 17}, 2, v{RO + 17}")
        for i_ in range(4):
            A(f"v_add_u32 v{RO + 18}, {64 * i_}, v{RO + 17}")
            A(f"ds_bpermute_b32 v{RO + 20 + i_}, v{RO + 18}, v{RA}")
        A(f"v_lshlrev_b32 v{RO + 16}, 4, v1"); A(f"v_add_u32 v{RO + 16}, s52, v{RO + 16}")
        A("s_waitcnt lgkmcnt(0)")
        for i_ in range(4): A(f"ds_read_b128 {v(RO + 4 * i_, 4)}, v{RO + 16} offset:{1024 * i_}")
        A(f"v_and_b32 v{RO + 17}, 3, v1"); A(f"v_lshlrev_b32 v{RO + 17}, 4, v{RO + 17}")
        for i_ in range(4): A(f"v_add_u32 v{RO + 20 + i_}, v{RO + 20 + i_}, v{RO + 17}")
        A("s_waitcnt lgkmcnt(0)")
        for i_ in range(4):
            A(f"buffer_store_dwordx4 {v(RO + 4 * i_, 4)}, v{RO + 20 + i_}, s[12:15], 0 offen{sc}")
        A(f"s_branch {L}_fin")
        A.raw(f"{L}_wb2:")
        A(f"v_mov_b32 v{RO}, 0"); A(f"v_mov_b32 v{RO + 1}, 0")
        for n in range(20):
            A(f"v_lshlrev_b32 v{RO + 2}, 16, v{RL + n}"); A(f"v_and_b32 v{RO + 3}, 0xffff0000, v{RL + n}")
            A(f"v_add_f32 v{RO}, v{RO}, v{RO + 2}"); A(f"v_add_f32 v{RO + 1}, v{RO + 1}, v{RO + 3}")
        A(f"v_add_f32 v{RO}, v{RO}, v{RO + 1}")
        for sh in (8, 4, 2, 1):
            A(f"v_add_f32_dpp v{RO + 1}, v{RO}, v{RO} row_ror:{sh} row_mask:0xf bank_mask:0xf")
            A(f"v_mov_b32 v{RO}, v{RO + 1}")
        A(f"v_mul_f32 v{RO}, {f32hex(1.0 / 640)}, v{RO}")
        A(f"v_cvt_pk_bf16_f32 v{RO}, v{RO}, v{RO}")
        for n in range(4): A(f"buffer_store_short v{RO}, v{RA}, s[12:15], 0 offen{sc}")
        A(f"s_branch {L}_fin")
        A.raw(f"{L}_f0:")
        A(f"v_mov_b32 v{RO}, {TS_OFF + (1 << 20) - 256}")
        for n in range(4): A(f"buffer_store_dword v{RO}, v{RO}, s[12:15], 0 offen")
        A.raw(f"{L}_fin:")
        A.vm = vmb + [('rs', k)] * 4
    sc = A.rl_sc
    chunk_dma(0); chunk_dma(1)
    A.stamp(1); A.stamp(2)
    issued = 2
    for c in range(NCH):
        A.vm_wait(('c', c))
        A("s_barrier")
        if c == 0: A.stamp(3)
        while issued < min(NCH, c + 5):
            chunk_dma(issued); issued += 1
        if c == 5: phi_issue()
        if c == 6: rl_setup(0); rl_issue(0)
        if c == 7: rl_setup(1); rl_issue(1)
        if c == 8 and not getattr(A, 'nonce_c', False):
            A("v_mov_b32 v175, 0")
            A("global_load_dword v175, v175, s[98:99] sc1", tag='nz')
        if c == 9:
            A.vm_wait('phi')
            for rep in range(4):
                e = 24 + 8 * rep
                A(f"v_cmp_gt_u32 vcc, 20, v{e + 2}"); A(f"v_cndmask_b32 v{e + 6}, 0, v{e + 6}, vcc")
                A(f"ds_write_b16 v{e}, v{e + 6}")
    A("s_waitcnt lgkmcnt(0)")
    A.stamp(4)
    A("s_barrier")
    A.rl_finish = rl_finish

def p1_C(A, name):
    T0 = 148
    A("v_lshrrev_b32 v22, 2, v21"); A("v_and_b32 v23, 3, v21")
    AQ = [4, 5, 6]; AV = [[7, 8, 9], [10, 11, 12], [13, 14, 15]]; AX = [[16, 17, 18], [24, 25, 26]]; AC = [[27, 28, 29], [176, 177, 178]]
    SB = [0, 2 * SLOT, 4 * SLOT]
    A(f"v_mul_u32_u24 v4, 1920, v3"); A(f"v_mul_u32_u24 v{T0}, 160, v22"); A(f"v_mul_u32_u24 v{T0 + 1}, 40, v23")
    A(f"v_add3_u32 v4, v4, v{T0}, v{T0 + 1}"); A("v_add_u32 v4, 16384, v4")
    for b in range(3):
        if b < 2:
            A(f"v_lshrrev_b32 v{T0}, 1, v23"); A(f"v_add_u32 v{T0}, {2 * b}, v{T0}")
        else:
            A(f"v_mov_b32 v{T0}, 4")
        A(f"v_mul_u32_u24 v{T0 + 1}, 5, v22"); A(f"v_add_u32 v{T0}, v{T0}, v{T0 + 1}")
        table_lookup3(A, T0 + 2, T0, pack3(POS), T0 + 4)
        A(f"v_mul_u32_u24 v{T0}, 1920, v3"); A(f"v_mul_u32_u24 v{T0 + 1}, 80, v22")
        A(f"v_add_u32 v{T0}, v{T0}, v{T0 + 1}"); A(f"v_lshl_add_u32 v{T0}, v{T0 + 2}, 4, v{T0}")
        A(f"v_and_b32 v{T0 + 1}, 1, v23"); A(f"v_lshl_add_u32 v{T0}, v{T0 + 1}, 3, v{T0}")
        A(f"v_add_u32 v{AV[b][0]}, {16384 + 640}, v{T0}")
    A("s_lshl_b32 s29, s25, 12")
    A(f"v_lshrrev_b32 v{T0}, 3, v21"); A(f"v_and_b32 v{T0 + 1}, 7, v21"); A(f"v_xor_b32 v{T0 + 2}, v3, v{T0 + 1}")
    A(f"v_lshlrev_b32 v{T0}, 10, v{T0}"); A(f"v_lshl_add_u32 v{T0}, v{T0 + 1}, 7, v{T0}"); A(f"v_add_u32 v{T0}, s29, v{T0}")
    A(f"v_lshl_add_u32 v16, v{T0 + 2}, 4, v{T0}")
    A(f"v_xor_b32 v{T0 + 2}, 4, v{T0 + 2}"); A(f"v_lshl_add_u32 v24, v{T0 + 2}, 4, v{T0}")
    for q in range(2):
        d = AC[q][0]
        A(f"s_lshl_b32 s31, s25, 1"); A(f"s_add_u32 s31, s31, {q}")
        A("s_lshl_b32 s32, s31, 3"); A(f"v_add_u32 v{d}, s32, v4")
        for b in range(3):
            A(f"s_cmp_eq_u32 s31, {5 + b}"); A("s_cselect_b64 vcc, -1, 0")
            A(f"v_cndmask_b32 v{d}, v{d}, v{AV[b][0]}, vcc")
    for regs in [AQ] + AV + AX + AC:
        for k in (1, 2): A(f"v_add_u32 v{regs[k]}, {SB[k]}, v{regs[0]}")
    XF = 32
    WF = 48
    ACC = 112
    CF = 180
    CS = 196
    SX = 204
    GR = 212
    ONES = 220
    for k in range(4): A(f"v_mov_b32 v{ONES + k}, 0x3f803f80")
    A("s_waitcnt lgkmcnt(0)")
    A("s_mov_b32 s12, s8"); A("s_mov_b32 s13, s9"); A(f"s_mov_b32 s14, {WS_USED}"); A("s_mov_b32 s15, 0x20000")
    nonce_publish(A, name, 228)
    import os
    if not os.environ.get("FINE"): A.stamp(1); A.stamp(2)
    SBI = lambda slot: (0, slot * SLOT) if slot < 2 else ((1, (slot - 2) * SLOT) if slot < 4 else (2, 0))
    for c in range(NCH + 1):
        A("s_waitcnt lgkmcnt(0)")
        import os
        if os.environ.get("FINE") and c in (2, 4, 6, 8): A.stamp({2: 1, 4: 2, 6: 5, 8: 6}[c])
        A("s_barrier")
        if c == 0: A.stamp(3)
        if os.environ.get("FINE") and c == 8: A.stamp(7)
        if c < NCH: k, off = SBI(c % NSLOT)
        if c == 7 and getattr(A, 'nonce_c', False):
            A("v_mov_b32 v239, 0"); A("global_load_dword v239, v239, s[98:99] sc1")
        for e in range(2):
            first = (c == 1 and e == 0)
            mf = []
            if c >= 1:
                for t in range(8):
                    for a_ in range(2):
                        acc = v(ACC + (a_ * 8 + t) * 4, 4)
                        mf.append((f"v_mfma_f32_16x16x32_bf16 {acc}, {v(WF + (e * 8 + t) * 4, 4)}, {v(XF + (e * 2 + a_) * 4, 4)}, {acc if not first else 0}", ('w', t) if a_ == 1 else None))
                for q in range(2):
                    mf.append((f"v_mfma_f32_16x16x32_bf16 {v(CS + 4 * q, 4)}, {v(CF + (e * 2 + q) * 4, 4)}, {v(ONES, 4)}, {v(CS + 4 * q, 4) if not first else 0}", ('c', q)))
                for a_ in range(2):
                    x = v(XF + (e * 2 + a_) * 4, 4)
                    mf.append((f"v_mfma_f32_16x16x32_bf16 {v(SX + 4 * a_, 4)}, {v(ONES, 4)}, {x}, {v(SX + 4 * a_, 4) if not first else 0}", None))
                    mf.append((f"v_mfma_f32_16x16x32_bf16 {v(GR + 4 * a_, 4)}, {x}, {x}, {v(GR + 4 * a_, 4) if not first else 0}", ('x', a_)))
            else:
                mf = [(None, ('w', t)) for t in range(8)] + [(None, ('c', q)) for q in range(2)] + [(None, ('x', a_)) for a_ in range(2)]
            pend = []
            for txt, rel in mf:
                if txt: A(txt)
                if pend: A(pend.pop(0))
                if rel and c < NCH:
                    kind, i = rel
                    rr = []
                    if kind == 'x':
                        rr = [f"ds_read_b128 {v(XF + (e * 2 + i) * 4, 4)}, v{AX[e][k]} offset:{off + 2048 * i}"]
                    else:
                        for hf in range(2):
                            imm = off + e * 7680 + hf * 960
                            if kind == 'c': rr.append(f"ds_read_b64_tr_b16 {v(CF + (e * 2 + i) * 4 + 2 * hf, 2)}, v{AC[i][k]} offset:{imm}")
                            elif i < 5: rr.append(f"ds_read_b64_tr_b16 {v(WF + (e * 8 + i) * 4 + 2 * hf, 2)}, v{AQ[k]} offset:{imm + 8 * i}")
                            else: rr.append(f"ds_read_b64_tr_b16 {v(WF + (e * 8 + i) * 4 + 2 * hf, 2)}, v{AV[i - 5][k]} offset:{imm}")
                    A(rr[0])
                    pend += rr[1:]
            while pend: A(pend.pop(0))
    A.stamp(4)
    A(f"s_mul_i32 s31, s25, 9216"); A(f"v_lshlrev_b32 v{T0 + 80}, 4, v1"); A(f"v_add_u32 v{T0 + 80}, s31, v{T0 + 80}")
    HA = T0 + 80
    for t in range(8): A(f"ds_write_b128 v{HA}, {v(ACC + 32 + 4 * t, 4)} offset:{HO + 1024 * t}")
    A(f"ds_write_b128 v{HA}, {v(GR + 4, 4)} offset:{HO - 4096 if False else HO + 8192}") if False else None
    A(f"s_lshl_b32 s31, s25, 11"); A(f"s_add_u32 s31, s31, {HO2}"); A(f"v_lshlrev_b32 v{HA + 1}, 4, v1"); A(f"v_add_u32 v{HA + 1}, s31, v{HA + 1}")
    A(f"ds_write_b128 v{HA + 1}, {v(GR + 4, 4)}")
    A(f"ds_write_b128 v{HA + 1}, {v(SX + 4, 4)} offset:1024")
    A(f"v_lshlrev_b32 v{HA + 2}, 4, v3"); A(f"s_lshl_b32 s31, s25, 7"); A(f"s_add_u32 s31, s31, {CSA}"); A(f"v_add_u32 v{HA + 2}, s31, v{HA + 2}")
    for q in range(2):
        A(f"ds_write_b128 v{HA + 2}, {v(CS + 4 * q, 4)} offset:{64 * q}")
    return dict(ACC=ACC, SX=SX, GR=GR)

HO2 = HO + 4 * 9216

def p1_epilogue(A, name, R, fused):
    ACC, SX, GR = R['ACC'], R['SX'], R['GR']
    E = 40; ST = 32
    A(f"v_and_b32 v{ST + 1}, 3, v21")
    A(f"v_cmp_eq_u32 vcc, 1, v{ST + 1}"); A(f"v_cndmask_b32 v{ST + 2}, v{GR}, v{GR + 1}, vcc")
    A(f"v_cmp_eq_u32 vcc, 2, v{ST + 1}"); A(f"v_cndmask_b32 v{ST + 2}, v{ST + 2}, v{GR + 2}, vcc")
    A(f"v_cmp_eq_u32 vcc, 3, v{ST + 1}"); A(f"v_cndmask_b32 v{ST + 2}, v{ST + 2}, v{GR + 3}, vcc")
    A(f"v_lshrrev_b32 v{ST + 1}, 2, v21"); A(f"v_cmp_eq_u32 vcc, v{ST + 1}, v3"); A(f"v_cndmask_b32 v{ST + 2}, 0, v{ST + 2}, vcc")
    CSR = E + 4
    A(f"v_lshlrev_b32 v{E}, 4, v3"); A(f"v_add_u32 v{E}, {CSA}, v{E}")
    for t in range(8): A(f"ds_read_b128 {v(CSR + 4 * t, 4)}, v{E} offset:{64 * t}")
    xlane_sum_g(A, ST + 2, ST + 3)
    MEAN = ST; VAR = ST + 2
    A(f"v_mul_f32 v{MEAN}, {f32hex(1.0 / 640)}, v{SX}")
    A(f"v_mul_f32 v{VAR}, {f32hex(1.0 / 640)}, v{VAR}")
    A(f"v_fma_f32 v{VAR}, -v{MEAN}, v{MEAN}, v{VAR}"); A(f"v_max_f32 v{VAR}, 0, v{VAR}")
    bf16_round(A, VAR, VAR, ST + 1); A(f"v_add_f32 v{VAR}, {f32hex(1e-5)}, v{VAR}"); bf16_round(A, VAR, VAR, ST + 1)
    A(f"v_sqrt_f32 v{VAR}, v{VAR}"); bf16_round(A, VAR, VAR, ST + 1); A(f"v_rcp_f32 v{VAR}, v{VAR}")
    bf16_round(A, ST + 1, MEAN, ST + 3)
    RSTD = VAR; MB = ST + 1
    A("s_cmp_lg_u32 s24, 0"); A(f"s_cbranch_scc1 L{name}_nomean")
    A(f"v_add_u32 v{E + 1}, s26, v21"); A(f"v_lshlrev_b32 v{E + 1}, 2, v{E + 1}"); A(f"s_mov_b32 s31, {MEAN1_OFF}")
    A(f"buffer_store_dword v{MEAN}, v{E + 1}, s[12:15], s31 offen{A.rl_sc}")
    A.raw(f"L{name}_nomean:")
    PA = E + 1
    A(f"v_lshrrev_b32 v{E + 2}, 2, v21"); A(f"v_and_b32 v{E + 3}, 3, v21"); A(f"v_mul_u32_u24 v{E + 3}, 48, v{E + 3}")
    A(f"v_and_b32 v{PA}, 1, v3"); A(f"v_mul_u32_u24 v{PA}, 960, v{PA}"); A(f"v_add_u32 v{PA}, v{PA}, v{E + 3}"); A(f"v_add_u32 v{PA}, {PHT}, v{PA}")
    A(f"v_cmp_eq_u32 vcc, v{E + 2}, v3"); A(f"v_mov_b32 v{E + 3}, {ZP}"); A(f"v_cndmask_b32 v{PA}, v{E + 3}, v{PA}, vcc")
    PF = 176
    for t in range(5):
        for s_ in range(3):
            A(f"ds_read_b128 {v(PF + (t * 3 + s_) * 4, 4)}, v{PA} offset:{t * 192 + s_ * 16}")
    A("s_waitcnt lgkmcnt(15)")
    for i in range(32): A(f"v_fma_f32 v{ACC + i}, -v{MB}, v{CSR + i}, v{ACC + i}")
    for i in range(20, 32, 2): A(f"v_pk_mul_f32 {v(ACC + i, 2)}, {v(ACC + i, 2)}, {v(RSTD, 2)} op_sel_hi:[1,0]")
    QP = 76; VP = 88
    for p in range(10): A(f"v_cvt_pk_bf16_f32 v{QP + p}, v{ACC + 2 * p}, v{ACC + 2 * p + 1}")
    A(f"v_mov_b32 v{QP + 10}, 0"); A(f"v_mov_b32 v{QP + 11}, 0")
    for p in range(6): A(f"v_cvt_pk_bf16_f32 v{VP + p}, v{ACC + 20 + 2 * p}, v{ACC + 21 + 2 * p}")
    A(f"v_cmp_eq_u32 vcc, 2, v3"); A(f"v_mov_b32 v{E + 2}, 0x3f80"); A(f"v_cndmask_b32 v{E + 2}, 0, v{E + 2}, vcc")
    A(f"v_cmp_gt_u32 vcc, 2, v3"); A(f"v_cndmask_b32 v{VP + 4}, v{E + 2}, v{VP + 4}, vcc"); A(f"v_cndmask_b32 v{VP + 5}, 0, v{VP + 5}, vcc")
    A("s_waitcnt lgkmcnt(0)")
    P = ACC
    for s_ in range(3):
        for t in range(5):
            A(f"v_mfma_f32_16x16x32_bf16 {v(P + 4 * t, 4)}, {v(PF + (t * 3 + s_) * 4, 4)}, {v(QP + 4 * s_, 4)}, {v(P + 4 * t, 4) if s_ > 0 else 0}")
    A(f"v_add_u32 v{E + 2}, s19, v21")
    A(f"v_mul_u32_u24 v{E + 3}, 96, v{E + 2}"); A(f"v_lshl_add_u32 v{E + 3}, v3, 3, v{E + 3}")
    for b in range(3): A(f"ds_write_b64 v{E + 3}, {v(VP + 2 * b, 2)} offset:{VST + 32 * b}")
    MX = 94; MN = 95; SP = 96; SN = 97; TM = 98; SL = 100
    A(f"v_mul_f32 v{SL}, {f32hex(L2E)}, v{RSTD}")
    A(f"v_max3_f32 v{MX}, v{P}, v{P + 1}, v{P + 2}"); A(f"v_min3_f32 v{MN}, v{P}, v{P + 1}, v{P + 2}")
    for i in range(3, 19, 2):
        A(f"v_max3_f32 v{MX}, v{MX}, v{P + i}, v{P + i + 1}"); A(f"v_min3_f32 v{MN}, v{MN}, v{P + i}, v{P + i + 1}")
    A(f"v_max_f32 v{MX}, v{MX}, v{P + 19}"); A(f"v_min_f32 v{MN}, v{MN}, v{P + 19}")
    A(f"v_mul_f32 v{MX}, v{SL}, v{MX}"); A(f"v_mul_f32 v{MN}, v{SL}, v{MN}")
    EP = PF; EN = PF + 20
    for i in range(20):
        A(f"v_fma_f32 v{EP + i}, v{P + i}, v{SL}, -v{MX}")
        A(f"v_fma_f32 v{EN + i}, -v{P + i}, v{SL}, v{MN}")
    for i in range(20):
        A(f"v_exp_f32 v{EP + i}, v{EP + i}"); A(f"v_exp_f32 v{EN + i}, v{EN + i}")
    A(f"v_pk_add_f32 {v(SP, 2)}, {v(EP, 2)}, {v(EP + 2, 2)}"); A(f"v_pk_add_f32 {v(TM, 2)}, {v(EN, 2)}, {v(EN + 2, 2)}")
    for i in range(4, 20, 2):
        A(f"v_pk_add_f32 {v(SP, 2)}, {v(SP, 2)}, {v(EP + i, 2)}"); A(f"v_pk_add_f32 {v(TM, 2)}, {v(TM, 2)}, {v(EN + i, 2)}")
    A(f"v_add_f32 v{SP}, v{SP}, v{SP + 1}"); A(f"v_add_f32 v{TM}, v{TM}, v{TM + 1}")
    A(f"v_rcp_f32 v{SP}, v{SP}"); A(f"v_rcp_f32 v{TM}, v{TM}")
    for i in range(0, 20, 2):
        A(f"v_pk_mul_f32 {v(EP + i, 2)}, {v(EP + i, 2)}, {v(SP, 2)} op_sel_hi:[1,0]")
        A(f"v_pk_mul_f32 {v(EN + i, 2)}, {v(EN + i, 2)}, {v(TM, 2)} op_sel_hi:[1,0]")
    PH = 44
    for p in range(10): A(f"v_cvt_pk_bf16_f32 v{PH + p}, v{EP + 2 * p}, v{EP + 2 * p + 1}")
    for p in range(10): A(f"v_cvt_pk_bf16_f32 v{PH + 10 + p}, v{EN + 2 * p}, v{EN + 2 * p + 1}")
    A(f"v_mul_u32_u24 v{E + 3}, 160, v{E + 2}"); A(f"v_and_b32 v{E + 1}, 1, v3"); A(f"v_mul_u32_u24 v{E + 1}, 80, v{E + 1}")
    A(f"v_add_u32 v{E + 3}, v{E + 3}, v{E + 1}")
    A("s_mov_b32 exec_lo, 0")
    for q in range(5): A(f"ds_write_b128 v{E + 3}, {v(PH + 4 * q, 4)} offset:{PST + 16 * q}")
    A("s_mov_b64 exec, -1")
    import os
    if not os.environ.get("FINE"): A.stamp(5)
    atab = sum(a << (4 * n) for n, (a, b) in enumerate(PAIRS + [(4, 2)] * 3)); btab = sum(b << (4 * n) for n, (a, b) in enumerate(PAIRS + [(4, 2)] * 3))
    A(f"s_mov_b32 s52, 0x{atab & 0xffffffff:08x}"); A(f"s_mov_b32 s53, 0x{atab >> 32:08x}")
    A(f"s_mov_b32 s54, 0x{btab & 0xffffffff:08x}"); A(f"s_mov_b32 s55, 0x{btab >> 32:08x}")
    A("s_lshl_b32 s56, s22, 3")
    A("s_lshr_b64 s[52:53], s[52:53], s56"); A("s_lshr_b64 s[54:55], s[54:55], s56")
    E = 64
    A(f"v_lshrrev_b32 v{E}, 2, v21"); A(f"v_lshl_add_u32 v{E}, v3, 2, v{E}")
    A(f"v_and_b32 v{E + 1}, 3, v21"); A(f"v_lshlrev_b32 v{E + 1}, 3, v{E + 1}")
    A(f"v_mul_u32_u24 v{E + 2}, 160, v{E}"); A(f"v_add_u32 v{E + 2}, v{E + 2}, v{E + 1}")
    A(f"v_mul_u32_u24 v{E + 3}, 96, v{E}"); A(f"v_add_u32 v{E + 3}, v{E + 3}, v{E + 1}"); A(f"v_add_u32 v{E + 3}, {VST}, v{E + 3}")
    KA = 80; KB = 112; KD = 144
    for q in range(2):
        A(f"s_lshr_b32 s57, s52, {4 * q}"); A("s_and_b32 s57, s57, 15"); A("s_lshl_b32 s58, s57, 5")
        A(f"s_lshr_b32 s59, s54, {4 * q}"); A("s_and_b32 s59, s59, 15"); A("s_lshl_b32 s60, s59, 5")
        A(f"v_add_u32 v{E + 4 + 2 * q}, s58, v{E + 2}"); A(f"v_add_u32 v{E + 5 + 2 * q}, s60, v{E + 3}")
        o = E + 8 + q; t1 = E + 10; t2 = E + 11; t3 = E + 12; t4 = E + 13
        A(f"s_lshl_b32 s61, s57, 4"); A(f"v_lshl_add_u32 v{t1}, v3, 2, s61")
        A(f"s_lshl_b32 s61, s59, 4"); A(f"v_add_u32 v{t2}, s61, v21")
        A(f"v_cmp_le_u32 vcc, 40, v{t1}"); A(f"v_cndmask_b32 v{t3}, 0, 1, vcc")
        A(f"v_mul_u32_u24 v{t4}, 40, v{t3}"); A(f"v_sub_u32 v{t1}, v{t1}, v{t4}")
        A(f"v_mul_u32_u24 v{t4}, 20, v{t3}"); A(f"v_sub_u32 v{t4}, v{t2}, v{t4}")
        A(f"v_cmp_eq_u32 vcc, 40, v{t2}"); A(f"v_mov_b32 v{o}, 20"); A(f"v_cndmask_b32 v{t4}, v{t4}, v{o}, vcc")
        A(f"v_cmp_gt_u32 s[62:63], 20, v{t4}"); A(f"v_cmp_gt_u32 s[74:75], 40, v{t2}"); A("s_and_b64 s[62:63], s[62:63], s[74:75]"); A("s_or_b64 s[62:63], s[62:63], vcc")
        A(f"v_mul_u32_u24 v{o}, 21, v{t3}"); A(f"v_add_u32 v{o}, v{o}, v{t4}"); A(f"v_mul_u32_u24 v{o}, 160, v{o}"); A(f"v_lshl_add_u32 v{o}, v{t1}, 2, v{o}")
        A(f"v_mov_b32 v{t1}, 0x40000000"); A(f"v_cndmask_b32 v{o}, v{t1}, v{o}, s[62:63]")
        A(f"s_lshl_b32 s61, s22, 1"); A(f"s_add_u32 s61, s61, {q}"); A("s_cmp_ge_u32 s61, 13"); A("s_cselect_b64 vcc, -1, 0")
        A(f"v_cndmask_b32 v{o}, v{o}, v{t1}, vcc")
    A("s_waitcnt lgkmcnt(0)")
    A("s_barrier")
    for q in range(2):
        for sg in range(4):
            for hf in range(2):
                row = 32 * sg + 16 * hf
                A(f"ds_read_b64_tr_b16 {v(KA + (q * 4 + sg) * 4 + 2 * hf, 2)}, v{E + 4 + 2 * q} offset:{PST + row * 160}")
                A(f"ds_read_b64_tr_b16 {v(KB + (q * 4 + sg) * 4 + 2 * hf, 2)}, v{E + 5 + 2 * q} offset:{row * 96}")
    A("s_lshl_b32 s31, s24, 4"); A("s_add_u32 s31, s31, s23"); A(f"s_mul_i32 s31, s31, {SLAB_BYTES}"); A(f"s_add_u32 s31, s31, {SLAB_OFF}")
    for q in range(2):
        A(f"s_waitcnt lgkmcnt({15 if q == 0 else 0})")
        for sg in range(4):
            A(f"v_mfma_f32_16x16x32_bf16 {v(KD + 4 * q, 4)}, {v(KA + (q * 4 + sg) * 4, 4)}, {v(KB + (q * 4 + sg) * 4, 4)}, {v(KD + 4 * q, 4) if sg > 0 else 0}")
    for q in range(2):
        A(f"buffer_store_dwordx4 {v(KD + 4 * q, 4)}, v{E + 8 + q}, s[12:15], s31 offen sc0 sc1")
    return PH

def gen_p1(name="p1_kernel", stamps=False, kidx=0):
    from k2 import p2_body, zero_afr
    A = Asm(); A.endlabel = f"L{name}_end"; A.stamps = stamps; A.rl_sc = ""
    A.raw(f".globl {name}\n.p2align 8\n.type {name},@function\n{name}:")
    A("s_cmp_ge_u32 s2, 256"); A("s_cbranch_scc1 " + A.endlabel)
    A.stamp(0)
    p1_common_setup(A)
    A("s_cmp_ge_u32 s22, 4"); A(f"s_cbranch_scc1 L{name}_H")
    R = p1_C(A, name)
    A("s_waitcnt lgkmcnt(0)")
    A("s_barrier")
    A(f"s_branch L{name}_epi")
    A.raw(f"L{name}_H:")
    A.hist = []; A.vm = []
    p1_H(A, name)
    A("s_barrier")
    A(f"s_mul_i32 s31, s25, 9216"); A(f"v_lshlrev_b32 v228, 4, v1"); A(f"v_add_u32 v228, s31, v228")
    for t in range(8): A(f"ds_read_b128 {v(R['ACC'] + 4 * t, 4)}, v228 offset:{HO + 1024 * t}")
    A(f"s_lshl_b32 s31, s25, 11"); A(f"s_add_u32 s31, s31, {HO2}"); A(f"v_lshlrev_b32 v229, 4, v1"); A(f"v_add_u32 v229, s31, v229")
    A(f"ds_read_b128 {v(R['GR'], 4)}, v229")
    A(f"ds_read_b128 {v(R['SX'], 4)}, v229 offset:1024")
    A("s_waitcnt lgkmcnt(0)")
    A.raw(f"L{name}_epi:")
    A.hist = []; A.vm = []
    A("s_nop 7")
    PH = p1_epilogue(A, name, R, True)
    A("s_waitcnt vmcnt(0)")
    A("s_barrier")
    import os
    if not os.environ.get("FINE"): A.stamp(6)
    zero_afr(A, 8)
    A("s_cmp_lt_u32 s22, 4"); A(f"s_cbranch_scc1 L{name}_w")
    A("s_cmp_lg_u32 s22, 4"); A(f"s_cbranch_scc1 L{name}_rf")
    nonce_get(A, name, 175, 8)
    A("s_lshl_b32 s31, s24, 4"); A("s_add_u32 s31, s31, s23"); A("s_lshl_b32 s31, s31, 6"); A(f"s_add_u32 s31, s31, {FLAG_OFF}")
    A("v_mov_b32 v8, 0"); A("v_mov_b32 v9, s96")
    A("s_mov_b64 exec, 1")
    A("buffer_store_dword v9, v8, s[12:15], s31 offen sc0 sc1")
    A("s_mov_b64 exec, -1")
    A.raw(f"L{name}_rf:")
    A.vm = [('rl', 0), ('rl', 1)]
    A.rl_finish(0, A.rl_sc); A.rl_finish(1, A.rl_sc)
    A("s_cmp_lg_u32 s22, 4"); A(f"s_cbranch_scc1 L{name}_w")
    A("s_lshl_b32 s31, s24, 10"); A(f"s_add_u32 s31, s31, {FLAG_OFF}")
    A("v_lshlrev_b32 v8, 6, v1")
    poll_flags(A, f"L{name}_pa", 16, 8, 9, 31)
    A.raw(f"L{name}_w:")
    A("s_waitcnt lgkmcnt(0)")
    A("s_barrier")
    if not os.environ.get("FINE"): A.stamp(7)
    A.vm = []
    p2_body(A, name, PH, sc=" sc1", osc="")
    if stamps:
        A("s_waitcnt vmcnt(0)")
        A.stamp_dump(8, 9, TS_OFF + kidx * 131072, 0)
    A.raw(A.endlabel + ":")
    A("s_endpgm")
    return A.text(), kernel_desc(name, 256, 102, 256), (256, 512, 163840)
```

```python
from asmlib import *
from layout import *
from k4 import f32hex, bf16_round, K0, K1
from k3 import xlane_sum_g

NT = 7; LOOK = 4; RING = 3
STG = RING * 40960
CST = STG + 32768
LDS4 = CST + 8192

def ids_p4(A):
    A("s_and_b32 s20, s2, 7"); A("s_lshr_b32 s21, s2, 3")
    A("s_lshr_b32 s23, s20, 2"); A("s_lshl_b32 s23, s23, 3"); A("s_lshr_b32 s24, s21, 2"); A("s_add_u32 s23, s23, s24")
    A("s_and_b32 s24, s20, 3"); A("s_lshl_b32 s24, s24, 2"); A("s_and_b32 s27, s21, 3"); A("s_add_u32 s24, s24, s27")
    A("s_mov_b32 s18, s24")
    A("s_mul_i32 s24, s24, 7"); A("s_min_u32 s24, s24, 101")
    A("s_lshl_b32 s26, s23, 7"); A("s_lshl_b32 s27, s25, 5"); A("s_add_u32 s26, s26, s27")

def var_load(A, vt, sc, addr_done=False):
    A(f"v_add_u32 v14, s26, v21"); A(f"v_lshlrev_b32 v14, 2, v14"); A(f"v_lshl_add_u32 v14, v3, 14, v14")
    A(f"s_mov_b32 s34, {VARP_OFF}"); A(f"s_mov_b32 s33, {VARP_OFF + 8192}")
    for a_ in range(2):
        A(f"buffer_load_dword v{vt + 2 * a_}, v14, s[12:15], s34 offen offset:{64 * a_}{sc}", tag='var')
        A(f"buffer_load_dword v{vt + 2 * a_ + 1}, v14, s[12:15], s33 offen offset:{64 * a_}{sc}", tag='var')

def var_consts(A, vt, C0, C1, IR):
    A.vm_wait('var')
    for a_ in range(2):
        b = vt + 4 + 4 * a_
        A(f"v_add_f32 v{b}, v{vt + 2 * a_}, v{vt + 2 * a_ + 1}")
        xlane_sum_g(A, b, b + 1)
        A(f"v_mul_f32 v{b}, {f32hex(1.0 / 640)}, v{b}")
        bf16_round(A, b, b, b + 1)
        A(f"v_add_f32 v{b}, {f32hex(1e-5)}, v{b}")
        bf16_round(A, b, b, b + 1)
        A(f"v_sqrt_f32 v{b}, v{b}")
        bf16_round(A, b, b, b + 1)
        A(f"v_mul_f32 v{IR[a_]}, v{b}, v{b}")
        A(f"v_rcp_f32 v{b + 1}, v{b}")
        A(f"v_mul_f32 v{C0[a_]}, {f32hex(K0)}, v{b + 1}")
        A(f"v_mul_f32 v{b + 3}, v{b + 1}, v{b + 1}")
        A(f"v_mul_f32 v{b + 3}, v{b + 3}, v{b + 1}")
        A(f"v_mul_f32 v{C1[a_]}, {f32hex(K1)}, v{b + 3}")

def gelu_ops(A, f, gbase, T, C0, C1, IR, vlane8, sc, TQ=None, TY=None, TO=None):
    ops = []
    def add(txt, tag=None): ops.append(lambda txt=txt, tag=tag: A(txt, tag=tag))
    add(f"s_add_u32 s37, s24, {f}"); add("s_lshr_b32 s36, s37, 1"); add("s_lshl_b32 s36, s36, 10"); add("s_and_b32 s37, s37, 1")
    add("s_lshl_b32 s37, s37, 9"); add("s_add_u32 s36, s36, s37"); add("s_add_u32 s36, s36, s35"); add(f"s_add_u32 s37, s36, {54 * 1024}")
    for a_ in range(2):
        gb, ub = gbase(a_)
        tq = [(TQ if TQ is not None else T) + r for r in range(4)]; ty = [(TY if TY is not None else T + 4) + r for r in range(4)]
        for r in range(4): add(f"v_mul_f32 v{tq[r]}, v{gb + r}, v{gb + r}")
        for r in range(0, 4, 2): add(f"v_pk_mul_f32 {v(ty[r], 2)}, {v(gb + r, 2)}, {v(ub + r, 2)}")
        for r in range(4): add(f"v_fma_f32 v{tq[r]}, v{tq[r]}, v{C1[a_]}, v{C0[a_]}")
        for r in range(0, 4, 2): add(f"v_pk_mul_f32 {v(tq[r], 2)}, {v(tq[r], 2)}, {v(gb + r, 2)}")
        for r in range(4): add(f"v_exp_f32 v{tq[r]}, v{tq[r]}")
        for r in range(4): add(f"v_fma_f32 v{tq[r]}, v{tq[r]}, v{IR[a_]}, v{IR[a_]}")
        for r in range(4): add(f"v_rcp_f32 v{tq[r]}, v{tq[r]}")
        for r in range(0, 4, 2): add(f"v_pk_mul_f32 {v(ty[r], 2)}, {v(ty[r], 2)}, {v(tq[r], 2)}")
        o = (T + 8 + 2 * a_) if TO is None else TO[a_]
        add(f"v_cvt_pk_bf16_f32 v{o}, v{ty[0]}, v{ty[1]}")
        add(f"v_cvt_pk_bf16_f32 v{o + 1}, v{ty[2]}, v{ty[3]}")
        add(f"buffer_store_dwordx2 {v(o, 2)}, v{vlane8}, s[12:15], s{36 + a_} offen{sc[1]}", tag=('st', f))
    return ops

def act_base(A):
    A("s_lshr_b32 s35, s26, 4"); A(f"s_mul_i32 s35, s35, {54 * 1024}"); A(f"s_add_u32 s35, s35, {ACT_OFF}")

def p4_tile_dma(A, f, sc):
    slot = f % RING
    out = []
    for n in range(10):
        def fn(n=n):
            if n % 4 == 0:
                A(f"s_add_u32 m0, s29, {slot * 40960 + n * 1024}")
                A(f"s_add_u32 s32, s28, {f * 40960 + n * 1024}")
            A(f"buffer_load_dwordx4 v3x, s[12:15], s32 offen offset:{(n % 4) * 1024}{sc[0]} lds".replace("v3x", "v4"), tag=('w', f))
        out.append(fn)
    return out

def p4_H_setup(A):
    A("v_lshlrev_b32 v4, 4, v1")
    A("s_mul_i32 s28, s24, 40960"); A("s_mul_i32 s29, s25, 10240"); A("s_add_u32 s28, s28, s29"); A(f"s_add_u32 s28, s28, {WGU_OFF}")

def interleave(main, side, every):
    side = list(side)
    for i, fn in enumerate(main):
        fn()
        if side and i % every == every - 1: side.pop(0)()
    while side: side.pop(0)()

def p4_H(A, sc, prefetched=0):
    VT = 24; C0 = [40, 43]; C1 = [41, 44]; IR = [42, 45]; SR = 48; T = 64
    if prefetched < 1:
        for fn in p4_tile_dma(A, 0, sc): fn()
    act_base(A)
    A(f"s_lshl_b32 s30, s25, 12"); A(f"v_add_u32 v5, s30, v4"); A(f"v_add_u32 v5, {STG}, v5")
    A.p4_pre_var()
    var_load(A, VT, sc[0])
    A.vm_wait(('w', 0))
    A("s_barrier")
    for f in range(max(prefetched, 1), 3):
        for fn in p4_tile_dma(A, f, sc): fn()
    var_consts(A, VT, C0, C1, IR)
    A(f"s_lshl_b32 s30, s25, 11"); A(f"s_add_u32 s30, s30, {CST}"); A(f"v_add_u32 v6, s30, v4")
    A("ds_write_b128 v6, v[40:43]"); A("ds_write_b128 v6, v[44:47] offset:1024")
    for f in range(NT - 1):
        A.vm_wait(('w', f + 1))
        A("s_waitcnt lgkmcnt(0)")
        A("s_barrier")
        dma = p4_tile_dma(A, f + 3, sc) if f + 3 < NT else list(A.p4_tail_dma(f))
        for fn in dma: fn()

def p4_C(A, sc):
    HB = 16; AF = 176; ACC = 216; T = 240
    A("v_lshlrev_b32 v4, 4, v1"); A("v_add_u32 v5, 40960, v4"); A("v_add_u32 v6, 81920, v4")
    A("v_lshlrev_b32 v7, 3, v1")
    A("s_lshr_b32 s38, s26, 4"); A("s_mul_i32 s38, s38, 20480"); A(f"s_add_u32 s38, s38, {HC_OFF}")
    A.p4_pre_hc()
    A("s_add_u32 s39, s38, 20480")
    def hc_load(s_):
        for a_ in range(2):
            if s_ % 4 == 0 and s_ > 0: A(f"s_add_u32 s{38 + a_}, s{38 + a_}, 4096")
            if s_ % 5 == 2:
                A(f"buffer_load_dwordx2 {v(HB + (a_ * 20 + s_) * 4, 2)}, v7, s[12:15], s{38 + a_} offen offset:{(s_ % 4) * 1024}{sc[0]}", tag=('h', s_))
                A(f"buffer_load_dwordx2 {v(HB + (a_ * 20 + s_) * 4 + 2, 2)}, v7, s[12:15], s{38 + a_} offen offset:{(s_ % 4) * 1024 + 512}{sc[0]}", tag=('h', s_))
            else:
                A(f"buffer_load_dwordx4 {v(HB + (a_ * 20 + s_) * 4, 4)}, v4, s[12:15], s{38 + a_} offen offset:{(s_ % 4) * 1024}{sc[0]}", tag=('h', s_))
    HA = 6
    for s_ in range(HA): hc_load(s_)
    act_base(A)
    import os
    if not os.environ.get("FINE4"): A.stamp(1)
    A("s_barrier")
    if not os.environ.get("FINE4"): A.stamp(2)
    bases = [4, 5, 6]
    total = NT * 20
    C0 = [8, 11]; C1 = [9, 12]; IR = [10, 13]
    NB = LOOK + 1
    A(f"s_lshl_b32 s30, s25, 11"); A(f"s_add_u32 s30, s30, {CST}"); A(f"v_add_u32 v14, s30, v4")
    def rd1(sig, gu):
        f, s_ = divmod(sig, 20)
        k = (sig % NB) * 2 + gu
        A(f"ds_read_b128 {v(AF + k * 4, 4)}, v{bases[f % RING]} offset:{s_ * 2048 + gu * 1024}")
    for sig in range(LOOK): rd1(sig, 0); rd1(sig, 1)
    A(f"s_waitcnt lgkmcnt({2 * (LOOK - 1)})")
    epi = []
    TE = 248
    for sig in range(total):
        f, s_ = divmod(sig, 20)
        p = f % 2
        if f == 3 and s_ == 0: A.stamp(3)
        if f == 0:
            A.vm_wait(('h', s_))
        bar = (s_ == 20 - LOOK) and f + 1 < NT
        if bar:
            A("s_waitcnt lgkmcnt(0)")
            A("s_barrier")
        if f == 0 and s_ == 17:
            A("ds_read_b128 v[8:11], v14"); A("ds_read_b64 v[12:13], v14 offset:1024")
        if f >= 1 and s_ == 0:
            pp = (f - 1) % 2
            epi = gelu_ops(A, f - 1, lambda a_: (ACC + pp * 16 + a_ * 8, ACC + pp * 16 + a_ * 8 + 4), 0, C0, C1, IR, 7, sc, TQ=TE, TY=TE + 4, TO=(2, 14))
        k = (sig % NB) * 2
        side = []
        if sig + LOOK < total: side += [lambda: rd1(sig + LOOK, 0), lambda: rd1(sig + LOOK, 1)]
        if f == 0 and s_ + HA < 20: side.append(lambda: hc_load(s_ + HA))
        if sig + 1 < total and not (20 - LOOK <= s_ < 19 and f + 1 < NT):
            nlater = 2 * (min(total, sig + LOOK + 1) - (sig + 2))
            side.append(lambda nlater=nlater: A(f"s_waitcnt lgkmcnt({min(15, max(0, nlater))})"))
        order = [(0, 0), (1, 0), (0, 1), (1, 1)]
        for i, (a_, gu) in enumerate(order):
            acc = ACC + p * 16 + a_ * 8 + gu * 4
            A(f"v_mfma_f32_16x16x32_bf16 {v(acc, 4)}, {v(AF + (k + gu) * 4, 4)}, {v(HB + (a_ * 20 + s_) * 4, 4)}, {v(acc, 4) if s_ > 0 else 0}")
            if side: side.pop(0)()
            if epi and s_ >= 1: epi.pop(0)()
            if epi and s_ >= 1 and i == 3 and len(epi) > 4 * (19 - s_): epi.pop(0)()
        while side: side.pop(0)()
        if s_ == 19:
            while epi: epi.pop(0)()
    A.stamp(4)
    p = (NT - 1) % 2
    for fn in gelu_ops(A, NT - 1, lambda a_: (ACC + p * 16 + a_ * 8, ACC + p * 16 + a_ * 8 + 4), AF, C0, C1, IR, 7, sc): fn()

def gen_p4(name="p4_kernel", stamps=False, kidx=3):
    A = Asm(); A.endlabel = f"L{name}_end"; A.stamps = stamps
    A.p4_pre_var = lambda: None; A.p4_pre_hc = lambda: None; A.p4_tail_dma = lambda f: []
    A.raw(f".globl {name}\n.p2align 8\n.type {name},@function\n{name}:")
    A("s_cmp_ge_u32 s2, 256"); A("s_cbranch_scc1 " + A.endlabel)
    A.stamp(0)
    A("s_load_dwordx2 s[8:9], s[0:1], 80")
    A("v_and_b32 v1, 63, v0"); A("v_lshrrev_b32 v2, 6, v0")
    A("v_readfirstlane_b32 s22, v2"); A("v_lshrrev_b32 v3, 4, v1"); A("v_and_b32 v21, 15, v1")
    A("s_and_b32 s25, s22, 3")
    ids_p4(A)
    A("s_waitcnt lgkmcnt(0)")
    A("s_mov_b32 s12, s8"); A("s_mov_b32 s13, s9"); A(f"s_mov_b32 s14, {WS_USED}"); A("s_mov_b32 s15, 0x20000")
    sc = ("", "")
    A("s_cmp_ge_u32 s22, 4"); A(f"s_cbranch_scc1 L{name}_H")
    p4_C(A, sc)
    A(f"s_branch L{name}_fin")
    A.raw(f"L{name}_H:")
    A.hist = []; A.vm = []
    p4_H_setup(A)
    A.stamp(1); A.stamp(2); A.stamp(3); A.stamp(4)
    p4_H(A, sc)
    A.raw(f"L{name}_fin:")
    if stamps:
        A("s_waitcnt vmcnt(0)")
        import os
        if not os.environ.get("FINE4"): A.stamp(5)
        A.stamp_dump(8, 9, TS_OFF + kidx * 131072, 0)
    A.raw(A.endlabel + ":")
    A("s_endpgm")
    return A.text(), kernel_desc(name, 256, 102, 256), (256, 512, LDS4)
```

```python
import re

REG_RE = re.compile(r'\b([vas])(\d+)\b|\b([vas])\[(\d+):(\d+)\]|\b(vcc|exec|m0|scc)\b')

def regs_of(op):
    out = set()
    for m in REG_RE.finditer(op):
        if m.group(1):
            out.add((m.group(1), int(m.group(2))))
        elif m.group(3):
            for i in range(int(m.group(4)), int(m.group(5)) + 1):
                out.add((m.group(3), i))
        else:
            n = m.group(6)
            if n == 'vcc':
                out.add(('vcc', 0))
            elif n == 'exec':
                out.add(('exec', 0))
            elif n == 'm0':
                out.add(('m0', 0))
    return out

TRANS = ('v_exp_f32', 'v_log_f32', 'v_rcp_f32', 'v_rsq_f32', 'v_sqrt_f32', 'v_sin_f32', 'v_cos_f32')

def split_ops(s):
    out, depth, cur = [], 0, ''
    for ch in s:
        if ch == '[': depth += 1
        if ch == ']': depth -= 1
        if ch == ',' and depth == 0:
            out.append(cur.strip()); cur = ''
        else:
            cur += ch
    if cur.strip(): out.append(cur.strip())
    return out

class Ins:
    __slots__ = ('text', 'mn', 'kind', 'dst', 'src', 'srcc', 'states', 'wide_store', 'mfma_passes', 'lds_dma', 'sgpr_src_vmem')

def classify(text):
    t = text.split(';')[0].strip()
    parts = t.split(None, 1)
    mn = parts[0]
    rest = parts[1] if len(parts) > 1 else ''
    ops = split_ops(rest)
    I = Ins(); I.text = text; I.mn = mn; I.dst = set(); I.src = set(); I.srcc = set(); I.states = 1
    I.wide_store = False; I.mfma_passes = 0; I.lds_dma = False
    def R(i): return regs_of(ops[i]) if i < len(ops) else set()
    allsrc = lambda a: set().union(*[R(i) for i in range(a, len(ops))]) if len(ops) > a else set()
    if mn.startswith('v_mfma'):
        I.kind = 'mfma'; I.dst = R(0); I.src = R(1) | R(2); I.srcc = R(3)
        I.mfma_passes = 8 if '32x32' in mn else 4
    elif mn.startswith('v_cmp'):
        I.kind = 'valu'; I.dst = R(0); I.src = allsrc(1)
        if mn.startswith('v_cmpx'): I.dst |= {('exec', 0)}
    elif mn in ('v_readfirstlane_b32', 'v_readlane_b32'):
        I.kind = 'valu'; I.dst = R(0); I.src = allsrc(1)
    elif mn.startswith('v_permlane') and 'swap' in mn:
        I.kind = 'valu'; I.dst = R(0) | R(1); I.src = R(0) | R(1)
    elif mn.startswith('v_'):
        I.kind = 'valu'; I.dst = R(0); I.src = allsrc(1)
        if mn.startswith(('v_fmac', 'v_mac', 'v_dot2c', 'v_pk_fmac', 'v_writelane')): I.src |= R(0)
        if mn.startswith(('v_add_co', 'v_sub_co', 'v_addc_co', 'v_subb_co', 'v_subrev_co')):
            I.dst |= R(1); I.src = allsrc(2)
        if mn.startswith('v_cndmask') and len(ops) == 3: I.src |= {('vcc', 0)}
    elif mn.startswith(('buffer_load', 'global_load')):
        I.kind = 'vmem'
        if ' lds' in (' ' + rest) or '_lds_' in mn:
            I.lds_dma = True; I.src = allsrc(0) | {('m0', 0)}
        else:
            I.dst = R(0); I.src = allsrc(1)
    elif mn.startswith(('buffer_store', 'global_store')):
        I.kind = 'vmem'; I.src = allsrc(0)
        if 'x4' in mn or 'x3' in mn:
            I.wide_store = True
            I.srcc = R(0) if mn.startswith('buffer') else R(1)
    elif mn.startswith(('buffer_atomic', 'global_atomic')):
        I.kind = 'vmem'; I.src = allsrc(0)
        if 'sc0' in rest:
            I.dst = R(0)
    elif mn.startswith(('buffer_inv', 'buffer_wbl2')):
        I.kind = 'vmem'
    elif mn.startswith('ds_read') or mn.startswith('ds_bpermute') or mn.startswith('ds_swizzle') or mn.startswith('ds_permute'):
        I.kind = 'ds'; I.dst = R(0); I.src = allsrc(1)
    elif mn.startswith('ds_'):
        I.kind = 'ds'; I.src = allsrc(0)
    elif mn == 's_nop':
        I.kind = 'nop'; I.states = int(ops[0], 0) + 1
    elif mn.startswith(('s_waitcnt', 's_barrier', 's_endpgm', 's_branch', 's_cbranch', 's_setprio', 's_sleep', 's_set_gpr_idx_off')):
        I.kind = 'sctl'
    elif mn.startswith(('s_cmp', 's_bitcmp')):
        I.kind = 'salu'; I.src = allsrc(0)
    elif mn.startswith(('s_load', 's_memtime', 's_memrealtime', 's_buffer_load')):
        I.kind = 'smem'; I.dst = R(0); I.src = allsrc(1)
    elif mn.startswith('s_set_gpr_idx_on'):
        I.kind = 'salu'; I.src = R(0); I.dst = {('m0', 0)}
    elif mn.startswith('s_'):
        I.kind = 'salu'; I.dst = R(0); I.src = allsrc(1)
        if 'saveexec' in mn: I.dst |= {('exec', 0)}
    else:
        raise ValueError("unknown instr: " + text)
    return I

def isv(r): return r[0] in ('v', 'a')
def iss(r): return r[0] in ('s', 'vcc')

class Asm:
    def __init__(self):
        self.lines = []
        self.hist = []
        self.vm = []
        self.nops = 0
    def raw(self, s):
        self.lines.append(s)
    def comment(self, s):
        self.lines.append("  ; " + s)
    def label(self, name, reset=True):
        self.lines.append(name + ":")
    def need(self, I):
        need = 0
        dist = 0
        for P in reversed(self.hist):
            req = 0
            Iv_src = {r for r in (I.src | I.srcc) if isv(r)}
            Iv_dst = {r for r in I.dst if isv(r)}
            Pv_dst = {r for r in P.dst if isv(r)}
            Ps_dst = {r for r in P.dst if iss(r)}
            Is_src = {r for r in I.src if iss(r)}
            if P.kind == 'valu':
                if I.kind == 'mfma' and (Pv_dst & Iv_src): req = max(req, 2)
                if I.kind == 'vmem' and (Ps_dst & Is_src): req = max(req, 5)
                if I.kind == 'valu':
                    if I.mn in ('v_readlane_b32', 'v_readfirstlane_b32') and (Pv_dst & Iv_src): req = max(req, 1)
                    if (Ps_dst & Is_src):
                        req = max(req, 4 if I.mn in ('v_readlane_b32', 'v_writelane_b32') else 2)
                    if (I.mn.startswith('v_permlane') or 'dpp' in I.text or 'row_' in I.text or 'quad_perm' in I.text) and (Pv_dst & Iv_src): req = max(req, 2)
                    if P.mn in TRANS and (Pv_dst & Iv_src) and I.mn not in TRANS: req = max(req, 1)
                    if P.mn in TRANS and (Pv_dst & Iv_src): req = max(req, 1)
                    if ('exec', 0) in P.dst and (I.mn.startswith(('v_readlane', 'v_readfirstlane', 'v_writelane', 'v_permlane'))): req = max(req, 4)
                    if ('op_sel' in P.text or 'sdwa' in P.text) and (Pv_dst & (Iv_src | Iv_dst)): req = max(req, 1)
                if I.kind == 'salu' and (Ps_dst & Is_src): req = max(req, 4)
                if I.kind in ('mfma',) and ('exec', 0) in P.dst: req = max(req, 4)
                if I.kind in ('vmem', 'ds') and P.mn in TRANS and (Pv_dst & Iv_src): req = max(req, 1)
            if P.kind == 'mfma':
                p4 = P.mfma_passes == 4
                if I.kind == 'mfma':
                    if Pv_dst & {r for r in I.srcc}:
                        if not (I.srcc == P.dst and I.mfma_passes == P.mfma_passes): req = max(req, 6 if p4 else 10)
                    if Pv_dst & {r for r in I.src}: req = max(req, 8 if p4 else 12)
                elif I.kind in ('valu', 'vmem', 'ds'):
                    if Pv_dst & (Iv_src | Iv_dst): req = max(req, 8 if p4 else 12)
                    if I.kind == 'valu' and ({r for r in P.srcc} & Iv_dst): req = max(req, 3 if p4 else 7)
                    if I.kind in ('vmem', 'ds') and ({r for r in P.srcc} & Iv_dst): req = max(req, 3 if p4 else 7)
            if P.kind == 'vmem' and P.wide_store:
                if (P.srcc & Iv_dst): req = max(req, 2 if I.kind == 'valu' else 1)
            if P.kind == 'salu' and ('m0', 0) in P.dst and (I.lds_dma or I.mn.startswith('s_movrel') or 'addtid' in I.mn): req = max(req, 1)
            if P.kind == 'salu' and ('m0', 0) in P.dst and P.mn.startswith('s_set_gpr_idx_on') and I.kind == 'valu': req = max(req, 0)
            if req > dist: need = max(need, req - dist)
            dist += P.states
            if dist > 16: break
        return need
    def __call__(self, text, tag=None):
        I = classify(text)
        n = self.need(I)
        while n > 0:
            k = min(n, 16)
            self.lines.append(f"  s_nop {k - 1}")
            N = classify(f"s_nop {k - 1}"); self.hist.append(N); self.nops += 1
            n -= k
        self.lines.append("  " + text)
        self.hist.append(I)
        if len(self.hist) > 40: self.hist = self.hist[-40:]
        if I.kind == 'vmem' and not I.mn.startswith(('buffer_inv', 'buffer_wbl2')):
            self.vm.append(tag)
    def vm_wait(self, tags, extra=''):
        if not isinstance(tags, (list, set)): tags = [tags]
        last = -1
        for i, t in enumerate(self.vm):
            if t in tags: last = i
        assert last >= 0, f"vm_wait: no op with tags {tags}"
        n = len(self.vm) - 1 - last
        assert n <= 63, n
        self(f"s_waitcnt vmcnt({n}){extra}")
        return n
    def stamp(self, k):
        if not getattr(self, 'stamps', False): return
        self(f"s_memtime s[{80 + 2 * k}:{81 + 2 * k}]")
        self("s_waitcnt lgkmcnt(0)")
        self.nstamp = max(getattr(self, 'nstamp', 0), k + 1)
    def stamp_dump(self, ws_lo, ws_hi, off, vtmp=0):
        if not getattr(self, 'stamps', False): return
        t = vtmp
        self(f"v_lshrrev_b32 v{t + 8}, 6, v0")
        self(f"s_lshl_b32 s79, s2, 4")
        self(f"v_add_u32 v{t + 8}, s79, v{t + 8}")
        self(f"v_lshlrev_b32 v{t + 8}, 5, v{t + 8}")
        self(f"v_add_u32 v{t + 8}, {off}, v{t + 8}")
        for k in range(8):
            if k < self.nstamp: self(f"v_mov_b32 v{t + k}, s{80 + 2 * k}")
            else: self(f"v_mov_b32 v{t + k}, 0")
        self(f"global_store_dwordx4 v{t + 8}, v[{t}:{t + 3}], s[{ws_lo}:{ws_hi}]")
        self(f"global_store_dwordx4 v{t + 8}, v[{t + 4}:{t + 7}], s[{ws_lo}:{ws_hi}] offset:16")
    def flush_hist(self, states=20):
        pass
    def text(self):
        return "\n".join(self.lines) + "\n"

def v(i, n=1): return f"v{i}" if n == 1 else f"v[{i}:{i + n - 1}]"
def a(i, n=1): return f"a{i}" if n == 1 else f"a[{i}:{i + n - 1}]"
def s(i, n=1): return f"s{i}" if n == 1 else f"s[{i}:{i + n - 1}]"

def kernel_desc(name, vgpr, sgpr, accum, extra=()):
    return "\n".join([".p2align 6", f".amdhsa_kernel {name}", f"  .amdhsa_next_free_vgpr {vgpr}", f"  .amdhsa_next_free_sgpr {sgpr}",
        f"  .amdhsa_accum_offset {accum}", "  .amdhsa_group_segment_fixed_size 0", "  .amdhsa_kernarg_size 88", "  .amdhsa_user_sgpr_count 2",
        "  .amdhsa_user_sgpr_kernarg_segment_ptr 1", "  .amdhsa_system_sgpr_workgroup_id_x 1"] + list(extra) + [".end_amdhsa_kernel"]) + "\n"
```

```python
from asmlib import *
from layout import *

def prologue_common(A, nwg=256):
    A(f"s_cmp_ge_u32 s2, {nwg}")
    A("s_cbranch_scc1 " + A.endlabel)

def gen_k5(name="k5_kernel", stamps=False, kidx=4, AHEAD=4, RING=6):
    A = Asm(); A.endlabel = f"L{name}_end"; A.stamps = stamps
    A.raw(f".globl {name}\n.p2align 8\n.type {name},@function\n{name}:")
    prologue_common(A)
    A.stamp(0)
    A("s_load_dwordx2 s[4:5], s[0:1], 64")
    A("s_load_dwordx2 s[8:9], s[0:1], 80")
    A("v_and_b32 v1, 63, v0")
    A("v_lshrrev_b32 v2, 6, v0")
    A("s_and_b32 s20, s2, 7")
    A("s_lshr_b32 s21, s2, 3")
    A("v_readfirstlane_b32 s22, v2")
    A("s_lshr_b32 s23, s20, 1")
    A("s_lshl_b32 s23, s23, 3")
    A("s_lshr_b32 s24, s21, 2")
    A("s_add_u32 s23, s23, s24")
    A("s_and_b32 s24, s20, 1")
    A("s_lshl_b32 s24, s24, 2")
    A("s_and_b32 s25, s21, 3")
    A("s_add_u32 s24, s24, s25")
    A("v_lshlrev_b32 v3, 4, v1")
    A("v_add_u32 v4, 61440, v3")
    A("v_add_u32 v5, 122880, v3")
    A("s_lshl_b32 s26, s23, 2")
    A("s_add_u32 s26, s26, s22")
    A(f"s_mul_i32 s27, s26, {54 * 1024}")
    A(f"s_add_u32 s27, s27, {ACT_OFF}")
    A(f"s_mul_i32 s28, s24, {54 * 5120}")
    A("s_mul_i32 s29, s22, 5120")
    A("s_add_u32 s28, s28, s29")
    A(f"s_add_u32 s28, s28, {WD_OFF}")
    A("s_waitcnt lgkmcnt(0)")
    A("s_mov_b32 s12, s8"); A("s_mov_b32 s13, s9"); A(f"s_mov_b32 s14, {WS_USED}"); A("s_mov_b32 s15, 0x20000")
    NR = 14
    BREG = 16
    AFR = BREG + RING * 16
    ACC = AFR + 80
    HREG = ACC + 20
    NV = HREG + 10
    def round_loads(r):
        slot = r % RING
        out = []
        def dma(t):
            def f():
                if t == 0: A(f"s_add_u32 m0, s29, {slot * 20480}")
                if t == 4:
                    A(f"s_add_u32 m0, s29, {slot * 20480 + 4096}")
                    A("s_add_u32 s32, s28, 4096")
                    A(f"buffer_load_dwordx4 v3, s[12:15], s32 offen lds", tag=('r', r))
                    A("s_add_u32 s28, s28, 20480")
                else:
                    A(f"buffer_load_dwordx4 v3, s[12:15], s28 offen offset:{t * 1024} lds", tag=('r', r))
            return f
        def bl(i):
            def f():
                b = BREG + (slot * 4 + i) * 4
                A(f"buffer_load_dwordx4 {v(b, 4)}, v3, s[12:15], s27 offen offset:{i * 1024}", tag=('r', r))
                if i == 3 or 4 * r + i == 53: A("s_add_u32 s27, s27, 4096")
            return f
        for t in range(5): out.append(dma(t))
        for i in range(4):
            if 4 * r + i < 54: out.append(bl(i))
        return out
    for r in range(AHEAD):
        for f in round_loads(r): f()
    A("s_mov_b32 s16, s4"); A("s_mov_b32 s17, s5"); A(f"s_mov_b32 s18, {S * D * 2}"); A("s_mov_b32 s19, 0x20000")
    A("v_and_b32 v6, 15, v1")
    A("v_lshrrev_b32 v7, 4, v1")
    A("s_lshl_b32 s30, s26, 4")
    A("v_add_u32 v6, s30, v6")
    A("v_mul_u32_u24 v6, 1280, v6")
    A("v_mul_u32_u24 v7, 40, v7")
    A("s_mul_i32 s31, s24, 160")
    A("v_add3_u32 v6, v6, v7, s31")
    for i in range(20): A(f"v_mov_b32 v{ACC + i}, 0")
    A.stamp(1)
    for r in range(NR):
        slot = r % RING
        A.vm_wait(('r', r))
        A("s_barrier")
        if r == 0: A.stamp(2)
        if r == 5: A.stamp(3)
        if r == 10: A.stamp(4)
        if r == 12: A.stamp(5)
        pend = round_loads(r + AHEAD) if r + AHEAD < NR else []
        if r == NR - AHEAD:
            def hl():
                A(f"s_mov_b32 s33, {H_OFF}")
                A(f"buffer_load_dwordx4 {v(HREG, 4)}, v6, s[12:15], s33 offen", tag='h')
                A(f"buffer_load_dwordx4 {v(HREG + 4, 4)}, v6, s[12:15], s33 offen offset:16", tag='h')
                A(f"buffer_load_dwordx2 {v(HREG + 8, 2)}, v6, s[12:15], s33 offen offset:32", tag='h')
            pend = [hl]
        nsteps = 4 if 4 * r + 3 < 54 else 54 - 4 * r
        ldsoff = slot * 20480
        base, off0 = (3, ldsoff) if ldsoff < 61440 else ((4, ldsoff - 61440) if ldsoff < 122880 else (5, ldsoff - 122880))
        nrd = nsteps * 5
        for i in range(nsteps):
            for t in range(5):
                A(f"ds_read_b128 {v(AFR + (i * 5 + t) * 4, 4)}, v{base} offset:{off0 + i * 5120 + t * 1024}")
        for _ in range(2):
            if pend: pend.pop(0)()
        k = 0
        for i in range(nsteps):
            b = BREG + (slot * 4 + i) * 4
            for t in range(5):
                k += 1
                A(f"s_waitcnt lgkmcnt({min(15, nrd - k)})")
                A(f"v_mfma_f32_16x16x32_bf16 {v(ACC + 4 * t, 4)}, {v(AFR + (i * 5 + t) * 4, 4)}, {v(b, 4)}, {v(ACC + 4 * t, 4)}")
                if k % 2 == 0 and pend: pend.pop(0)()
        while pend: pend.pop(0)()
    A.vm_wait('h')
    A.stamp(6)
    T = 16
    for p in range(10):
        t, r = divmod(2 * p, 4)
        a0 = ACC + 4 * t + r
        A(f"v_cvt_pk_bf16_f32 v{T + p}, v{a0}, v{a0 + 1}")
    for p in range(10):
        A(f"v_lshlrev_b32 v{T + 16 + 2 * p}, 16, v{T + p}")
        A(f"v_and_b32 v{T + 17 + 2 * p}, 0xffff0000, v{T + p}")
        A(f"v_lshlrev_b32 v{T + 40 + 2 * p}, 16, v{HREG + p}")
        A(f"v_and_b32 v{T + 41 + 2 * p}, 0xffff0000, v{HREG + p}")
    for p in range(10):
        A(f"v_add_f32 v{T + 16 + 2 * p}, v{T + 16 + 2 * p}, v{T + 40 + 2 * p}")
        A(f"v_add_f32 v{T + 17 + 2 * p}, v{T + 17 + 2 * p}, v{T + 41 + 2 * p}")
    O = 80
    for p in range(10):
        A(f"v_cvt_pk_bf16_f32 v{O + p}, v{T + 16 + 2 * p}, v{T + 17 + 2 * p}")
    A(f"buffer_store_dwordx4 {v(O, 4)}, v6, s[16:19], 0 offen")
    A(f"buffer_store_dwordx4 {v(O + 4, 4)}, v6, s[16:19], 0 offen offset:16")
    A(f"buffer_store_dwordx2 {v(O + 8, 2)}, v6, s[16:19], 0 offen offset:32")
    if stamps:
        A("s_waitcnt vmcnt(0)")
        A.stamp(7)
        A.stamp_dump(8, 9, TS_OFF + kidx * 131072, 0)
    A.raw(A.endlabel + ":")
    A("s_endpgm")
    nv = (NV + 7) // 8 * 8
    return A.text(), kernel_desc(name, nv, 100, nv), (256, 256, RING * 20480)
```

```python
S, D, F, H, DH = 2048, 640, 1728, 32, 20
def al(x, a=4096): return (x + a - 1) // a * a
O_OFF = 0
HC_OFF = al(O_OFF + S * D * 2)
H_OFF = al(HC_OFF + S * D * 2)
ACT_OFF = al(H_OFF + S * D * 2)
WO_OFF = al(ACT_OFF + 128 * 54 * 1024)
WGU_OFF = al(WO_OFF + 8 * 20 * 5 * 1024)
WD_OFF = al(WGU_OFF + 108 * 40 * 1024)
SLAB_BYTES = 8192
SLAB_OFF = al(WD_OFF + 8 * 54 * 5 * 1024 + 65536)
MEAN1_OFF = al(SLAB_OFF + 256 * SLAB_BYTES)
VARP_OFF = al(MEAN1_OFF + S * 4)
WBAR_OFF = al(VARP_OFF + S * 8 * 4)
TS_OFF = al(WBAR_OFF + 4096)
WS_USED = al(TS_OFF + (1 << 20), 1 << 20)
if __name__ == "__main__":
    for k, v in list(globals().items()):
        if k.endswith("_OFF") or k == "WS_USED": print(k, hex(v), v)
```

```python
import sys, importlib
from asmlib import *
import layout
def build(kernels, path):
    head = open("sequential_preLN__linear_kernel_hedgehog__geglu_ffn__prompt.s.ref").read().split("\n")
    cm = [l for l in head if l.startswith(";") and "@launch" not in l and "Override" not in l and "grid=ceil" not in l][:13]
    out = cm[:]
    bodies, descs = [], []
    for name, (body, desc, (grid, block, lds)) in kernels:
        if name.startswith("sequential"): out.append(f"; @launch grid=({grid},1,1) block=({block},1,1) lds={lds}")
        else: out.append(f"; @launch kernel={name} grid=({grid},1,1) block=({block},1,1) lds={lds}")
        bodies.append(body); descs.append(desc)
    out.append('.amdgcn_target "amdgcn-amd-amdhsa--gfx950"')
    out.append(".text")
    out += bodies
    out.append('.section .rodata,"a"')
    out += descs
    open(path, "w").write("\n".join(out))
if __name__ == "__main__":
    which = sys.argv[2].split(",")
    if which == ["final"]:
        import mega
        nm = "sequential_preLN__linear_kernel_hedgehog__geglu_ffn__prompt_kernel"
        build([(nm, mega.gen_mega(nm))], sys.argv[1]); sys.exit(0)
    ks = []
    for k in which:
        m = importlib.import_module(k)
        ks.append((k + "_kernel", getattr(m, "gen_" + k)(k + "_kernel", stamps=(len(sys.argv) > 3))))
    build(ks, sys.argv[1])
```

```python
import re

REG_RE = re.compile(r'\b([vas])(\d+)\b|\b([vas])\[(\d+):(\d+)\]|\b(vcc|exec|m0|scc)\b')

def regs_of(op):
    out = set()
    for m in REG_RE.finditer(op):
        if m.group(1):
            out.add((m.group(1), int(m.group(2))))
        elif m.group(3):
            for i in range(int(m.group(4)), int(m.group(5)) + 1):
                out.add((m.group(3), i))
        else:
            n = m.group(6)
            if n == 'vcc':
                out.add(('vcc', 0))
            elif n == 'exec':
                out.add(('exec', 0))
            elif n == 'm0':
                out.add(('m0', 0))
    return out

TRANS = ('v_exp_f32', 'v_log_f32', 'v_rcp_f32', 'v_rsq_f32', 'v_sqrt_f32', 'v_sin_f32', 'v_cos_f32')

def split_ops(s):
    out, depth, cur = [], 0, ''
    for ch in s:
        if ch == '[': depth += 1
        if ch == ']': depth -= 1
        if ch == ',' and depth == 0:
            out.append(cur.strip()); cur = ''
        else:
            cur += ch
    if cur.strip(): out.append(cur.strip())
    return out

class Ins:
    __slots__ = ('text', 'mn', 'kind', 'dst', 'src', 'srcc', 'states', 'wide_store', 'mfma_passes', 'lds_dma', 'sgpr_src_vmem')

def classify(text):
    t = text.split(';')[0].strip()
    parts = t.split(None, 1)
    mn = parts[0]
    rest = parts[1] if len(parts) > 1 else ''
    ops = split_ops(rest)
    I = Ins(); I.text = text; I.mn = mn; I.dst = set(); I.src = set(); I.srcc = set(); I.states = 1
    I.wide_store = False; I.mfma_passes = 0; I.lds_dma = False
    def R(i): return regs_of(ops[i]) if i < len(ops) else set()
    allsrc = lambda a: set().union(*[R(i) for i in range(a, len(ops))]) if len(ops) > a else set()
    if mn.startswith('v_mfma'):
        I.kind = 'mfma'; I.dst = R(0); I.src = R(1) | R(2); I.srcc = R(3)
        I.mfma_passes = 8 if '32x32' in mn else 4
    elif mn.startswith('v_cmp'):
        I.kind = 'valu'; I.dst = R(0); I.src = allsrc(1)
        if mn.startswith('v_cmpx'): I.dst |= {('exec', 0)}
    elif mn in ('v_readfirstlane_b32', 'v_readlane_b32'):
        I.kind = 'valu'; I.dst = R(0); I.src = allsrc(1)
    elif mn.startswith('v_permlane') and 'swap' in mn:
        I.kind = 'valu'; I.dst = R(0) | R(1); I.src = R(0) | R(1)
    elif mn.startswith('v_'):
        I.kind = 'valu'; I.dst = R(0); I.src = allsrc(1)
        if mn.startswith(('v_fmac', 'v_mac', 'v_dot2c', 'v_pk_fmac', 'v_writelane')): I.src |= R(0)
        if mn.startswith(('v_add_co', 'v_sub_co', 'v_addc_co', 'v_subb_co', 'v_subrev_co')):
            I.dst |= R(1); I.src = allsrc(2)
        if mn.startswith('v_cndmask') and len(ops) == 3: I.src |= {('vcc', 0)}
    elif mn.startswith(('buffer_load', 'global_load')):
        I.kind = 'vmem'
        if ' lds' in (' ' + rest) or '_lds_' in mn:
            I.lds_dma = True; I.src = allsrc(0) | {('m0', 0)}
        else:
            I.dst = R(0); I.src = allsrc(1)
    elif mn.startswith(('buffer_store', 'global_store')):
        I.kind = 'vmem'; I.src = allsrc(0)
        if 'x4' in mn or 'x3' in mn:
            I.wide_store = True
            I.srcc = R(0) if mn.startswith('buffer') else R(1)
    elif mn.startswith(('buffer_atomic', 'global_atomic')):
        I.kind = 'vmem'; I.src = allsrc(0)
        if 'sc0' in rest:
            I.dst = R(0)
    elif mn.startswith(('buffer_inv', 'buffer_wbl2')):
        I.kind = 'vmem'
    elif mn.startswith('ds_read') or mn.startswith('ds_bpermute') or mn.startswith('ds_swizzle') or mn.startswith('ds_permute'):
        I.kind = 'ds'; I.dst = R(0); I.src = allsrc(1)
    elif mn.startswith('ds_'):
        I.kind = 'ds'; I.src = allsrc(0)
    elif mn == 's_nop':
        I.kind = 'nop'; I.states = int(ops[0], 0) + 1
    elif mn.startswith(('s_waitcnt', 's_barrier', 's_endpgm', 's_branch', 's_cbranch', 's_setprio', 's_sleep', 's_set_gpr_idx_off')):
        I.kind = 'sctl'
    elif mn.startswith(('s_cmp', 's_bitcmp')):
        I.kind = 'salu'; I.src = allsrc(0)
    elif mn.startswith(('s_load', 's_memtime', 's_memrealtime', 's_buffer_load')):
        I.kind = 'smem'; I.dst = R(0); I.src = allsrc(1)
    elif mn.startswith('s_set_gpr_idx_on'):
        I.kind = 'salu'; I.src = R(0); I.dst = {('m0', 0)}
    elif mn.startswith('s_'):
        I.kind = 'salu'; I.dst = R(0); I.src = allsrc(1)
        if 'saveexec' in mn: I.dst |= {('exec', 0)}
    else:
        raise ValueError("unknown instr: " + text)
    return I

def isv(r): return r[0] in ('v', 'a')
def iss(r): return r[0] in ('s', 'vcc')

class Asm:
    def __init__(self):
        self.lines = []
        self.hist = []
        self.vm = []
        self.nops = 0
    def raw(self, s):
        self.lines.append(s)
    def comment(self, s):
        self.lines.append("  ; " + s)
    def label(self, name, reset=True):
        self.lines.append(name + ":")
    def need(self, I):
        need = 0
        dist = 0
        for P in reversed(self.hist):
            req = 0
            Iv_src = {r for r in (I.src | I.srcc) if isv(r)}
            Iv_dst = {r for r in I.dst if isv(r)}
            Pv_dst = {r for r in P.dst if isv(r)}
            Ps_dst = {r for r in P.dst if iss(r)}
            Is_src = {r for r in I.src if iss(r)}
            if P.kind == 'valu':
                if I.kind == 'mfma' and (Pv_dst & Iv_src): req = max(req, 2)
                if I.kind == 'vmem' and (Ps_dst & Is_src): req = max(req, 5)
                if I.kind == 'valu':
                    if I.mn in ('v_readlane_b32', 'v_readfirstlane_b32') and (Pv_dst & Iv_src): req = max(req, 1)
                    if (Ps_dst & Is_src):
                        req = max(req, 4 if I.mn in ('v_readlane_b32', 'v_writelane_b32') else 2)
                    if (I.mn.startswith('v_permlane') or 'dpp' in I.text or 'row_' in I.text or 'quad_perm' in I.text) and (Pv_dst & Iv_src): req = max(req, 2)
                    if P.mn in TRANS and (Pv_dst & Iv_src) and I.mn not in TRANS: req = max(req, 1)
                    if P.mn in TRANS and (Pv_dst & Iv_src): req = max(req, 1)
                    if ('exec', 0) in P.dst and (I.mn.startswith(('v_readlane', 'v_readfirstlane', 'v_writelane', 'v_permlane'))): req = max(req, 4)
                    if ('op_sel' in P.text or 'sdwa' in P.text) and (Pv_dst & (Iv_src | Iv_dst)): req = max(req, 1)
                if I.kind == 'salu' and (Ps_dst & Is_src): req = max(req, 4)
                if I.kind in ('mfma',) and ('exec', 0) in P.dst: req = max(req, 4)
                if I.kind in ('vmem', 'ds') and P.mn in TRANS and (Pv_dst & Iv_src): req = max(req, 1)
            if P.kind == 'valu' and P.mn.startswith('v_dot2') and I.kind in ('valu', 'vmem', 'ds', 'mfma'):
                same_c = (I.mn == P.mn and not (Pv_dst & {r for r in I.src if isv(r)} - I.dst))
                if (Pv_dst & (Iv_src | Iv_dst)) and not same_c: req = max(req, 3)
            if P.kind == 'mfma':
                p4 = P.mfma_passes == 4
                if I.kind == 'mfma':
                    if Pv_dst & {r for r in I.srcc}:
                        if not (I.srcc == P.dst and I.mfma_passes == P.mfma_passes): req = max(req, 6 if p4 else 10)
                    if Pv_dst & {r for r in I.src}: req = max(req, 8 if p4 else 12)
                elif I.kind in ('valu', 'vmem', 'ds'):
                    if Pv_dst & (Iv_src | Iv_dst): req = max(req, 8 if p4 else 12)
                    if I.kind == 'valu' and ({r for r in P.srcc} & Iv_dst): req = max(req, 3 if p4 else 7)
                    if I.kind in ('vmem', 'ds') and ({r for r in P.srcc} & Iv_dst): req = max(req, 3 if p4 else 7)
            if P.kind == 'vmem' and P.wide_store:
                if (P.srcc & Iv_dst): req = max(req, 2 if I.kind == 'valu' else 1)
            if P.kind == 'salu' and ('m0', 0) in P.dst and (I.lds_dma or I.mn.startswith('s_movrel') or 'addtid' in I.mn): req = max(req, 1)
            if P.kind == 'salu' and ('m0', 0) in P.dst and P.mn.startswith('s_set_gpr_idx_on') and I.kind == 'valu': req = max(req, 0)
            if req > dist: need = max(need, req - dist)
            dist += P.states
            if dist > 16: break
        return need
    def __call__(self, text, tag=None):
        I = classify(text)
        n = self.need(I)
        while n > 0:
            k = min(n, 16)
            self.lines.append(f"  s_nop {k - 1}")
            N = classify(f"s_nop {k - 1}"); self.hist.append(N); self.nops += 1
            n -= k
        self.lines.append("  " + text)
        self.hist.append(I)
        if len(self.hist) > 40: self.hist = self.hist[-40:]
        if I.kind == 'vmem' and not I.mn.startswith(('buffer_inv', 'buffer_wbl2')):
            self.vm.append(tag)
    def vm_wait(self, tags, extra=''):
        if not isinstance(tags, (list, set)): tags = [tags]
        last = -1
        for i, t in enumerate(self.vm):
            if t in tags: last = i
        assert last >= 0, f"vm_wait: no op with tags {tags}"
        n = len(self.vm) - 1 - last
        assert n <= 63, n
        self(f"s_waitcnt vmcnt({n}){extra}")
        return n
    def stamp(self, k):
        if not getattr(self, 'stamps', False): return
        import os
        assert k < 14
        self(f"{'s_memtime' if os.environ.get('CYC') else 's_memrealtime'} s[94:95]")
        self("s_waitcnt lgkmcnt(0)")
        self(f"s_mov_b32 s{80 + k}, s94")
        self.nstamp = max(getattr(self, 'nstamp', 0), k + 1)
    def stamp_dump(self, ws_lo, ws_hi, off, vtmp=0):
        if not getattr(self, 'stamps', False): return
        t = vtmp
        self(f"v_lshrrev_b32 v{t + 16}, 6, v0")
        self(f"s_lshl_b32 s79, s2, 4")
        self(f"v_add_u32 v{t + 16}, s79, v{t + 16}")
        self(f"v_lshlrev_b32 v{t + 16}, 6, v{t + 16}")
        self(f"v_add_u32 v{t + 16}, {off}, v{t + 16}")
        for k in range(16):
            if k < 14: self(f"v_mov_b32 v{t + k}, s{80 + k}")
            else: self(f"v_mov_b32 v{t + k}, 0")
        for q in range(4):
            self(f"global_store_dwordx4 v{t + 16}, v[{t + 4 * q}:{t + 4 * q + 3}], s[{ws_lo}:{ws_hi}] offset:{16 * q}")
    def flush_hist(self, states=20):
        pass
    def text(self):
        return "\n".join(self.lines) + "\n"

def v(i, n=1): return f"v{i}" if n == 1 else f"v[{i}:{i + n - 1}]"
def a(i, n=1): return f"a{i}" if n == 1 else f"a[{i}:{i + n - 1}]"
def s(i, n=1): return f"s{i}" if n == 1 else f"s[{i}:{i + n - 1}]"

def kernel_desc(name, vgpr, sgpr, accum, extra=()):
    return "\n".join([".p2align 6", f".amdhsa_kernel {name}", f"  .amdhsa_next_free_vgpr {vgpr}", f"  .amdhsa_next_free_sgpr {sgpr}",
        f"  .amdhsa_accum_offset {accum}", "  .amdhsa_group_segment_fixed_size 0", "  .amdhsa_kernarg_size 88", "  .amdhsa_user_sgpr_count 2",
        "  .amdhsa_user_sgpr_kernarg_segment_ptr 1", "  .amdhsa_system_sgpr_workgroup_id_x 1"] + list(extra) + [".end_amdhsa_kernel"]) + "\n"
```

```python
from asmlib import *
from layout import *
from k4 import f32hex, bf16_round
from k3 import xlane_sum_g
import p1 as P1
import p4 as P4
from k2 import p2_body, zero_afr

SC = (" sc1", " sc0 sc1")
FA, FW, FO, FH, FG, FW3 = 0, 1, 2, 3, 4, 5
NONCE_LDS = 163832

def flag_set(A, phase, sidx):
    A(f"s_lshl_b32 s31, s{sidx}, 6"); A(f"s_add_u32 s31, s31, {FLAG_OFF + phase * 16384}")
    A("v_mov_b32 v8, 0"); A("v_mov_b32 v9, s96")
    A("s_mov_b64 exec, 1")
    A("buffer_store_dword v9, v8, s[12:15], s31 offen sc0 sc1")
    A("s_mov_b64 exec, -1")

def flag_wait(A, lbl, phase, sbase, n):
    if sbase is None: A(f"s_mov_b32 s31, {FLAG_OFF + phase * 16384}")
    else:
        A(f"s_lshl_b32 s31, s{sbase}, 6"); A(f"s_add_u32 s31, s31, {FLAG_OFF + phase * 16384}")
    A("v_lshlrev_b32 v8, 6, v1")
    A("s_mov_b32 s97, 0")
    if n == 16: A("s_mov_b64 exec, 0xffff")
    A.raw(f"{lbl}:")
    nl = {16: 1, 128: 2, 256: 4}[n]
    for k in range(nl):
        if k: A(f"s_add_u32 s30, s31, {4096 * k}")
        A(f"buffer_load_dword v{9 + k}, v8, s[12:15], s{31 if k == 0 else 30} offen sc1")
    A("s_add_u32 s97, s97, 1")
    A("s_waitcnt vmcnt(0)")
    for k in range(nl): A(f"v_xor_b32 v{9 + k}, s96, v{9 + k}")
    for k in range(1, nl): A(f"v_or_b32 v9, v9, v{9 + k}")
    A("v_cmp_ne_u32 vcc, 0, v9")
    A("s_cmp_gt_u32 s97, 0x40000")
    A(f"s_cbranch_scc1 {lbl}_x")
    A(f"s_cbranch_vccnz {lbl}")
    A.raw(f"{lbl}_x:")
    A("s_mov_b64 exec, -1")

def ids_p35(A):
    A("s_and_b32 s20, s2, 7"); A("s_lshr_b32 s21, s2, 3")
    if os.environ.get("MAP35") == "old":
        A("s_lshr_b32 s23, s20, 1"); A("s_lshl_b32 s23, s23, 3"); A("s_lshr_b32 s24, s21, 2"); A("s_add_u32 s23, s23, s24")
        A("s_and_b32 s24, s20, 1"); A("s_lshl_b32 s24, s24, 2"); A("s_and_b32 s27, s21, 3"); A("s_add_u32 s24, s24, s27")
    else:
        A("s_lshl_b32 s23, s20, 2"); A("s_lshr_b32 s24, s21, 3"); A("s_add_u32 s23, s23, s24")
        A("s_and_b32 s24, s21, 7")
    A("s_lshl_b32 s26, s23, 2"); A("s_add_u32 s26, s26, s25")

def l2_prefetch(A, base, per_xcd_sel, per_wg, per_wave, n):
    A(f"s_mul_i32 s56, s21, {per_wg}"); A(f"s_mul_i32 s57, s25, {per_wave}"); A("s_add_u32 s56, s56, s57"); A(f"s_add_u32 s56, s56, {base}")
    if per_xcd_sel:
        A("s_and_b32 s57, s20, 1"); A(f"s_mul_i32 s57, s57, {per_xcd_sel}"); A("s_add_u32 s56, s56, s57")
    A("v_lshlrev_b32 v12, 4, v1")
    for k in range(n):
        if k and k % 4 == 0: A("s_add_u32 s56, s56, 4096")
        A(f"buffer_load_dwordx4 v[8:11], v12, s[12:15], s56 offen offset:{(k % 4) * 1024}{SC[0]}", tag='pf')

def p3_H_dma(A):
    A("v_lshlrev_b32 v4, 4, v1"); A("v_lshlrev_b32 v5, 4, v3")
    A("s_mul_i32 s28, s24, 102400"); A(f"s_add_u32 s28, s28, {WO_OFF}")
    A("s_mul_i32 s29, s25, 6144")
    A("s_and_b32 s33, s21, 3"); A("s_mul_i32 s33, s33, 5"); A("s_add_u32 s33, s33, s25")
    for r in range(5):
        A("s_cmp_ge_u32 s33, 20"); A("s_cselect_b32 s34, 20, 0"); A("s_sub_u32 s33, s33, s34")
        A("s_mul_i32 s34, s33, 5120"); A("s_add_u32 s34, s34, s28")
        A("s_lshl_b32 s30, s33, 6"); A(f"s_add_u32 s30, s30, {WBAR_OFF}")
        A(f"s_add_u32 m0, s29, {r * 4 * 6144}")
        for t in range(4):
            A(f"buffer_load_dwordx4 v4, s[12:15], s34 offen offset:{t * 1024}{SC[0]} lds", tag=('r', r))
        A(f"s_add_u32 m0, s29, {r * 4 * 6144 + 4096}")
        A("s_add_u32 s32, s34, 4096")
        A(f"buffer_load_dwordx4 v4, s[12:15], s32 offen{SC[0]} lds", tag=('r', r))
        A(f"s_add_u32 m0, s29, {r * 4 * 6144 + 5120}")
        A(f"buffer_load_dwordx4 v5, s[12:15], s30 offen{SC[0]} lds", tag=('r', r))
        A("s_add_u32 s33, s33, 4")

def p3_H_loop(A):
    for r in range(5):
        A.vm_wait(('r', r))
        A("s_barrier")
    A("s_barrier")

XR3 = 216
HLDS = 143360
import os
def p3_C_pre(A):
    A("v_lshlrev_b32 v4, 4, v1"); A("v_add_u32 v5, 61440, v4")
    A("s_lshl_b32 s31, s26, 4"); A("v_add_u32 v6, s31, v21")
    A("v_mul_u32_u24 v8, 1280, v6"); A("v_mul_u32_u24 v9, 40, v3"); A("s_mul_i32 s33, s24, 160"); A("v_add3_u32 v8, v8, v9, s33")
    A("s_mov_b32 s16, s4"); A("s_mov_b32 s17, s5"); A(f"s_mov_b32 s18, {S * D * 2}"); A("s_mov_b32 s19, 0x20000")
    A(f"buffer_load_dwordx4 {v(XR3, 4)}, v8, s[16:19], 0 offen", tag='x')
    A(f"buffer_load_dwordx4 {v(XR3 + 4, 4)}, v8, s[16:19], 0 offen offset:16", tag='x')
    A(f"buffer_load_dwordx2 {v(XR3 + 8, 2)}, v8, s[16:19], 0 offen offset:32", tag='x')

def p3_C(A, name):
    BR = 16; AF = 96; ACC = 192; XR = XR3; MR = 226
    A("v_mov_b32 v7, v21"); A("v_mov_b32 v2, v3")
    A("s_mul_i32 s27, s26, 20480"); A(f"s_add_u32 s27, s27, {O_OFF}")
    A("v_mul_u32_u24 v12, 20, v1")
    A("s_and_b32 s33, s21, 3")
    for J in range(4):
        A(f"s_add_u32 s34, s33, {J}"); A("s_and_b32 s34, s34, 3"); A("s_mul_i32 s34, s34, 5120"); A("s_add_u32 s34, s34, s27")
        for jj in range(4):
            st = 5 * J + jj
            A(f"buffer_load_dwordx4 {v(BR + st * 4, 4)}, v12, s[12:15], s34 offen offset:{jj * 1280}{SC[0]}", tag=('b', st))
        for jj in range(4):
            st = 5 * J + 4
            A(f"buffer_load_dword v{BR + st * 4 + jj}, v12, s[12:15], s34 offen offset:{jj * 1280 + 16}{SC[0]}", tag=('b', st))
    A("v_lshlrev_b32 v10, 2, v6"); A(f"s_mov_b32 s34, {MEAN1_OFF}")
    A(f"buffer_load_dword v{MR}, v10, s[12:15], s34 offen{SC[0]}", tag='m')
    for r in range(6):
        rds, mfs = [], []
        A("s_waitcnt lgkmcnt(0)")
        A("s_barrier")
        if r < 5:
            for k in range(24):
                st = 4 * r + k // 6
                base, off = (4, st * 6144) if st < 10 else (5, (st - 10) * 6144)
                rds.append((k, base, off + (k % 6) * 1024))
        if r >= 1:
            mfs = list(range(24)); A.vm_wait([('b', 4 * (r - 1) + i) for i in range(4)])
        for k in range(24):
            if mfs:
                st = 4 * (r - 1) + k // 6; t = k % 6
                c = v(ACC + 4 * t, 4) if st > 0 else "0"
                A(f"v_mfma_f32_16x16x32_bf16 {v(ACC + 4 * t, 4)}, {v(AF + k * 4, 4)}, {v(BR + st * 4, 4)}, {c}")
            if rds:
                kk, base, off = rds[k]
                A(f"ds_read_b128 {v(AF + kk * 4, 4)}, v{base} offset:{off}")
    A.vm_wait('m')
    T = 16; AB = T; HF = T + 16; XF = T + 40
    for p in range(10):
        t, r = divmod(2 * p, 4); a0 = ACC + 4 * t + r
        A(f"v_cvt_pk_bf16_f32 v{AB + p}, v{a0}, v{a0 + 1}")
    for p in range(10):
        A(f"v_lshlrev_b32 v{HF + 2 * p}, 16, v{AB + p}"); A(f"v_and_b32 v{HF + 2 * p + 1}, 0xffff0000, v{AB + p}")
        A(f"v_lshlrev_b32 v{XF + 2 * p}, 16, v{XR + p}"); A(f"v_and_b32 v{XF + 2 * p + 1}, 0xffff0000, v{XR + p}")
    for e in range(0, 20, 2): A(f"v_pk_add_f32 {v(HF + e, 2)}, {v(HF + e, 2)}, {v(XF + e, 2)}")
    HP = T + 64
    for p in range(10): A(f"v_cvt_pk_bf16_f32 v{HP + p}, v{HF + 2 * p}, v{HF + 2 * p + 1}")
    A(f"v_add_f32 v{MR}, v{MR}, v{ACC + 20}")
    bf16_round(A, MR + 1, MR, MR + 2)
    for p in range(10):
        A(f"v_lshlrev_b32 v{HF + 2 * p}, 16, v{HP + p}"); A(f"v_and_b32 v{HF + 2 * p + 1}, 0xffff0000, v{HP + p}")
    for e in range(20): A(f"v_sub_f32 v{XF + e}, v{HF + e}, v{MR + 1}")
    CP = T + 76
    for p in range(10): A(f"v_cvt_pk_bf16_f32 v{CP + p}, v{XF + 2 * p}, v{XF + 2 * p + 1}")
    A("s_lshr_b32 s36, s24, 1"); A("s_mul_i32 s36, s36, 5120"); A("s_mul_i32 s37, s26, 20480"); A("s_add_u32 s36, s36, s37")
    A(f"s_add_u32 s36, s36, {HC_OFF}")
    A("v_lshlrev_b32 v11, 3, v1")
    A("s_bitcmp1_b32 s24, 0"); A(f"s_cbranch_scc1 L{name}_odd")
    A(f"buffer_store_dwordx4 {v(CP, 4)}, v4, s[12:15], s36 offen{SC[1]}")
    A(f"buffer_store_dwordx4 {v(CP + 4, 4)}, v4, s[12:15], s36 offen offset:1024{SC[1]}")
    A(f"buffer_store_dwordx2 {v(CP + 8, 2)}, v11, s[12:15], s36 offen offset:2048{SC[1]}")
    A(f"s_branch L{name}_st")
    A.raw(f"L{name}_odd:")
    A(f"buffer_store_dwordx2 {v(CP, 2)}, v11, s[12:15], s36 offen offset:2560{SC[1]}")
    A(f"buffer_store_dwordx4 {v(CP + 2, 4)}, v4, s[12:15], s36 offen offset:3072{SC[1]}")
    A("s_add_u32 s36, s36, 4096")
    A(f"buffer_store_dwordx4 {v(CP + 6, 4)}, v4, s[12:15], s36 offen{SC[1]}")
    A.raw(f"L{name}_st:")
    for e in range(20): A(f"v_sub_f32 v{HF + e}, v{HF + e}, v{MR}")
    A(f"v_mul_f32 v{MR + 2}, v{HF}, v{HF}"); A(f"v_mul_f32 v{MR + 3}, v{HF + 1}, v{HF + 1}")
    for e in range(2, 20): A(f"v_fmac_f32 v{MR + 2 + (e & 1)}, v{HF + e}, v{HF + e}")
    A(f"v_add_f32 v{MR + 2}, v{MR + 2}, v{MR + 3}")
    xlane_sum_g(A, MR + 2, MR + 3)
    A("v_lshlrev_b32 v10, 2, v6"); A("s_lshl_b32 s37, s24, 13"); A(f"s_add_u32 s37, s37, {VARP_OFF}")
    A(f"buffer_store_dword v{MR + 2}, v10, s[12:15], s37 offen{SC[1]}")
    A("s_mul_i32 s35, s25, 3072"); A(f"s_add_u32 s35, s35, {HLDS}"); A("v_add_u32 v10, s35, v4")
    A(f"ds_write_b128 v10, {v(HP, 4)}"); A(f"ds_write_b128 v10, {v(HP + 4, 4)} offset:1024"); A(f"ds_write_b128 v10, {v(HP + 8, 4)} offset:2048")
    if os.environ.get("DBGH"):
        A("s_lshl_b32 s35, s23, 3"); A("s_add_u32 s35, s35, s24"); A("s_lshl_b32 s35, s35, 2"); A("s_add_u32 s35, s35, s25")
        A("s_mul_i32 s35, s35, 2560"); A(f"s_add_u32 s35, s35, {H_OFF}")
        A("v_lshlrev_b32 v11, 3, v1")
        A(f"buffer_store_dwordx4 {v(HP, 4)}, v4, s[12:15], s35 offen{SC[1]}")
        A(f"buffer_store_dwordx4 {v(HP + 4, 4)}, v4, s[12:15], s35 offen offset:1024{SC[1]}")
        A(f"buffer_store_dwordx2 {v(HP + 8, 2)}, v11, s[12:15], s35 offen offset:2048{SC[1]}")
    A("v_mov_b32 v21, v7"); A("v_mov_b32 v3, v2")

SL5 = [122880, 40960, 61440, 81920, 102400, 0, 20480]
NR5 = 14
def p5_H_setup(A):
    A("v_lshlrev_b32 v4, 4, v1")
    A(f"s_mul_i32 s40, s24, {54 * 5120}"); A(f"s_add_u32 s40, s40, {WD_OFF}"); A("s_mul_i32 s41, s25, 5120")
    A("s_and_b32 s43, s21, 7"); A("s_mul_i32 s43, s43, 7"); A("s_add_u32 s43, s43, s25")
def p5_round_dma(A, r):
    base = SL5[r % 7]
    out = []
    for t in range(5):
        def f(t=t):
            if t == 0:
                A("s_cmp_ge_u32 s43, 54"); A("s_cselect_b32 s42, 54, 0"); A("s_sub_u32 s43, s43, s42")
                A("s_mul_i32 s42, s43, 5120"); A("s_add_u32 s42, s42, s40"); A("s_add_u32 s43, s43, 4")
                A(f"s_add_u32 m0, s41, {base}")
            if t == 4:
                A(f"s_add_u32 m0, s41, {base + 4096}"); A(f"s_add_u32 s42, s42, 4096")
                A(f"buffer_load_dwordx4 v4, s[12:15], s42 offen{SC[0]} lds", tag=('r5', r))
            else:
                A(f"buffer_load_dwordx4 v4, s[12:15], s42 offen offset:{t * 1024}{SC[0]} lds", tag=('r5', r))
        out.append(f)
    return out
def p5_H(A, issued):
    for r in range(NR5):
        A.vm_wait(('r5', r))
        A("s_barrier")
        if r >= 1 and issued < NR5 and issued == r + 6:
            for f in p5_round_dma(A, issued): f()
            issued += 1

def p5_C(A, name):
    RING = 7; AHEAD = 5; A0 = 2
    BREG = 16; AFR = BREG + RING * 16; ACC = AFR + 80; HREG = ACC + 20
    A("v_mov_b32 v7, v21"); A("v_mov_b32 v2, v3")
    A("v_lshlrev_b32 v4, 4, v1"); A("v_add_u32 v5, 61440, v4"); A("v_add_u32 v6, 122880, v4")
    A(f"s_mul_i32 s27, s26, {54 * 1024}"); A(f"s_add_u32 s27, s27, {ACT_OFF}")
    A("v_lshlrev_b32 v8, 3, v1")
    A("s_and_b32 s33, s21, 7"); A("s_mul_i32 s33, s33, 7")
    def loads(r):
        out = []
        for i in range(4):
            if 4 * r + i < 54:
                def f(i=i):
                    b = BREG + ((r % RING) * 4 + i) * 4
                    A("s_cmp_ge_u32 s33, 54"); A("s_cselect_b32 s34, 54, 0"); A("s_sub_u32 s33, s33, s34")
                    A("s_lshl_b32 s34, s33, 10"); A("s_add_u32 s34, s34, s27"); A("s_add_u32 s33, s33, 1")
                    A(f"buffer_load_dwordx4 {v(b, 4)}, v4, s[12:15], s34 offen{SC[0]}", tag=('b5', r))
                out.append(f)
        return out
    for r in range(A0):
        for f in loads(r): f()
    nxt = [A0]
    A("s_load_dwordx2 s[4:5], s[0:1], 64")
    A("s_lshl_b32 s30, s26, 4"); A("v_add_u32 v9, s30, v7"); A("v_mul_u32_u24 v9, 1280, v9"); A("v_mul_u32_u24 v10, 40, v2")
    A("s_mul_i32 s31, s24, 160"); A("v_add3_u32 v9, v9, v10, s31")
    A("s_waitcnt lgkmcnt(0)")
    A("s_mov_b32 s16, s4"); A("s_mov_b32 s17, s5"); A(f"s_mov_b32 s18, {S * D * 2}"); A("s_mov_b32 s19, 0x20000")
    def nst(r): return 4 if 4 * r + 3 < 54 else 54 - 4 * r
    for r in range(NR5 + 1):
        pend, rds, mfs = [], [], []
        A("s_waitcnt lgkmcnt(0)")
        if r < NR5:
            A("s_barrier")
            if os.environ.get("P5FINE") and r < 12:
                A.stamps = True; A.stamp(r + 2); A.stamps = False
            pend = []
            for _ in range(2 if nxt[0] < r + AHEAD else 1):
                if nxt[0] < NR5 and nxt[0] <= r + AHEAD:
                    pend += loads(nxt[0]); nxt[0] += 1
            lo = SL5[r % 7]
            base, off0 = (4, lo) if lo < 61440 else ((5, lo - 61440) if lo < 122880 else (6, lo - 122880))
            rds = [(k, base, off0 + (k // 5) * 5120 + (k % 5) * 1024) for k in range(nst(r) * 5)]
        if r >= 1:
            ps = (r - 1) % RING
            mfs = [(k, BREG + (ps * 4 + k // 5) * 4) for k in range(nst(r - 1) * 5)]
            A.vm_wait(('b5', r - 1))
        n = max(len(rds), len(mfs))
        for k in range(n):
            if k < len(mfs):
                kk, b = mfs[k]; t = kk % 5
                first = (r == 1 and kk < 5)
                A(f"v_mfma_f32_16x16x32_bf16 {v(ACC + 4 * t, 4)}, {v(AFR + kk * 4, 4)}, {v(b, 4)}, {v(ACC + 4 * t, 4) if not first else 0}")
            if k < len(rds):
                kk, base, off = rds[k]
                A(f"ds_read_b128 {v(AFR + kk * 4, 4)}, v{base} offset:{off}")
            if k % 2 == 1 and pend: pend.pop(0)()
        while pend: pend.pop(0)()
    A("s_mul_i32 s35, s25, 3072"); A(f"s_add_u32 s35, s35, {HLDS}"); A("v_add_u32 v10, s35, v4")
    A(f"ds_read_b128 {v(HREG, 4)}, v10"); A(f"ds_read_b128 {v(HREG + 4, 4)}, v10 offset:1024"); A(f"ds_read_b128 {v(HREG + 8, 4)}, v10 offset:2048")
    A("s_waitcnt lgkmcnt(0)")
    T = 16
    for p in range(10):
        t, r = divmod(2 * p, 4); a0 = ACC + 4 * t + r
        A(f"v_cvt_pk_bf16_f32 v{T + p}, v{a0}, v{a0 + 1}")
    for p in range(10):
        A(f"v_lshlrev_b32 v{T + 16 + 2 * p}, 16, v{T + p}"); A(f"v_and_b32 v{T + 17 + 2 * p}, 0xffff0000, v{T + p}")
        A(f"v_lshlrev_b32 v{T + 40 + 2 * p}, 16, v{HREG + p}"); A(f"v_and_b32 v{T + 41 + 2 * p}, 0xffff0000, v{HREG + p}")
    for p in range(10): A(f"v_pk_add_f32 {v(T + 16 + 2 * p, 2)}, {v(T + 16 + 2 * p, 2)}, {v(T + 40 + 2 * p, 2)}")
    O = 80
    for p in range(10): A(f"v_cvt_pk_bf16_f32 v{O + p}, v{T + 16 + 2 * p}, v{T + 17 + 2 * p}")
    A(f"buffer_store_dwordx4 {v(O, 4)}, v9, s[16:19], 0 offen")
    A(f"buffer_store_dwordx4 {v(O + 4, 4)}, v9, s[16:19], 0 offen offset:16")
    A(f"buffer_store_dwordx2 {v(O + 8, 2)}, v9, s[16:19], 0 offen offset:32")

def w0(A, lbl):
    A("s_cmp_lg_u32 s22, 0"); A(f"s_cbranch_scc1 {lbl}")

NPF = 12
import os
def gen_mega(name="mega_kernel", stamps=False, kidx=0):
    A = Asm(); A.endlabel = f"L{name}_end"; A.stamps = False; A.rl_sc = SC[1]; A.nonce_c = True
    def mstamp(k):
        if (os.environ.get("P5FINE") or os.environ.get("P4FINE")) and k not in (0,):
            if os.environ.get("P5FINE") and k == 12: k = 1
            elif os.environ.get("P4FINE") and k == 10: k = 1
            elif os.environ.get("P4FINE") and k == 11: k = 9
            elif k == 13 and os.environ.get("P5FINE"): return
            elif k == 13: pass
            else: return
        if os.environ.get("P1FINE") and k not in (0, 13) and not (k == 1): return
        if os.environ.get("P1FINE") and k == 1: k = 12
        A.stamps = stamps; A.stamp(k); A.stamps = False
    A.raw(f".globl {name}\n.p2align 8\n.type {name},@function\n{name}:")
    A("s_cmp_ge_u32 s2, 256"); A("s_cbranch_scc1 " + A.endlabel)
    mstamp(0)
    P1.p1_common_setup(A)
    A("s_cmp_ge_u32 s22, 4"); A(f"s_cbranch_scc1 L{name}_H1")

    if not os.environ.get("NOL2PF"):
        A("s_waitcnt lgkmcnt(0)")
        A("s_mov_b32 s36, s4"); A("s_mov_b32 s37, s5"); A(f"s_mov_b32 s38, {S * D * 2}"); A("s_mov_b32 s39, 0x20000")
        A("s_mov_b32 s40, s6"); A("s_mov_b32 s41, s7"); A(f"s_mov_b32 s42, {640 * 1920 * 2}"); A("s_mov_b32 s43, 0x20000")
        A("s_mul_i32 s52, s21, 20"); A("s_mul_i32 s53, s25, 5"); A("s_add_u32 s52, s52, s53"); A("s_mul_i32 s52, s52, 3840")
        A("s_and_b32 s53, s20, 1"); A("s_mul_i32 s53, s53, 640"); A("s_add_u32 s52, s52, s53")
        for h in range(2):
            A(f"v_add_u32 v30, {60 * h}, v1"); A(f"v_min_u32 v30, 119, v30")
            P1.udiv_small(A, 31, 30, 40); A("v_mul_u32_u24 v29, 40, v31"); A("v_sub_u32 v30, v30, v29")
            A(f"v_mul_u32_u24 v31, 1280, v31"); A(f"v_lshl_add_u32 v{226 + h}, v30, 4, v31")
        for row in range(5):
            for h in range(2):
                A(f"buffer_load_dwordx4 v[232:235], v{226 + h}, s[40:43], s52 offen")
            A("s_add_u32 s52, s52, 3840")
        A("s_lshr_b32 s52, s20, 1"); A("s_lshl_b32 s52, s52, 9"); A("s_lshl_b32 s53, s21, 4"); A("s_add_u32 s52, s52, s53"); A("s_lshl_b32 s53, s25, 2"); A("s_add_u32 s52, s52, s53")
        A("s_mul_i32 s52, s52, 1280")
        A("v_lshlrev_b32 v30, 4, v1")
        for k in range(4): A(f"buffer_load_dwordx4 v[232:235], v30, s[36:39], s52 offen offset:{1024 * k}")
        A("s_add_u32 s52, s52, 4096")
        A(f"buffer_load_dwordx4 v[232:235], v30, s[36:39], s52 offen")
    def code_pf():
        A("s_getpc_b64 s[50:51]")
        A.raw(f"L{name}_pc:")
        A(f"s_sub_u32 s50, s50, (L{name}_pc - {name})"); A("s_subb_u32 s51, s51, 0")
        A("v_lshlrev_b32 v30, 4, v1"); A("s_mul_i32 s52, s25, CODE_Q"); A("v_add_u32 v30, s52, v30")
        for k in range(NPF):
            A(f"global_load_dwordx4 v[232:235], v30, s[50:51] offset:{(k % 4) * 1024}")
            if k % 4 == 3: A("v_add_u32 v30, 4096, v30")
    A.code_pf = (lambda: None) if os.environ.get('NOPF') else code_pf
    R = P1.p1_C(A, name)
    A("s_waitcnt lgkmcnt(0)")
    A("s_barrier")
    A(f"s_branch L{name}_epi")
    A.raw(f"L{name}_H1:")
    A.hist = []; A.vm = []
    P1.p1_H(A, name)
    A("s_barrier")
    R_ = R
    A(f"s_mul_i32 s31, s25, 9216"); A(f"v_lshlrev_b32 v228, 4, v1"); A(f"v_add_u32 v228, s31, v228")
    for t in range(8): A(f"ds_read_b128 {v(R['ACC'] + 4 * t, 4)}, v228 offset:{P1.HO + 1024 * t}")
    A(f"s_lshl_b32 s31, s25, 11"); A(f"s_add_u32 s31, s31, {P1.HO2}"); A(f"v_lshlrev_b32 v229, 4, v1"); A(f"v_add_u32 v229, s31, v229")
    A(f"ds_read_b128 {v(R['GR'], 4)}, v229"); A(f"ds_read_b128 {v(R['SX'], 4)}, v229 offset:1024")
    A("s_waitcnt lgkmcnt(0)")
    A.raw(f"L{name}_epi:")
    A.hist = []; A.vm = []
    A("s_nop 7")
    mstamp(1)
    PH = P1.p1_epilogue(A, name, R, True)
    mstamp(2)
    A("s_waitcnt vmcnt(0)")
    A("s_barrier")
    mstamp(3)
    zero_afr(A, 8)
    w0(A, f"L{name}_a0")
    P1.nonce_get(A, name, None, 8)
    A("s_lshl_b32 s33, s24, 4"); A("s_add_u32 s33, s33, s23")
    flag_set(A, FA, 33)
    A(f"v_mov_b32 v8, {NONCE_LDS}"); A("v_mov_b32 v9, s96"); A("ds_write_b32 v8, v9")
    A.raw(f"L{name}_a0:")
    import rl2
    A.vm = []
    A("s_lshl_b32 s60, s22, 12"); A("s_add_u32 s60, s60, 98304")
    rl2.finish(A, f"L{name}_f0", 16, 236, 64, 60, A.rl_sc)
    A("s_cmp_lt_u32 s22, 4"); A(f"s_cbranch_scc1 L{name}_f1x")
    rl2.finish(A, f"L{name}_f1", 17, 152, 64, 60, A.rl_sc)
    A.raw(f"L{name}_f1x:")
    w0(A, f"L{name}_a1b")
    A("s_lshl_b32 s33, s24, 4")
    flag_wait(A, f"L{name}_pa", FA, 33, 16)
    A.raw(f"L{name}_a1b:")
    A("s_waitcnt vmcnt(0)")
    A.raw(f"L{name}_a1:")
    A("s_waitcnt lgkmcnt(0)")
    A("s_barrier")
    mstamp(4)
    A(f"v_mov_b32 v8, {NONCE_LDS}"); A("ds_read_b32 v9, v8"); A("s_waitcnt lgkmcnt(0)"); A("v_readfirstlane_b32 s96, v9")
    w0(A, f"L{name}_a2")
    flag_set(A, FW, 2)
    A.raw(f"L{name}_a2:")
    A.vm = []
    p2_body(A, name, PH, sc=SC[0], osc=SC[1])
    mstamp(5)
    A("s_waitcnt vmcnt(0)")
    A("s_barrier")
    mstamp(6)
    w0(A, f"L{name}_a3")
    A("s_lshl_b32 s33, s23, 4"); A("s_add_u32 s33, s33, s24")
    flag_set(A, FO, 33)
    flag_wait(A, f"L{name}_pw", FW, None, 256)
    A.raw(f"L{name}_a3:")
    ids_p35(A)
    A("s_barrier")
    mstamp(7)
    A("s_cmp_ge_u32 s22, 4"); A(f"s_cbranch_scc1 L{name}_H3")
    A.hist = []; A.vm = []
    p3_C_pre(A)
    w0(A, f"L{name}_a4")
    A("s_waitcnt vmcnt(0)") if False else None
    A("s_lshr_b32 s33, s23, 1"); A("s_lshl_b32 s33, s33, 4")
    flag_wait(A, f"L{name}_po", FO, 33, 16)
    A.raw(f"L{name}_a4:")
    A("s_barrier")
    mstamp(8)
    A.vm = ['x', 'x', 'x']
    p3_C(A, name)
    mstamp(9)
    A("s_waitcnt vmcnt(0)")
    A("s_barrier")
    w0(A, f"L{name}_a5")
    A("s_lshl_b32 s33, s23, 3"); A("s_add_u32 s33, s33, s24")
    flag_set(A, FH, 33)
    A.raw(f"L{name}_a5:")
    P4.ids_p4(A)
    w0(A, f"L{name}_a6")
    A("s_lshl_b32 s33, s23, 4")
    flag_wait(A, f"L{name}_ph", FH, 33, 16)
    A.raw(f"L{name}_a6:")
    A("s_barrier")
    mstamp(10)
    A.hist = []; A.vm = []
    A.p4_pre_hc = lambda: None
    P4.p4_C(A, SC)
    mstamp(11)
    A("s_waitcnt vmcnt(0)")
    A("s_barrier")
    w0(A, f"L{name}_a7")
    A("s_lshl_b32 s33, s23, 4"); A("s_add_u32 s33, s33, s18")
    flag_set(A, FG, 33)
    A.raw(f"L{name}_a7:")
    A("v_and_b32 v21, 15, v1"); A("v_lshrrev_b32 v3, 4, v1")
    ids_p35(A)
    w0(A, f"L{name}_a8")
    A("s_lshr_b32 s33, s23, 1"); A("s_lshl_b32 s33, s33, 4")
    flag_wait(A, f"L{name}_pg", FG, 33, 16)
    A.raw(f"L{name}_a8:")
    A("s_barrier")
    mstamp(12)
    A.hist = []; A.vm = []
    p5_C(A, name)
    A(f"s_branch L{name}_fin")
    A.raw(f"L{name}_H3:")
    A.hist = []; A.vm = []
    p3_H_dma(A)
    if os.environ.get("L2GU"): l2_prefetch(A, WGU_OFF, 56 * 40960, 71680, 17920, 18)
    A("s_barrier")
    mstamp(8)
    p3_H_loop(A)
    P4.ids_p4(A)
    P4.p4_H_setup(A)
    for f in range(3):
        for fn in P4.p4_tile_dma(A, f, SC): fn()
    A("s_barrier")
    A("s_barrier")
    mstamp(9); mstamp(10); mstamp(11)
    A.p4_pre_var = lambda: None
    A("s_mov_b32 s44, s23"); A("s_mov_b32 s45, s24"); A("s_mov_b32 s46, s26")
    ids_p35(A); p5_H_setup(A)
    A("s_mov_b32 s23, s44"); A("s_mov_b32 s24, s45"); A("s_mov_b32 s26, s46")
    state = {'n': 0}
    def tail(f):
        rounds = {4: [0, 1, 2], 5: [3, 4]}.get(f, [])
        out = []
        for r in rounds: out += p5_round_dma(A, r)
        state['n'] += len(rounds)
        return out
    A.p4_tail_dma = tail
    if os.environ.get("L2WD"): l2_prefetch(A, WD_OFF, 0, 69120, 17280, 17)
    P4.p4_H(A, SC, prefetched=3)
    A("s_barrier")
    for r in (5, 6):
        for f in p5_round_dma(A, r): f()
    A("s_barrier")
    mstamp(12)
    p5_H(A, 7)
    A.raw(f"L{name}_fin:")
    if stamps:
        A("s_waitcnt vmcnt(0)")
        mstamp(13); A.stamps = True; A.nstamp = 14
        A("v_lshlrev_b32 v0, 6, s22") if False else None
        A("v_mov_b32 v0, s22"); A("v_lshlrev_b32 v0, 6, v0")
        A.stamp_dump(8, 9, TS_OFF, 8)
    A.raw(A.endlabel + ":")
    A("s_endpgm")
    A.raw(f"L{name}_last:")
    A.raw(".fill 1024, 4, 0xbf800000")
    txt = A.text().replace("CODE_Q", str(NPF * 1024))
    return txt, kernel_desc(name, 256, 102, 256), (256, 512, 163840)
```

```python
from asmlib import *
from layout import *
from k4 import f32hex, bf16_round
from k3 import xlane_sum_g
from k1 import POS, INV, pack3, PAIRS, SLOT, NSLOT, MISC, PHT, ZP, CSA, PST, VST, AFR, L2E, table_lookup3, udiv_small, ids_p1
import math

HO = 40960
NCH = 10

def poll_flags(A, lbl, nfl, vaddr, vdat, sbase):
    A("s_mov_b32 s97, 0")
    A(f"s_mov_b64 exec, {hex((1 << nfl) - 1) if nfl <= 32 else '-1'}")
    A.raw(f"{lbl}:")
    A(f"buffer_load_dword v{vdat}, v{vaddr}, s[12:15], s{sbase} offen sc1")
    A("s_add_u32 s97, s97, 1")
    A("s_waitcnt vmcnt(0)")
    A(f"v_cmp_ne_u32 vcc, s96, v{vdat}")
    A(f"s_cmp_gt_u32 s97, 0x40000")
    A(f"s_cbranch_scc1 {lbl}_x")
    A(f"s_cbranch_vccnz {lbl}")
    A.raw(f"{lbl}_x:")
    A("s_mov_b64 exec, -1")

def nonce_publish(A, name, vt):
    A("s_cmp_lg_u32 s2, 0"); A(f"s_cbranch_scc1 L{name}_n1")
    A("s_cmp_lg_u32 s22, 0"); A(f"s_cbranch_scc1 L{name}_n1")
    A(f"v_mov_b32 v{vt}, 0"); A(f"s_mov_b32 s97, {NONCE_OFF}")
    A(f"buffer_load_dword v{vt + 1}, v{vt}, s[12:15], s97 offen sc1")
    A("s_waitcnt vmcnt(0)")
    A(f"s_mov_b32 s96, 0x9e3779b1"); A(f"v_mul_lo_u32 v{vt + 1}, v{vt + 1}, s96"); A(f"v_add_u32 v{vt + 1}, 0x7f4a7c15, v{vt + 1}")
    A(f"v_max_u32 v{vt + 1}, 1, v{vt + 1}")
    A(f"buffer_store_dword v{vt + 1}, v{vt}, s[12:15], s97 offen sc0 sc1")
    A(f"global_store_dword v{vt}, v{vt + 1}, s[98:99] sc0 sc1")
    A.raw(f"L{name}_n1:")

def nonce_get(A, name, vpre, vt):
    if vpre is not None: A(f"v_readfirstlane_b32 s96, v{vpre}")
    A("s_cmp_lg_u32 s96, 0"); A(f"s_cbranch_scc1 L{name}_n3")
    A(f"v_mov_b32 v{vt}, 0"); A("s_mov_b32 s97, 0")
    A.raw(f"L{name}_n2:")
    A(f"global_load_dword v{vt + 1}, v{vt}, s[98:99] sc1")
    A("s_add_u32 s97, s97, 1")
    A("s_waitcnt vmcnt(0)")
    A(f"v_readfirstlane_b32 s96, v{vt + 1}")
    A("s_cmp_gt_u32 s97, 0x40000"); A(f"s_cbranch_scc1 L{name}_n3")
    A("s_cmp_eq_u32 s96, 0"); A(f"s_cbranch_scc1 L{name}_n2")
    A.raw(f"L{name}_n3:")

def p1_common_setup(A):
    A("s_load_dwordx4 s[4:7], s[0:1], 0")
    A("s_load_dwordx4 s[64:67], s[0:1], 16")
    A("s_load_dwordx4 s[68:71], s[0:1], 40")
    A("s_load_dwordx2 s[72:73], s[0:1], 56")
    A("s_load_dwordx2 s[8:9], s[0:1], 80")
    A("s_load_dwordx2 s[98:99], s[0:1], 72")
    A("v_and_b32 v1, 63, v0")
    A("v_lshrrev_b32 v2, 6, v0")
    ids_p1(A)
    A("v_readfirstlane_b32 s22, v2")
    A("v_lshrrev_b32 v3, 4, v1")
    A("v_and_b32 v21, 15, v1")
    A("s_and_b32 s25, s22, 3")
    A("s_lshl_b32 s26, s23, 7"); A("s_lshl_b32 s27, s25, 5"); A("s_add_u32 s26, s26, s27"); A("s_lshr_b32 s27, s22, 2"); A("s_lshl_b32 s27, s27, 4"); A("s_add_u32 s26, s26, s27")
    A("s_and_b32 s19, s26, 127")

def make_rl(A, name):
    R0 = 200; RAD = 216
    RLk = [236, 64]; RAk = [230, 84]; MD = ['s16', 's18']; DUM = [231, 85]; RADk = [216, 216]; R0k = [200, 200]
    rl = f"L{name}_rl"
    ROk = [64, 88]
    def rl_setup(k):
        L = f"{rl}{k}"; RA = RAk[k]
        if k == 0:
            A("s_mul_i32 s48, s2, 7"); A("s_add_u32 s48, s48, s22"); A("s_sub_u32 s48, s48, 1")
            A("s_cmp_ge_u32 s48, 1620"); A("s_cselect_b32 s48, 4000, s48")
            A("s_cmp_eq_u32 s22, 0"); A("s_cselect_b32 s48, 4000, s48")
        else:
            A("s_lshl_b32 s48, s17, 2"); A("s_add_u32 s48, s48, s25"); A("s_add_u32 s48, s48, 1620")
        R0 = R0k[k]; RAD = RADk[k]
        A("s_mov_b32 s50, 0")
        A(f"s_cmp_ge_u32 s48, 1980"); A(f"s_cbranch_scc1 {L}_none")
        A(f"s_cmp_ge_u32 s48, 1820"); A(f"s_cbranch_scc1 {L}_wbar")
        A(f"s_cmp_ge_u32 s48, 1080"); A(f"s_cbranch_scc1 {L}_n640")
        A.raw(f"{L}_gu:")
        A("s_mov_b32 s50, 1"); A("s_mov_b32 s49, 0")
        A("s_cmp_ge_u32 s48, 540"); A("s_cselect_b32 s44, s70, s68"); A("s_cselect_b32 s45, s71, s69"); A("s_cselect_b32 s51, 1024, 0"); A("s_cselect_b32 s49, 540, s49")
        A(f"s_mov_b32 s46, {640 * 1728 * 2}"); A("s_mov_b32 s47, 0x20000")
        A("s_sub_u32 s49, s48, s49"); A("s_lshl_b32 s49, s49, 6")
        A(f"v_add_u32 v{R0}, s49, v1")
        A(f"s_mov_b32 s52, {(1 << 24) // 432 + 1}")
        A(f"v_mul_lo_u32 v{R0 + 1}, v{R0}, s52"); A(f"v_lshrrev_b32 v{R0 + 1}, 24, v{R0 + 1}")
        A(f"v_mul_u32_u24 v{R0 + 2}, 432, v{R0 + 1}"); A(f"v_sub_u32 v{R0 + 2}, v{R0}, v{R0 + 2}")
        A(f"v_lshrrev_b32 v{R0 + 3}, 2, v{R0 + 1}"); A(f"v_and_b32 v{R0 + 4}, 3, v{R0 + 1}")
        udiv_small(A, R0 + 5, R0 + 3, 5); A(f"v_mul_u32_u24 v{R0 + 6}, 5, v{R0 + 5}"); A(f"v_sub_u32 v{R0 + 6}, v{R0 + 3}, v{R0 + 6}")
        A(f"v_mul_u32_u24 v{R0 + 5}, 160, v{R0 + 5}"); A(f"v_mul_u32_u24 v{R0 + 7}, 20, v{R0 + 4}"); A(f"v_add_u32 v{R0 + 5}, v{R0 + 5}, v{R0 + 7}")
        A(f"v_lshlrev_b32 v{R0 + 6}, 3, v{R0 + 6}")
        for jj in range(8):
            A(f"v_add_u32 v{R0 + 7}, {jj}, v{R0 + 6}")
            A(f"v_add_u32 v{R0 + 8}, 60, v{R0 + 7}"); A(f"v_cmp_gt_u32 vcc, 20, v{R0 + 7}"); A(f"v_cndmask_b32 v{R0 + 7}, v{R0 + 8}, v{R0 + 7}, vcc")
            A(f"v_add_u32 v{R0 + 7}, v{R0 + 7}, v{R0 + 5}")
            A(f"v_mul_u32_u24 v{R0 + 7}, 3456, v{R0 + 7}"); A(f"v_lshl_add_u32 v{RAD + jj}, v{R0 + 2}, 3, v{R0 + 7}")
        A(f"v_lshrrev_b32 v{R0 + 7}, 2, v{R0 + 2}"); A(f"v_mul_u32_u24 v{R0 + 7}, 20, v{R0 + 7}"); A(f"v_add_u32 v{R0 + 7}, v{R0 + 7}, v{R0 + 3}")
        A(f"v_lshlrev_b32 v{R0 + 7}, 11, v{R0 + 7}")
        A(f"v_and_b32 v{R0 + 8}, 3, v{R0 + 2}"); A(f"v_lshlrev_b32 v{R0 + 8}, 6, v{R0 + 8}"); A(f"v_lshl_add_u32 v{R0 + 8}, v{R0 + 4}, 8, v{R0 + 8}")
        A(f"v_add3_u32 v{RA}, v{R0 + 7}, v{R0 + 8}, s51"); A(f"v_add_u32 v{RA}, {WGU_OFF}, v{RA}")
        A(f"s_branch {L}_done")
        A.raw(f"{L}_n640:")
        A("s_mov_b32 s49, 1080"); A(f"s_mov_b32 s46, {1728 * 640 * 2}")
        A("s_cmp_ge_u32 s48, 1620"); A("s_cselect_b32 s44, s66, s72"); A("s_cselect_b32 s45, s67, s73"); A("s_cselect_b32 s50, 3, 2"); A("s_cselect_b32 s49, 1620, s49")
        A(f"s_cselect_b32 s46, {640 * 640 * 2}, s46"); A("s_mov_b32 s47, 0x20000")
        A("s_sub_u32 s49, s48, s49"); A("s_lshl_b32 s49, s49, 6")
        A(f"v_add_u32 v{R0}, s49, v1")
        A(f"s_mov_b32 s52, {(1 << 24) // 160 + 1}")
        A(f"v_mul_lo_u32 v{R0 + 1}, v{R0}, s52"); A(f"v_lshrrev_b32 v{R0 + 1}, 24, v{R0 + 1}")
        A(f"v_mul_u32_u24 v{R0 + 2}, 160, v{R0 + 1}"); A(f"v_sub_u32 v{R0 + 2}, v{R0}, v{R0 + 2}")
        A(f"v_lshrrev_b32 v{R0 + 3}, 2, v{R0 + 1}"); A(f"v_and_b32 v{R0 + 4}, 3, v{R0 + 1}")
        A("s_cmp_eq_u32 s50, 3"); A("s_cselect_b64 s[54:55], -1, 0")
        udiv_small(A, R0 + 5, R0 + 3, 5); A(f"v_mul_u32_u24 v{R0 + 6}, 5, v{R0 + 5}"); A(f"v_sub_u32 v{R0 + 6}, v{R0 + 3}, v{R0 + 6}")
        A(f"v_mul_u32_u24 v{R0 + 5}, 160, v{R0 + 5}"); A(f"v_mul_u32_u24 v{R0 + 7}, 10, v{R0 + 4}"); A(f"v_add_u32 v{R0 + 5}, v{R0 + 5}, v{R0 + 7}")
        A(f"v_cmp_gt_u32 s[56:57], 4, v{R0 + 6}")
        A(f"v_mul_u32_u24 v{R0 + 6}, 40, v{R0 + 6}"); A(f"v_add_u32 v{R0 + 6}, v{R0 + 6}, v{R0 + 5}")
        A(f"v_lshlrev_b32 v{R0 + 9}, 5, v{R0 + 3}"); A(f"v_lshl_add_u32 v{R0 + 9}, v{R0 + 4}, 2, v{R0 + 9}")
        for jj in range(8):
            A(f"v_add_u32 v{R0 + 7}, {jj}, v{R0 + 6}")
            A(f"v_add_u32 v{R0 + 8}, {40 * (jj >> 1) + 8 + (jj & 1)}, v{R0 + 5}")
            A(f"v_cndmask_b32 v{R0 + 7}, v{R0 + 8}, v{R0 + 7}, s[56:57]")
            A(f"v_add_u32 v{R0 + 8}, {16 * (jj >> 2) + (jj & 3)}, v{R0 + 9}")
            A(f"v_cndmask_b32 v{R0 + 7}, v{R0 + 8}, v{R0 + 7}, s[54:55]")
            A(f"v_mul_u32_u24 v{R0 + 7}, 1280, v{R0 + 7}"); A(f"v_lshl_add_u32 v{RAD + jj}, v{R0 + 2}, 3, v{R0 + 7}")
        udiv_small(A, R0 + 7, R0 + 2, 20); A(f"v_mul_u32_u24 v{R0 + 8}, 20, v{R0 + 7}"); A(f"v_sub_u32 v{R0 + 8}, v{R0 + 2}, v{R0 + 8}")
        udiv_small(A, R0 + 9, R0 + 8, 5); A(f"v_mul_u32_u24 v{R0 + 5}, 5, v{R0 + 9}"); A(f"v_sub_u32 v{R0 + 5}, v{R0 + 8}, v{R0 + 5}")
        A(f"s_mov_b32 s53, {WD_OFF}"); A("s_cmp_eq_u32 s50, 3"); A("s_cselect_b32 s52, 20, 54"); A(f"s_cselect_b32 s53, {WO_OFF}, s53")
        A(f"v_mul_lo_u32 v{R0 + 7}, v{R0 + 7}, s52"); A(f"v_add_u32 v{R0 + 7}, v{R0 + 7}, v{R0 + 3}")
        A(f"v_mul_u32_u24 v{R0 + 7}, 5, v{R0 + 7}"); A(f"v_add_u32 v{R0 + 7}, v{R0 + 7}, v{R0 + 5}"); A(f"v_lshlrev_b32 v{R0 + 7}, 10, v{R0 + 7}")
        A(f"v_lshlrev_b32 v{R0 + 8}, 8, v{R0 + 4}"); A(f"v_lshl_add_u32 v{R0 + 8}, v{R0 + 9}, 6, v{R0 + 8}")
        A(f"v_add3_u32 v{RA}, v{R0 + 7}, v{R0 + 8}, s53")
        A(f"s_branch {L}_done")
        A.raw(f"{L}_wbar:")
        A("s_mov_b32 s50, 4")
        A("s_mov_b32 s44, s66"); A("s_mov_b32 s45, s67"); A(f"s_mov_b32 s46, {640 * 640 * 2}"); A("s_mov_b32 s47, 0x20000")
        A("s_sub_u32 s49, s48, 1820"); A("s_lshl_b32 s49, s49, 2")
        A(f"v_add_u32 v{R0}, s49, v3")
        A(f"v_mul_u32_u24 v{R0 + 1}, 1280, v{R0}"); A(f"v_lshl_add_u32 v{RAD}, v21, 4, v{R0 + 1}")
        for n in range(1, 8): A(f"v_mov_b32 v{RAD + n}, v{RAD}")
        udiv_small(A, R0 + 1, R0, 160); A(f"v_mul_u32_u24 v{R0 + 2}, 160, v{R0 + 1}"); A(f"v_sub_u32 v{R0 + 2}, v{R0}, v{R0 + 2}")
        udiv_small(A, R0 + 3, R0 + 2, 40); A(f"v_mul_u32_u24 v{R0 + 8}, 40, v{R0 + 3}"); A(f"v_sub_u32 v{R0 + 8}, v{R0 + 2}, v{R0 + 8}")
        udiv_small(A, R0 + 9, R0 + 8, 10); A(f"v_mul_u32_u24 v{R0 + 2}, 10, v{R0 + 9}"); A(f"v_sub_u32 v{R0 + 2}, v{R0 + 8}, v{R0 + 2}")
        A(f"v_cmp_gt_u32 vcc, 8, v{R0 + 2}")
        A(f"v_mov_b32 v{R0 + 8}, 4"); A(f"v_cndmask_b32 v{R0 + 8}, v{R0 + 8}, v{R0 + 3}, vcc")
        A(f"v_lshl_add_u32 v{R0 + 4}, v{R0 + 3}, 1, v{R0 + 2}"); A(f"v_subrev_u32 v{R0 + 4}, 8, v{R0 + 4}")
        A(f"v_cndmask_b32 v{R0 + 3}, v{R0 + 4}, v{R0 + 2}, vcc")
        A(f"v_mul_u32_u24 v{R0 + 1}, 5, v{R0 + 1}"); A(f"v_add_u32 v{R0 + 1}, v{R0 + 1}, v{R0 + 8}")
        A(f"v_lshl_add_u32 v{R0 + 1}, v{R0 + 1}, 2, v{R0 + 9}"); A(f"v_lshl_add_u32 v{R0 + 1}, v{R0 + 1}, 3, v{R0 + 3}")
        A(f"v_lshlrev_b32 v{RA}, 1, v{R0 + 1}"); A(f"v_add_u32 v{RA}, {WBAR_OFF}, v{RA}")
        A(f"s_branch {L}_done")
        A.raw(f"{L}_none:")
        A("s_mov_b32 s44, s8"); A("s_mov_b32 s45, s9"); A("s_mov_b32 s46, 4096"); A("s_mov_b32 s47, 0x20000")
        for n in range(8): A(f"v_lshlrev_b32 v{RAD + n}, 2, v1")
        A(f"v_mov_b32 v{RA}, 0")
        A.raw(f"{L}_done:")
        A(f"s_mov_b32 {MD[k]}, s50")
    def rl_issue(k):
        L = f"{rl}{k}"; RL = RLk[k]; RAD = RADk[k]
        vmb = list(A.vm)
        A("s_cmp_eq_u32 s50, 4"); A(f"s_cbranch_scc1 {L}_i4")
        for jj in range(8): A(f"buffer_load_dwordx2 {v(RL + 2 * jj, 2)}, v{RAD + jj}, s[44:47], 0 offen")
        A(f"s_branch {L}_idone")
        A.raw(f"{L}_i4:")
        for n in range(5): A(f"buffer_load_dwordx4 {v(RL + 4 * n, 4)}, v{RAD}, s[44:47], 0 offen offset:{256 * n}")
        for n in range(3): A(f"buffer_load_dword v{DUM[k]}, v{RAD}, s[44:47], 0 offen")
        A.raw(f"{L}_idone:")
        A.vm = vmb + [('rl', k)] * 8
    def rl_finish(k, sc):
        L = f"{rl}{k}"; RL = RLk[k]; RA = RAk[k]
        A.vm_wait(('rl', k))
        vmb = list(A.vm)
        RO = ROk[k]
        A(f"s_cmp_eq_u32 {MD[k]}, 4"); A(f"s_cbranch_scc1 {L}_wb2")
        A(f"s_cmp_eq_u32 {MD[k]}, 0"); A(f"s_cbranch_scc1 {L}_f0")
        A("s_mov_b32 s52, 0x05040100"); A("s_mov_b32 s53, 0x07060302")
        for e_ in range(4):
            for m_ in range(4):
                lo = RL + 2 * (2 * m_) + (e_ >> 1); hi = RL + 2 * (2 * m_ + 1) + (e_ >> 1)
                A(f"v_perm_b32 v{RO + 4 * e_ + m_}, v{hi}, v{lo}, s{52 + (e_ & 1)}")
        if k == 0:
            A(f"s_lshl_b32 s52, s22, 12"); A(f"s_add_u32 s52, s52, 98304")
        else:
            A(f"s_lshl_b32 s52, s25, 12"); A(f"s_add_u32 s52, s52, 95232")
        A(f"v_lshlrev_b32 v{RO + 16}, 6, v1"); A(f"v_add_u32 v{RO + 16}, s52, v{RO + 16}")
        for e_ in range(4): A(f"ds_write_b128 v{RO + 16}, {v(RO + 4 * e_, 4)} offset:{16 * e_}")
        A(f"v_lshrrev_b32 v{RO + 17}, 2, v1"); A(f"v_lshlrev_b32 v{RO + 17}, 2, v{RO + 17}")
        for i_ in range(4):
            A(f"v_add_u32 v{RO + 18}, {64 * i_}, v{RO + 17}")
            A(f"ds_bpermute_b32 v{RO + 20 + i_}, v{RO + 18}, v{RA}")
        A(f"v_lshlrev_b32 v{RO + 16}, 4, v1"); A(f"v_add_u32 v{RO + 16}, s52, v{RO + 16}")
        A("s_waitcnt lgkmcnt(0)")
        for i_ in range(4): A(f"ds_read_b128 {v(RO + 4 * i_, 4)}, v{RO + 16} offset:{1024 * i_}")
        A(f"v_and_b32 v{RO + 17}, 3, v1"); A(f"v_lshlrev_b32 v{RO + 17}, 4, v{RO + 17}")
        for i_ in range(4): A(f"v_add_u32 v{RO + 20 + i_}, v{RO + 20 + i_}, v{RO + 17}")
        A("s_waitcnt lgkmcnt(0)")
        for i_ in range(4):
            A(f"buffer_store_dwordx4 {v(RO + 4 * i_, 4)}, v{RO + 20 + i_}, s[12:15], 0 offen{sc}")
        A(f"s_branch {L}_fin")
        A.raw(f"{L}_wb2:")
        A(f"v_mov_b32 v{RO}, 0"); A(f"v_mov_b32 v{RO + 1}, 0")
        for n in range(20):
            A(f"v_lshlrev_b32 v{RO + 2}, 16, v{RL + n}"); A(f"v_and_b32 v{RO + 3}, 0xffff0000, v{RL + n}")
            A(f"v_add_f32 v{RO}, v{RO}, v{RO + 2}"); A(f"v_add_f32 v{RO + 1}, v{RO + 1}, v{RO + 3}")
        A(f"v_add_f32 v{RO}, v{RO}, v{RO + 1}")
        for sh in (8, 4, 2, 1):
            A(f"v_add_f32_dpp v{RO + 1}, v{RO}, v{RO} row_ror:{sh} row_mask:0xf bank_mask:0xf")
            A(f"v_mov_b32 v{RO}, v{RO + 1}")
        A(f"v_mul_f32 v{RO}, {f32hex(1.0 / 640)}, v{RO}")
        A(f"v_cvt_pk_bf16_f32 v{RO}, v{RO}, v{RO}")
        for n in range(4): A(f"buffer_store_short v{RO}, v{RA}, s[12:15], 0 offen{sc}")
        A(f"s_branch {L}_fin")
        A.raw(f"{L}_f0:")
        A(f"v_mov_b32 v{RO}, {TS_OFF + (1 << 20) - 256}")
        for n in range(4): A(f"buffer_store_dword v{RO}, v{RO}, s[12:15], 0 offen")
        A.raw(f"{L}_fin:")
        A.vm = vmb + [('rs', k)] * 4

    return rl_setup, rl_issue, rl_finish

def p1_H(A, name, RLC=1):
    T0 = 148
    A("v_lshrrev_b32 v22, 3, v1"); A("v_and_b32 v23, 7, v1"); A("v_xor_b32 v23, v23, v22")
    A("v_mul_u32_u24 v19, 1280, v22"); A("v_lshl_add_u32 v19, v23, 4, v19")
    udiv_small(A, T0, 1, 10); A(f"v_mul_u32_u24 v{T0 + 1}, 10, v{T0}"); A(f"v_sub_u32 v{T0 + 1}, v1, v{T0 + 1}")
    A(f"v_lshlrev_b32 v{T0 + 2}, 4, v{T0 + 1}")
    A(f"v_add_u32 v{T0 + 3}, {1280 - 80}, v{T0 + 2}")
    A(f"v_cmp_gt_u32 vcc, 5, v{T0 + 1}")
    A(f"v_cndmask_b32 v{T0 + 2}, v{T0 + 3}, v{T0 + 2}, vcc")
    A(f"v_mul_u32_u24 v20, 3840, v{T0}"); A(f"v_add_u32 v20, v20, v{T0 + 2}")
    A(f"v_subrev_u32 v{T0 + 4}, 40, v1")
    A(f"v_max_i32 v{T0 + 4}, 0, v{T0 + 4}"); A(f"v_min_u32 v{T0 + 4}, 19, v{T0 + 4}")
    table_lookup3(A, T0 + 5, T0 + 4, pack3(INV), T0 + 6)
    udiv_small(A, T0 + 8, T0 + 4, 5)
    A(f"v_mul_u32_u24 v{T0 + 8}, 3840, v{T0 + 8}")
    A(f"v_lshl_add_u32 v{T0 + 8}, v{T0 + 5}, 4, v{T0 + 8}"); A(f"v_add_u32 v{T0 + 8}, 2560, v{T0 + 8}")
    A("v_cmp_gt_u32 vcc, 40, v1")
    A(f"v_cndmask_b32 v20, v{T0 + 8}, v20, vcc")
    A("s_lshl_b32 s27, s23, 7"); A("s_lshl_b32 s28, s25, 5"); A("s_add_u32 s27, s27, s28"); A("s_mul_i32 s27, s27, 1280")
    A("s_mul_i32 s28, s24, 80"); A(f"s_mul_i32 s29, s25, {16 * 3840}"); A("s_add_u32 s28, s28, s29")
    A("s_lshl_b32 s29, s25, 12")
    A("s_mul_i32 s30, s25, 3840"); A("s_add_u32 s30, s30, 16384")
    A("s_waitcnt lgkmcnt(0)")
    A("s_mov_b32 s36, s4"); A("s_mov_b32 s37, s5"); A(f"s_mov_b32 s38, {S * D * 2}"); A("s_mov_b32 s39, 0x20000")
    A("s_mov_b32 s40, s6"); A("s_mov_b32 s41, s7"); A(f"s_mov_b32 s42, {640 * 1920 * 2}"); A("s_mov_b32 s43, 0x20000")
    A("s_mov_b32 s12, s8"); A("s_mov_b32 s13, s9"); A(f"s_mov_b32 s14, {WS_USED}"); A("s_mov_b32 s15, 0x20000")
    A("s_mov_b32 s34, -1"); A("s_mov_b32 s35, 0x0fffffff")
    def chunk_dma(c):
        slot = c % NSLOT
        for b in range(4):
            A(f"s_add_u32 m0, s30, {slot * SLOT + b * 960}")
            A(f"s_add_u32 s32, s28, {c * 64 * 3840 + b * 4 * 3840}")
            A("s_mov_b64 exec, s[34:35]")
            A(f"buffer_load_dwordx4 v20, s[40:43], s32 offen lds", tag=('c', c))
            A("s_mov_b64 exec, -1")
            A(f"s_add_u32 m0, s29, {slot * SLOT + b * 1024}")
            A(f"s_add_u32 s32, s27, {c * 128 + b * 10240}")
            A(f"buffer_load_dwordx4 v19, s[36:39], s32 offen lds", tag=('c', c))
    A("s_mov_b32 s33, 0x3f803f80")
    PT = 176
    def phi_issue():
        A(f"v_subrev_u32 v{PT + 1}, 256, v0")
        A(f"v_mov_b32 v{PT}, 0")
        A(f"v_lshlrev_b32 v{PT + 2}, 2, v{PT + 1}"); A(f"v_add_u32 v{PT + 2}, {ZP}, v{PT + 2}")
        A(f"ds_write_b32 v{PT + 2}, v{PT}")
        A("s_mul_i32 s31, s24, 1600")
        for rep in range(4):
            e = 24 + 8 * rep
            A(f"v_add_u32 v{e}, {256 * rep}, v{PT + 1}"); A(f"v_min_u32 v{e}, 959, v{e}")
            udiv_small(A, e + 1, e, 24, 16)
            A(f"v_mul_u32_u24 v{e + 2}, 24, v{e + 1}"); A(f"v_sub_u32 v{e + 2}, v{e}, v{e + 2}")
            udiv_small(A, e + 3, e + 1, 20, 16)
            A(f"v_mul_u32_u24 v{e + 4}, 20, v{e + 3}"); A(f"v_sub_u32 v{e + 4}, v{e + 1}, v{e + 4}")
            A(f"v_mul_u32_u24 v{e + 5}, 800, v{e + 3}"); A(f"v_mul_u32_u24 v{e + 6}, 40, v{e + 2}")
            A(f"v_add3_u32 v{e + 5}, v{e + 5}, v{e + 6}, s31"); A(f"v_lshl_add_u32 v{e + 5}, v{e + 4}, 1, v{e + 5}")
            A(f"v_min_u32 v{e + 5}, {32 * 800 - 2}, v{e + 5}")
            A(f"global_load_ushort v{e + 6}, v{e + 5}, s[64:65]", tag='phi')
            A(f"v_lshlrev_b32 v{e}, 1, v{e}"); A(f"v_add_u32 v{e}, {PHT}, v{e}")
    rl_setup, rl_issue, rl_finish = make_rl(A, name)
    sc = A.rl_sc
    import os
    AH = int(os.environ.get("P1AH", "3"))
    for c in range(AH): chunk_dma(c)
    A.stamp(1); A.stamp(2)
    issued = AH
    for c in range(NCH):
        A.vm_wait(('c', c))
        if os.environ.get("P1FINE"):
            A.stamps = True; A.stamp(c + 1); A.stamps = False
        A("s_barrier")
        if c == 0: A.stamp(3)
        if issued < NCH:
            chunk_dma(issued); issued += 1
        if getattr(A, 'nonce_c', False) and c in (7, 8):
            import rl2
            if c == 7:
                A("v_lshlrev_b32 v26, 3, v1"); A("v_mul_u32_u24 v28, 1280, v3"); A("v_lshl_add_u32 v28, v21, 4, v28")
                A("s_lshl_b32 s16, s2, 2"); A("s_add_u32 s16, s16, s25"); A("s_add_u32 s17, s16, 1024")
                rl2.issue(A, f"L{name}_r0", 16, 236, 26, 28, 27)
            else:
                rl2.issue(A, f"L{name}_r1", 17, 152, 26, 28, 27)
        if c == 8 and not getattr(A, 'nonce_c', False):
            A("v_mov_b32 v175, 0")
            A("global_load_dword v175, v175, s[98:99] sc1", tag='nz')
    A("s_waitcnt lgkmcnt(0)")
    A.stamp(4)
    A("s_barrier")
    A.rl_fns = (rl_setup, rl_issue, rl_finish)

def phi_build_C(A):
    PT = 224
    A(f"v_mov_b32 v{PT}, 0")
    A(f"v_lshlrev_b32 v{PT + 2}, 2, v0"); A(f"v_add_u32 v{PT + 2}, {ZP}, v{PT + 2}")
    A(f"ds_write_b32 v{PT + 2}, v{PT}")
    A("s_mul_i32 s31, s24, 1600")
    for rep in range(4):
        e = 48 + 8 * rep
        A(f"v_add_u32 v{e}, {256 * rep}, v0"); A(f"v_min_u32 v{e}, 959, v{e}")
        udiv_small(A, e + 1, e, 24, 16)
        A(f"v_mul_u32_u24 v{e + 2}, 24, v{e + 1}"); A(f"v_sub_u32 v{e + 2}, v{e}, v{e + 2}")
        udiv_small(A, e + 3, e + 1, 20, 16)
        A(f"v_mul_u32_u24 v{e + 4}, 20, v{e + 3}"); A(f"v_sub_u32 v{e + 4}, v{e + 1}, v{e + 4}")
        A(f"v_mul_u32_u24 v{e + 5}, 800, v{e + 3}"); A(f"v_mul_u32_u24 v{e + 6}, 40, v{e + 2}")
        A(f"v_add3_u32 v{e + 5}, v{e + 5}, v{e + 6}, s31"); A(f"v_lshl_add_u32 v{e + 5}, v{e + 4}, 1, v{e + 5}")
        A(f"v_min_u32 v{e + 5}, {32 * 800 - 2}, v{e + 5}")
        A(f"global_load_ushort v{e + 6}, v{e + 5}, s[64:65]", tag='phi')
        A(f"v_lshlrev_b32 v{e}, 1, v{e}"); A(f"v_add_u32 v{e}, {PHT}, v{e}")
    A("s_waitcnt vmcnt(0)")
    for rep in range(4):
        e = 48 + 8 * rep
        A(f"v_cmp_gt_u32 vcc, 20, v{e + 2}"); A(f"v_cndmask_b32 v{e + 6}, 0, v{e + 6}, vcc")
        A(f"ds_write_b16 v{e}, v{e + 6}")

def p1_C(A, name):
    T0 = 148
    A("v_lshrrev_b32 v22, 2, v21"); A("v_and_b32 v23, 3, v21")
    AQ = [4, 5, 6]; AV = [[7, 8, 9], [10, 11, 12], [13, 14, 15]]; AX = [[16, 17, 18], [24, 25, 26]]; AC = [[27, 28, 29], [176, 177, 178]]
    SB = [0, 2 * SLOT, 4 * SLOT]
    A(f"v_mul_u32_u24 v4, 1920, v3"); A(f"v_mul_u32_u24 v{T0}, 160, v22"); A(f"v_mul_u32_u24 v{T0 + 1}, 40, v23")
    A(f"v_add3_u32 v4, v4, v{T0}, v{T0 + 1}"); A("v_add_u32 v4, 16384, v4")
    for b in range(3):
        if b < 2:
            A(f"v_lshrrev_b32 v{T0}, 1, v23"); A(f"v_add_u32 v{T0}, {2 * b}, v{T0}")
        else:
            A(f"v_mov_b32 v{T0}, 4")
        A(f"v_mul_u32_u24 v{T0 + 1}, 5, v22"); A(f"v_add_u32 v{T0}, v{T0}, v{T0 + 1}")
        table_lookup3(A, T0 + 2, T0, pack3(POS), T0 + 4)
        A(f"v_mul_u32_u24 v{T0}, 1920, v3"); A(f"v_mul_u32_u24 v{T0 + 1}, 80, v22")
        A(f"v_add_u32 v{T0}, v{T0}, v{T0 + 1}"); A(f"v_lshl_add_u32 v{T0}, v{T0 + 2}, 4, v{T0}")
        A(f"v_and_b32 v{T0 + 1}, 1, v23"); A(f"v_lshl_add_u32 v{T0}, v{T0 + 1}, 3, v{T0}")
        A(f"v_add_u32 v{AV[b][0]}, {16384 + 640}, v{T0}")
    A("s_lshl_b32 s29, s25, 12")
    A(f"v_lshrrev_b32 v{T0}, 3, v21"); A(f"v_and_b32 v{T0 + 1}, 7, v21"); A(f"v_xor_b32 v{T0 + 2}, v3, v{T0 + 1}")
    A(f"v_lshlrev_b32 v{T0}, 10, v{T0}"); A(f"v_lshl_add_u32 v{T0}, v{T0 + 1}, 7, v{T0}"); A(f"v_add_u32 v{T0}, s29, v{T0}")
    A(f"v_lshl_add_u32 v16, v{T0 + 2}, 4, v{T0}")
    A(f"v_xor_b32 v{T0 + 2}, 4, v{T0 + 2}"); A(f"v_lshl_add_u32 v24, v{T0 + 2}, 4, v{T0}")
    for q in range(2):
        d = AC[q][0]
        A(f"s_lshl_b32 s31, s25, 1"); A(f"s_add_u32 s31, s31, {q}")
        A("s_lshl_b32 s32, s31, 3"); A(f"v_add_u32 v{d}, s32, v4")
        for b in range(3):
            A(f"s_cmp_eq_u32 s31, {5 + b}"); A("s_cselect_b64 vcc, -1, 0")
            A(f"v_cndmask_b32 v{d}, v{d}, v{AV[b][0]}, vcc")
    for regs in [AQ] + AV + AX + AC:
        for k in (1, 2): A(f"v_add_u32 v{regs[k]}, {SB[k]}, v{regs[0]}")
    XF = 32
    WF = 48
    ACC = 112
    CF = 180
    CS = 196
    SX = 204
    GR = 212
    ONES = 220
    for k in range(4): A(f"v_mov_b32 v{ONES + k}, 0x3f803f80")
    A("s_waitcnt lgkmcnt(0)")
    A("s_mov_b32 s12, s8"); A("s_mov_b32 s13, s9"); A(f"s_mov_b32 s14, {WS_USED}"); A("s_mov_b32 s15, 0x20000")
    nonce_publish(A, name, 228)
    phi_build_C(A)
    getattr(A, 'code_pf', lambda: None)()
    import os
    if not os.environ.get("FINE"): A.stamp(1); A.stamp(2)
    SBI = lambda slot: (0, slot * SLOT) if slot < 2 else ((1, (slot - 2) * SLOT) if slot < 4 else (2, 0))
    for c in range(NCH + 1):
        A("s_waitcnt lgkmcnt(0)")
        import os
        if os.environ.get("FINE") and c in (2, 4, 6, 8): A.stamp({2: 1, 4: 2, 6: 5, 8: 6}[c])
        A("s_barrier")
        if os.environ.get("P1FINE"):
            A.stamps = True; A.stamp(c + 1); A.stamps = False
        if c == 0: A.stamp(3)
        if os.environ.get("FINE") and c == 8: A.stamp(7)
        if c < NCH: k, off = SBI(c % NSLOT)
        if c == 7 and getattr(A, 'nonce_c', False):
            A("v_mov_b32 v253, 0"); A("global_load_dword v253, v253, s[98:99] sc1")
        for e in range(2):
            first = (c == 1 and e == 0)
            mf = []
            if c >= 1:
                for t in range(8):
                    for a_ in range(2):
                        acc = v(ACC + (a_ * 8 + t) * 4, 4)
                        mf.append((f"v_mfma_f32_16x16x32_bf16 {acc}, {v(WF + (e * 8 + t) * 4, 4)}, {v(XF + (e * 2 + a_) * 4, 4)}, {acc if not first else 0}", ('w', t) if a_ == 1 else None))
                for q in range(2):
                    mf.append((f"v_mfma_f32_16x16x32_bf16 {v(CS + 4 * q, 4)}, {v(CF + (e * 2 + q) * 4, 4)}, {v(ONES, 4)}, {v(CS + 4 * q, 4) if not first else 0}", ('c', q)))
                for a_ in range(2):
                    x = v(XF + (e * 2 + a_) * 4, 4)
                    mf.append((f"v_mfma_f32_16x16x32_bf16 {v(SX + 4 * a_, 4)}, {v(ONES, 4)}, {x}, {v(SX + 4 * a_, 4) if not first else 0}", None))
                    mf.append((f"v_mfma_f32_16x16x32_bf16 {v(GR + 4 * a_, 4)}, {x}, {x}, {v(GR + 4 * a_, 4) if not first else 0}", ('x', a_)))
            else:
                mf = [(None, ('w', t)) for t in range(8)] + [(None, ('c', q)) for q in range(2)] + [(None, ('x', a_)) for a_ in range(2)]
            pend = []
            for txt, rel in mf:
                if txt: A(txt)
                if pend: A(pend.pop(0))
                if rel and c < NCH:
                    kind, i = rel
                    rr = []
                    if kind == 'x':
                        rr = [f"ds_read_b128 {v(XF + (e * 2 + i) * 4, 4)}, v{AX[e][k]} offset:{off + 2048 * i}"]
                    else:
                        for hf in range(2):
                            imm = off + e * 7680 + hf * 960
                            if kind == 'c': rr.append(f"ds_read_b64_tr_b16 {v(CF + (e * 2 + i) * 4 + 2 * hf, 2)}, v{AC[i][k]} offset:{imm}")
                            elif i < 5: rr.append(f"ds_read_b64_tr_b16 {v(WF + (e * 8 + i) * 4 + 2 * hf, 2)}, v{AQ[k]} offset:{imm + 8 * i}")
                            else: rr.append(f"ds_read_b64_tr_b16 {v(WF + (e * 8 + i) * 4 + 2 * hf, 2)}, v{AV[i - 5][k]} offset:{imm}")
                    A(rr[0])
                    pend += rr[1:]
            while pend: A(pend.pop(0))
    A.stamp(4)
    if getattr(A, 'nonce_c', False):
        import rl2
        A("s_waitcnt vmcnt(0)"); A("v_readfirstlane_b32 s96, v253")
        A("v_lshlrev_b32 v224, 3, v1"); A("v_mul_u32_u24 v226, 1280, v3"); A("v_lshl_add_u32 v226, v21, 4, v226")
        A("s_lshl_b32 s16, s2, 2"); A("s_add_u32 s16, s16, s25"); A("s_add_u32 s16, s16, 2048"); A("s_mov_b32 s17, 4000")
        rl2.issue(A, f"L{name}_r2", 16, 236, 224, 226, 30)
    A(f"s_mul_i32 s31, s25, 9216"); A(f"v_lshlrev_b32 v{T0 + 80}, 4, v1"); A(f"v_add_u32 v{T0 + 80}, s31, v{T0 + 80}")
    HA = T0 + 80
    for t in range(8): A(f"ds_write_b128 v{HA}, {v(ACC + 32 + 4 * t, 4)} offset:{HO + 1024 * t}")
    A(f"ds_write_b128 v{HA}, {v(GR + 4, 4)} offset:{HO - 4096 if False else HO + 8192}") if False else None
    A(f"s_lshl_b32 s31, s25, 11"); A(f"s_add_u32 s31, s31, {HO2}"); A(f"v_lshlrev_b32 v{HA + 1}, 4, v1"); A(f"v_add_u32 v{HA + 1}, s31, v{HA + 1}")
    A(f"ds_write_b128 v{HA + 1}, {v(GR + 4, 4)}")
    A(f"ds_write_b128 v{HA + 1}, {v(SX + 4, 4)} offset:1024")
    A(f"v_lshlrev_b32 v{HA + 2}, 4, v3"); A(f"s_lshl_b32 s31, s25, 7"); A(f"s_add_u32 s31, s31, {CSA}"); A(f"v_add_u32 v{HA + 2}, s31, v{HA + 2}")
    for q in range(2):
        A(f"ds_write_b128 v{HA + 2}, {v(CS + 4 * q, 4)} offset:{64 * q}")
    return dict(ACC=ACC, SX=SX, GR=GR)

HO2 = HO + 4 * 9216

def p1_epilogue(A, name, R, fused):
    ACC, SX, GR = R['ACC'], R['SX'], R['GR']
    E = 40; ST = 32
    A(f"v_and_b32 v{ST + 1}, 3, v21")
    A(f"v_cmp_eq_u32 vcc, 1, v{ST + 1}"); A(f"v_cndmask_b32 v{ST + 2}, v{GR}, v{GR + 1}, vcc")
    A(f"v_cmp_eq_u32 vcc, 2, v{ST + 1}"); A(f"v_cndmask_b32 v{ST + 2}, v{ST + 2}, v{GR + 2}, vcc")
    A(f"v_cmp_eq_u32 vcc, 3, v{ST + 1}"); A(f"v_cndmask_b32 v{ST + 2}, v{ST + 2}, v{GR + 3}, vcc")
    A(f"v_lshrrev_b32 v{ST + 1}, 2, v21"); A(f"v_cmp_eq_u32 vcc, v{ST + 1}, v3"); A(f"v_cndmask_b32 v{ST + 2}, 0, v{ST + 2}, vcc")
    CSR = E + 4
    A(f"v_lshlrev_b32 v{E}, 4, v3"); A(f"v_add_u32 v{E}, {CSA}, v{E}")
    for t in range(8): A(f"ds_read_b128 {v(CSR + 4 * t, 4)}, v{E} offset:{64 * t}")
    xlane_sum_g(A, ST + 2, ST + 3)
    MEAN = ST; VAR = ST + 2
    A(f"v_mul_f32 v{MEAN}, {f32hex(1.0 / 640)}, v{SX}")
    A(f"v_mul_f32 v{VAR}, {f32hex(1.0 / 640)}, v{VAR}")
    A(f"v_fma_f32 v{VAR}, -v{MEAN}, v{MEAN}, v{VAR}"); A(f"v_max_f32 v{VAR}, 0, v{VAR}")
    bf16_round(A, VAR, VAR, ST + 1); A(f"v_add_f32 v{VAR}, {f32hex(1e-5)}, v{VAR}"); bf16_round(A, VAR, VAR, ST + 1)
    A(f"v_sqrt_f32 v{VAR}, v{VAR}"); bf16_round(A, VAR, VAR, ST + 1); A(f"v_rcp_f32 v{VAR}, v{VAR}")
    bf16_round(A, ST + 1, MEAN, ST + 3)
    RSTD = VAR; MB = ST + 1
    A("s_cmp_lg_u32 s24, 0"); A(f"s_cbranch_scc1 L{name}_nomean")
    A(f"v_add_u32 v{E + 1}, s26, v21"); A(f"v_lshlrev_b32 v{E + 1}, 2, v{E + 1}"); A(f"s_mov_b32 s31, {MEAN1_OFF}")
    A(f"buffer_store_dword v{MEAN}, v{E + 1}, s[12:15], s31 offen{A.rl_sc}")
    A.raw(f"L{name}_nomean:")
    PA = E + 1
    A(f"v_lshrrev_b32 v{E + 2}, 2, v21"); A(f"v_and_b32 v{E + 3}, 3, v21"); A(f"v_mul_u32_u24 v{E + 3}, 48, v{E + 3}")
    A(f"v_and_b32 v{PA}, 1, v3"); A(f"v_mul_u32_u24 v{PA}, 960, v{PA}"); A(f"v_add_u32 v{PA}, v{PA}, v{E + 3}"); A(f"v_add_u32 v{PA}, {PHT}, v{PA}")
    A(f"v_cmp_eq_u32 vcc, v{E + 2}, v3"); A(f"v_mov_b32 v{E + 3}, {ZP}"); A(f"v_cndmask_b32 v{PA}, v{E + 3}, v{PA}, vcc")
    PF = 176
    for t in range(5):
        for s_ in range(3):
            A(f"ds_read_b128 {v(PF + (t * 3 + s_) * 4, 4)}, v{PA} offset:{t * 192 + s_ * 16}")
    A("s_waitcnt lgkmcnt(15)")
    for i in range(32): A(f"v_fma_f32 v{ACC + i}, -v{MB}, v{CSR + i}, v{ACC + i}")
    for i in range(20, 32, 2): A(f"v_pk_mul_f32 {v(ACC + i, 2)}, {v(ACC + i, 2)}, {v(RSTD, 2)} op_sel_hi:[1,0]")
    QP = 76; VP = 88
    for p in range(10): A(f"v_cvt_pk_bf16_f32 v{QP + p}, v{ACC + 2 * p}, v{ACC + 2 * p + 1}")
    A(f"v_mov_b32 v{QP + 10}, 0"); A(f"v_mov_b32 v{QP + 11}, 0")
    for p in range(6): A(f"v_cvt_pk_bf16_f32 v{VP + p}, v{ACC + 20 + 2 * p}, v{ACC + 21 + 2 * p}")
    A(f"v_cmp_eq_u32 vcc, 2, v3"); A(f"v_mov_b32 v{E + 2}, 0x3f80"); A(f"v_cndmask_b32 v{E + 2}, 0, v{E + 2}, vcc")
    A(f"v_cmp_gt_u32 vcc, 2, v3"); A(f"v_cndmask_b32 v{VP + 4}, v{E + 2}, v{VP + 4}, vcc"); A(f"v_cndmask_b32 v{VP + 5}, 0, v{VP + 5}, vcc")
    A("s_waitcnt lgkmcnt(0)")
    P = ACC
    for s_ in range(3):
        for t in range(5):
            A(f"v_mfma_f32_16x16x32_bf16 {v(P + 4 * t, 4)}, {v(PF + (t * 3 + s_) * 4, 4)}, {v(QP + 4 * s_, 4)}, {v(P + 4 * t, 4) if s_ > 0 else 0}")
    A(f"v_add_u32 v{E + 2}, s19, v21")
    A(f"v_mul_u32_u24 v{E + 3}, 96, v{E + 2}"); A(f"v_lshl_add_u32 v{E + 3}, v3, 3, v{E + 3}")
    for b in range(3): A(f"ds_write_b64 v{E + 3}, {v(VP + 2 * b, 2)} offset:{VST + 32 * b}")
    MX = 94; MN = 95; SP = 96; SN = 97; TM = 98; SL = 100
    A(f"v_mul_f32 v{SL}, {f32hex(L2E)}, v{RSTD}")
    A(f"v_max3_f32 v{MX}, v{P}, v{P + 1}, v{P + 2}"); A(f"v_min3_f32 v{MN}, v{P}, v{P + 1}, v{P + 2}")
    for i in range(3, 19, 2):
        A(f"v_max3_f32 v{MX}, v{MX}, v{P + i}, v{P + i + 1}"); A(f"v_min3_f32 v{MN}, v{MN}, v{P + i}, v{P + i + 1}")
    A(f"v_max_f32 v{MX}, v{MX}, v{P + 19}"); A(f"v_min_f32 v{MN}, v{MN}, v{P + 19}")
    A(f"v_mul_f32 v{MX}, v{SL}, v{MX}"); A(f"v_mul_f32 v{MN}, v{SL}, v{MN}")
    EP = PF; EN = PF + 20
    for i in range(20):
        A(f"v_fma_f32 v{EP + i}, v{P + i}, v{SL}, -v{MX}")
        A(f"v_fma_f32 v{EN + i}, -v{P + i}, v{SL}, v{MN}")
    for i in range(20):
        A(f"v_exp_f32 v{EP + i}, v{EP + i}"); A(f"v_exp_f32 v{EN + i}, v{EN + i}")
    A(f"v_pk_add_f32 {v(SP, 2)}, {v(EP, 2)}, {v(EP + 2, 2)}"); A(f"v_pk_add_f32 {v(TM, 2)}, {v(EN, 2)}, {v(EN + 2, 2)}")
    for i in range(4, 20, 2):
        A(f"v_pk_add_f32 {v(SP, 2)}, {v(SP, 2)}, {v(EP + i, 2)}"); A(f"v_pk_add_f32 {v(TM, 2)}, {v(TM, 2)}, {v(EN + i, 2)}")
    A(f"v_add_f32 v{SP}, v{SP}, v{SP + 1}"); A(f"v_add_f32 v{TM}, v{TM}, v{TM + 1}")
    A(f"v_rcp_f32 v{SP}, v{SP}"); A(f"v_rcp_f32 v{TM}, v{TM}")
    for i in range(0, 20, 2):
        A(f"v_pk_mul_f32 {v(EP + i, 2)}, {v(EP + i, 2)}, {v(SP, 2)} op_sel_hi:[1,0]")
        A(f"v_pk_mul_f32 {v(EN + i, 2)}, {v(EN + i, 2)}, {v(TM, 2)} op_sel_hi:[1,0]")
    PH = 44
    for p in range(10): A(f"v_cvt_pk_bf16_f32 v{PH + p}, v{EP + 2 * p}, v{EP + 2 * p + 1}")
    for p in range(10): A(f"v_cvt_pk_bf16_f32 v{PH + 10 + p}, v{EN + 2 * p}, v{EN + 2 * p + 1}")
    A(f"v_mul_u32_u24 v{E + 3}, 160, v{E + 2}"); A(f"v_and_b32 v{E + 1}, 1, v3"); A(f"v_mul_u32_u24 v{E + 1}, 80, v{E + 1}")
    A(f"v_add_u32 v{E + 3}, v{E + 3}, v{E + 1}")
    A("s_mov_b32 exec_lo, 0")
    for q in range(5): A(f"ds_write_b128 v{E + 3}, {v(PH + 4 * q, 4)} offset:{PST + 16 * q}")
    A("s_mov_b64 exec, -1")
    import os
    if not os.environ.get("FINE"): A.stamp(5)
    atab = sum(a << (4 * n) for n, (a, b) in enumerate(PAIRS + [(4, 2)] * 3)); btab = sum(b << (4 * n) for n, (a, b) in enumerate(PAIRS + [(4, 2)] * 3))
    A(f"s_mov_b32 s52, 0x{atab & 0xffffffff:08x}"); A(f"s_mov_b32 s53, 0x{atab >> 32:08x}")
    A(f"s_mov_b32 s54, 0x{btab & 0xffffffff:08x}"); A(f"s_mov_b32 s55, 0x{btab >> 32:08x}")
    A("s_lshl_b32 s56, s22, 3")
    A("s_lshr_b64 s[52:53], s[52:53], s56"); A("s_lshr_b64 s[54:55], s[54:55], s56")
    E = 64
    A(f"v_lshrrev_b32 v{E}, 2, v21"); A(f"v_lshl_add_u32 v{E}, v3, 2, v{E}")
    A(f"v_and_b32 v{E + 1}, 3, v21"); A(f"v_lshlrev_b32 v{E + 1}, 3, v{E + 1}")
    A(f"v_mul_u32_u24 v{E + 2}, 160, v{E}"); A(f"v_add_u32 v{E + 2}, v{E + 2}, v{E + 1}")
    A(f"v_mul_u32_u24 v{E + 3}, 96, v{E}"); A(f"v_add_u32 v{E + 3}, v{E + 3}, v{E + 1}"); A(f"v_add_u32 v{E + 3}, {VST}, v{E + 3}")
    KA = 80; KB = 112; KD = 144
    for q in range(2):
        A(f"s_lshr_b32 s57, s52, {4 * q}"); A("s_and_b32 s57, s57, 15"); A("s_lshl_b32 s58, s57, 5")
        A(f"s_lshr_b32 s59, s54, {4 * q}"); A("s_and_b32 s59, s59, 15"); A("s_lshl_b32 s60, s59, 5")
        A(f"v_add_u32 v{E + 4 + 2 * q}, s58, v{E + 2}"); A(f"v_add_u32 v{E + 5 + 2 * q}, s60, v{E + 3}")
        o = E + 8 + q; t1 = E + 10; t2 = E + 11; t3 = E + 12; t4 = E + 13
        A(f"s_lshl_b32 s61, s57, 4"); A(f"v_lshl_add_u32 v{t1}, v3, 2, s61")
        A(f"s_lshl_b32 s61, s59, 4"); A(f"v_add_u32 v{t2}, s61, v21")
        A(f"v_cmp_le_u32 vcc, 40, v{t1}"); A(f"v_cndmask_b32 v{t3}, 0, 1, vcc")
        A(f"v_mul_u32_u24 v{t4}, 40, v{t3}"); A(f"v_sub_u32 v{t1}, v{t1}, v{t4}")
        A(f"v_mul_u32_u24 v{t4}, 20, v{t3}"); A(f"v_sub_u32 v{t4}, v{t2}, v{t4}")
        A(f"v_cmp_eq_u32 vcc, 40, v{t2}"); A(f"v_mov_b32 v{o}, 20"); A(f"v_cndmask_b32 v{t4}, v{t4}, v{o}, vcc")
        A(f"v_cmp_gt_u32 s[62:63], 20, v{t4}"); A(f"v_cmp_gt_u32 s[74:75], 40, v{t2}"); A("s_and_b64 s[62:63], s[62:63], s[74:75]"); A("s_or_b64 s[62:63], s[62:63], vcc")
        A(f"v_mul_u32_u24 v{o}, 21, v{t3}"); A(f"v_add_u32 v{o}, v{o}, v{t4}"); A(f"v_mul_u32_u24 v{o}, 160, v{o}"); A(f"v_lshl_add_u32 v{o}, v{t1}, 2, v{o}")
        A(f"v_mov_b32 v{t1}, 0x40000000"); A(f"v_cndmask_b32 v{o}, v{t1}, v{o}, s[62:63]")
        A(f"s_lshl_b32 s61, s22, 1"); A(f"s_add_u32 s61, s61, {q}"); A("s_cmp_ge_u32 s61, 13"); A("s_cselect_b64 vcc, -1, 0")
        A(f"v_cndmask_b32 v{o}, v{o}, v{t1}, vcc")
    A("s_waitcnt lgkmcnt(0)")
    A("s_barrier")
    for q in range(2):
        for sg in range(4):
            for hf in range(2):
                row = 32 * sg + 16 * hf
                A(f"ds_read_b64_tr_b16 {v(KA + (q * 4 + sg) * 4 + 2 * hf, 2)}, v{E + 4 + 2 * q} offset:{PST + row * 160}")
                A(f"ds_read_b64_tr_b16 {v(KB + (q * 4 + sg) * 4 + 2 * hf, 2)}, v{E + 5 + 2 * q} offset:{row * 96}")
    A("s_lshl_b32 s31, s24, 4"); A("s_add_u32 s31, s31, s23"); A(f"s_mul_i32 s31, s31, {SLAB_BYTES}"); A(f"s_add_u32 s31, s31, {SLAB_OFF}")
    for q in range(2):
        A(f"s_waitcnt lgkmcnt({15 if q == 0 else 0})")
        for sg in range(4):
            A(f"v_mfma_f32_16x16x32_bf16 {v(KD + 4 * q, 4)}, {v(KA + (q * 4 + sg) * 4, 4)}, {v(KB + (q * 4 + sg) * 4, 4)}, {v(KD + 4 * q, 4) if sg > 0 else 0}")
    for q in range(2):
        A(f"buffer_store_dwordx4 {v(KD + 4 * q, 4)}, v{E + 8 + q}, s[12:15], s31 offen sc0 sc1")
    return PH

def gen_p1(name="p1_kernel", stamps=False, kidx=0):
    from k2 import p2_body, zero_afr
    A = Asm(); A.endlabel = f"L{name}_end"; A.stamps = stamps; A.rl_sc = ""
    A.raw(f".globl {name}\n.p2align 8\n.type {name},@function\n{name}:")
    A("s_cmp_ge_u32 s2, 256"); A("s_cbranch_scc1 " + A.endlabel)
    A.stamp(0)
    p1_common_setup(A)
    A("s_cmp_ge_u32 s22, 4"); A(f"s_cbranch_scc1 L{name}_H")
    R = p1_C(A, name)
    A("s_waitcnt lgkmcnt(0)")
    A("s_barrier")
    A(f"s_branch L{name}_epi")
    A.raw(f"L{name}_H:")
    A.hist = []; A.vm = []
    p1_H(A, name)
    A("s_barrier")
    A(f"s_mul_i32 s31, s25, 9216"); A(f"v_lshlrev_b32 v228, 4, v1"); A(f"v_add_u32 v228, s31, v228")
    for t in range(8): A(f"ds_read_b128 {v(R['ACC'] + 4 * t, 4)}, v228 offset:{HO + 1024 * t}")
    A(f"s_lshl_b32 s31, s25, 11"); A(f"s_add_u32 s31, s31, {HO2}"); A(f"v_lshlrev_b32 v229, 4, v1"); A(f"v_add_u32 v229, s31, v229")
    A(f"ds_read_b128 {v(R['GR'], 4)}, v229")
    A(f"ds_read_b128 {v(R['SX'], 4)}, v229 offset:1024")
    A("s_waitcnt lgkmcnt(0)")
    A.raw(f"L{name}_epi:")
    A.hist = []; A.vm = []
    A("s_nop 7")
    PH = p1_epilogue(A, name, R, True)
    A("s_waitcnt vmcnt(0)")
    A("s_barrier")
    import os
    if not os.environ.get("FINE"): A.stamp(6)
    zero_afr(A, 8)
    A("s_cmp_lt_u32 s22, 4"); A(f"s_cbranch_scc1 L{name}_w")
    A("s_cmp_lg_u32 s22, 4"); A(f"s_cbranch_scc1 L{name}_rf")
    nonce_get(A, name, 175, 8)
    A("s_lshl_b32 s31, s24, 4"); A("s_add_u32 s31, s31, s23"); A("s_lshl_b32 s31, s31, 6"); A(f"s_add_u32 s31, s31, {FLAG_OFF}")
    A("v_mov_b32 v8, 0"); A("v_mov_b32 v9, s96")
    A("s_mov_b64 exec, 1")
    A("buffer_store_dword v9, v8, s[12:15], s31 offen sc0 sc1")
    A("s_mov_b64 exec, -1")
    A.raw(f"L{name}_rf:")
    A.vm = [('rl', 0), ('rl', 1)]
    A.rl_finish(0, A.rl_sc); A.rl_finish(1, A.rl_sc)
    A("s_cmp_lg_u32 s22, 4"); A(f"s_cbranch_scc1 L{name}_w")
    A("s_lshl_b32 s31, s24, 10"); A(f"s_add_u32 s31, s31, {FLAG_OFF}")
    A("v_lshlrev_b32 v8, 6, v1")
    poll_flags(A, f"L{name}_pa", 16, 8, 9, 31)
    A.raw(f"L{name}_w:")
    A("s_waitcnt lgkmcnt(0)")
    A("s_barrier")
    if not os.environ.get("FINE"): A.stamp(7)
    A.vm = []
    p2_body(A, name, PH, sc=" sc1", osc="")
    if stamps:
        A("s_waitcnt vmcnt(0)")
        A.stamp_dump(8, 9, TS_OFF + kidx * 131072, 0)
    A.raw(A.endlabel + ":")
    A("s_endpgm")
    return A.text(), kernel_desc(name, 256, 102, 256), (256, 512, 163840)
```

```python
from asmlib import *
from layout import *
from k4 import f32hex, bf16_round, K0, K1
from k3 import xlane_sum_g

NT = 7; LOOK = 3; RING = 3
STG = RING * 40960
CST = STG + 32768
LDS4 = CST + 8192

def ids_p4(A):
    A("s_and_b32 s20, s2, 7"); A("s_lshr_b32 s21, s2, 3")
    import os
    if os.environ.get("MAP4") == "new":
        A("s_lshr_b32 s23, s20, 1"); A("s_lshl_b32 s23, s23, 2"); A("s_lshr_b32 s24, s21, 3"); A("s_add_u32 s23, s23, s24")
        A("s_and_b32 s24, s20, 1"); A("s_lshl_b32 s24, s24, 3"); A("s_and_b32 s27, s21, 7"); A("s_add_u32 s24, s24, s27")
    else:
        A("s_lshr_b32 s23, s20, 2"); A("s_lshl_b32 s23, s23, 3"); A("s_lshr_b32 s24, s21, 2"); A("s_add_u32 s23, s23, s24")
        A("s_and_b32 s24, s20, 3"); A("s_lshl_b32 s24, s24, 2"); A("s_and_b32 s27, s21, 3"); A("s_add_u32 s24, s24, s27")
    A("s_mov_b32 s18, s24")
    A("s_mul_i32 s24, s24, 7"); A("s_min_u32 s24, s24, 101")
    A("s_lshl_b32 s26, s23, 7"); A("s_lshl_b32 s27, s25, 5"); A("s_add_u32 s26, s26, s27")

def var_load(A, vt, sc, addr_done=False):
    A(f"v_add_u32 v14, s26, v21"); A(f"v_lshlrev_b32 v14, 2, v14"); A(f"v_lshl_add_u32 v14, v3, 14, v14")
    A(f"s_mov_b32 s34, {VARP_OFF}"); A(f"s_mov_b32 s33, {VARP_OFF + 8192}")
    for a_ in range(2):
        A(f"buffer_load_dword v{vt + 2 * a_}, v14, s[12:15], s34 offen offset:{64 * a_}{sc}", tag='var')
        A(f"buffer_load_dword v{vt + 2 * a_ + 1}, v14, s[12:15], s33 offen offset:{64 * a_}{sc}", tag='var')

def var_consts(A, vt, C0, C1, IR):
    A.vm_wait('var')
    for a_ in range(2):
        b = vt + 4 + 4 * a_
        A(f"v_add_f32 v{b}, v{vt + 2 * a_}, v{vt + 2 * a_ + 1}")
        xlane_sum_g(A, b, b + 1)
        A(f"v_mul_f32 v{b}, {f32hex(1.0 / 640)}, v{b}")
        bf16_round(A, b, b, b + 1)
        A(f"v_add_f32 v{b}, {f32hex(1e-5)}, v{b}")
        bf16_round(A, b, b, b + 1)
        A(f"v_sqrt_f32 v{b}, v{b}")
        bf16_round(A, b, b, b + 1)
        A(f"v_mul_f32 v{IR[a_]}, v{b}, v{b}")
        A(f"v_rcp_f32 v{b + 1}, v{b}")
        A(f"v_mul_f32 v{C0[a_]}, {f32hex(K0)}, v{b + 1}")
        A(f"v_mul_f32 v{b + 3}, v{b + 1}, v{b + 1}")
        A(f"v_mul_f32 v{b + 3}, v{b + 3}, v{b + 1}")
        A(f"v_mul_f32 v{C1[a_]}, {f32hex(K1)}, v{b + 3}")

def gelu_ops(A, f, gbase, T, C0, C1, IR, vlane16, sc, TQ=None, TY=None, TO=None, PK=None):
    ops = []
    def add(txt, tag=None): ops.append(lambda txt=txt, tag=tag: A(txt, tag=tag))
    add(f"s_add_u32 s37, s24, {f}"); add("s_lshr_b32 s36, s37, 1"); add("s_lshl_b32 s36, s36, 10"); add("s_add_u32 s36, s36, s35")
    add("s_bitcmp1_b32 s37, 0"); add("s_cselect_b64 s[50:51], -1, 0"); add("s_cselect_b64 s[48:49], 0, -1")
    add("s_cselect_b32 s52, s36, s53")
    if f == NT - 1:
        add("s_cselect_b32 s55, s53, s36")
        add(f"s_add_u32 s56, s55, {54 * 1024}")
    add(f"s_add_u32 s54, s52, {54 * 1024}")
    if f == 0:
        add("s_add_u32 s55, s52, 8"); add("s_add_u32 s56, s54, 8")
    for a_ in range(2):
        gb, ub = gbase(a_)
        tq = [TQ + r for r in range(4)]; ty = [TY + r for r in range(4)]
        for r in range(4): add(f"v_mul_f32 v{tq[r]}, v{gb + r}, v{gb + r}")
        for r in range(0, 4, 2): add(f"v_pk_mul_f32 {v(ty[r], 2)}, {v(gb + r, 2)}, {v(ub + r, 2)}")
        for r in range(4): add(f"v_fma_f32 v{tq[r]}, v{tq[r]}, v{C1[a_]}, v{C0[a_]}")
        for r in range(0, 4, 2): add(f"v_pk_mul_f32 {v(tq[r], 2)}, {v(tq[r], 2)}, {v(gb + r, 2)}")
        for r in range(4): add(f"v_exp_f32 v{tq[r]}, v{tq[r]}")
        for r in range(4): add(f"v_fma_f32 v{tq[r]}, v{tq[r]}, v{IR[a_]}, v{IR[a_]}")
        for r in range(4): add(f"v_rcp_f32 v{tq[r]}, v{tq[r]}")
        for r in range(0, 4, 2): add(f"v_pk_mul_f32 {v(ty[r], 2)}, {v(ty[r], 2)}, {v(tq[r], 2)}")
        o = TO[a_]; pk = PK[a_]
        add(f"v_cvt_pk_bf16_f32 v{o}, v{ty[0]}, v{ty[1]}")
        add(f"v_cvt_pk_bf16_f32 v{o + 1}, v{ty[2]}, v{ty[3]}")
        if f in (0, NT - 1):
            add(f"buffer_store_dwordx2 {v(o, 2)}, v{vlane16}, s[12:15], s{55 + a_} offen{sc[1]}", tag=('st', f))
        if f < NT - 1:
            add(f"v_cndmask_b32 v{pk}, v{pk}, v{o}, s[48:49]"); add(f"v_cndmask_b32 v{pk + 1}, v{pk + 1}, v{o + 1}, s[48:49]")
        if f >= 1:
            add(f"v_mov_b32 v{pk + 2}, v{o}"); add(f"v_mov_b32 v{pk + 3}, v{o + 1}")
            add(f"buffer_store_dwordx4 {v(pk, 4)}, v{vlane16}, s[12:15], s{52 if a_ == 0 else 54} offen{sc[1]}", tag=('st', f))
    return ops

def act_base(A):
    A("s_lshr_b32 s35, s26, 4"); A(f"s_mul_i32 s35, s35, {54 * 1024}"); A(f"s_add_u32 s35, s35, {ACT_OFF}")

def p4_tile_dma(A, f, sc):
    slot = f % RING
    out = []
    for n in range(10):
        def fn(n=n):
            if n % 4 == 0:
                A(f"s_add_u32 m0, s29, {slot * 40960 + n * 1024}")
                A(f"s_add_u32 s32, s28, {f * 40960 + n * 1024}")
            A(f"buffer_load_dwordx4 v3x, s[12:15], s32 offen offset:{(n % 4) * 1024}{sc[0]} lds".replace("v3x", "v4"), tag=('w', f))
        out.append(fn)
    return out

def p4_H_setup(A):
    A("v_lshlrev_b32 v4, 4, v1")
    A("s_mul_i32 s28, s24, 40960"); A("s_and_b32 s29, s21, 3"); A("s_add_u32 s29, s29, s25"); A("s_and_b32 s29, s29, 3"); A("s_mul_i32 s29, s29, 10240")
    A("s_add_u32 s28, s28, s29"); A(f"s_add_u32 s28, s28, {WGU_OFF}"); A("s_mul_i32 s29, s25, 10240")

def interleave(main, side, every):
    side = list(side)
    for i, fn in enumerate(main):
        fn()
        if side and i % every == every - 1: side.pop(0)()
    while side: side.pop(0)()

def p4_H(A, sc, prefetched=0):
    VT = 24; C0 = [40, 43]; C1 = [41, 44]; IR = [42, 45]; SR = 48; T = 64
    if prefetched < 1:
        for fn in p4_tile_dma(A, 0, sc): fn()
    act_base(A)
    A(f"s_lshl_b32 s30, s25, 12"); A(f"v_add_u32 v5, s30, v4"); A(f"v_add_u32 v5, {STG}, v5")
    A.p4_pre_var()
    var_load(A, VT, sc[0])
    A.vm_wait(('w', 0))
    A("s_barrier")
    for f in range(max(prefetched, 1), 3):
        for fn in p4_tile_dma(A, f, sc): fn()
    var_consts(A, VT, C0, C1, IR)
    A(f"s_lshl_b32 s30, s25, 11"); A(f"s_add_u32 s30, s30, {CST}"); A(f"v_add_u32 v6, s30, v4")
    A("ds_write_b128 v6, v[40:43]"); A("ds_write_b128 v6, v[44:47] offset:1024")
    for f in range(NT - 1):
        A.vm_wait(('w', f + 1))
        A("s_waitcnt lgkmcnt(0)")
        A("s_barrier")
        dma = p4_tile_dma(A, f + 3, sc) if f + 3 < NT else list(A.p4_tail_dma(f))
        for fn in dma: fn()

def p4_C(A, sc):
    HB = 16; AF = 176; ACC = 216; T = 240; PK = (208, 212)
    A("s_mov_b32 s53, 0x7ff00000")
    A("v_lshlrev_b32 v4, 4, v1"); A("v_add_u32 v5, 40960, v4"); A("v_add_u32 v6, 81920, v4")
    A("v_lshlrev_b32 v7, 3, v1")
    A("s_lshr_b32 s38, s26, 4"); A("s_mul_i32 s38, s38, 20480"); A(f"s_add_u32 s38, s38, {HC_OFF}")
    A.p4_pre_hc()
    A("s_and_b32 s43, s21, 3")
    def hc_load(s_):
        if s_ % 5 == 0:
            g_ = s_ // 5
            A(f"s_add_u32 s44, s43, {g_}"); A("s_and_b32 s44, s44, 3"); A("s_mul_i32 s44, s44, 5120"); A("s_add_u32 s44, s44, s38")
            A("s_add_u32 s45, s44, 20480"); A("s_add_u32 s46, s44, 4096"); A("s_add_u32 s47, s44, 24576")
        for a_ in range(2):
            e = s_ % 5
            sreg = (44 + a_) if e < 4 else (46 + a_)
            off = (e % 4) * 1024
            if e == 2:
                A(f"buffer_load_dwordx2 {v(HB + (a_ * 20 + s_) * 4, 2)}, v7, s[12:15], s{sreg} offen offset:{off}{sc[0]}", tag=('h', s_))
                A(f"buffer_load_dwordx2 {v(HB + (a_ * 20 + s_) * 4 + 2, 2)}, v7, s[12:15], s{sreg} offen offset:{off + 512}{sc[0]}", tag=('h', s_))
            else:
                A(f"buffer_load_dwordx4 {v(HB + (a_ * 20 + s_) * 4, 4)}, v4, s[12:15], s{sreg} offen offset:{off}{sc[0]}", tag=('h', s_))
    HA = 6
    for s_ in range(HA): hc_load(s_)
    act_base(A)
    import os
    if not os.environ.get("FINE4"): A.stamp(1)
    A("s_barrier")
    if not os.environ.get("FINE4"): A.stamp(2)
    bases = [4, 5, 6]
    total = NT * 20
    C0 = [8, 11]; C1 = [9, 12]; IR = [10, 13]
    NB = LOOK + 1
    A(f"s_lshl_b32 s30, s25, 11"); A(f"s_add_u32 s30, s30, {CST}"); A(f"v_add_u32 v14, s30, v4")
    def rd1(sig, gu):
        f, s_ = divmod(sig, 20)
        k = (sig % NB) * 2 + gu
        A(f"ds_read_b128 {v(AF + k * 4, 4)}, v{bases[f % RING]} offset:{s_ * 2048 + gu * 1024}")
    for sig in range(LOOK): rd1(sig, 0); rd1(sig, 1)
    A(f"s_waitcnt lgkmcnt({2 * (LOOK - 1)})")
    epi = []
    TE = 248
    for sig in range(total):
        f, s_ = divmod(sig, 20)
        p = f % 2
        if f == 3 and s_ == 0: A.stamp(3)
        import os
        if os.environ.get("P4FINE") and s_ == 0:
            A.stamps = True; A.stamp(f + 2); A.stamps = False
        if f == 0:
            A.vm_wait(('h', s_))
        bar = (s_ == 20 - LOOK) and f + 1 < NT
        if bar:
            A("s_waitcnt lgkmcnt(0)")
            A("s_barrier")
        if f == 0 and s_ == 17:
            A("ds_read_b128 v[8:11], v14"); A("ds_read_b64 v[12:13], v14 offset:1024")
        if f >= 1 and s_ == 0:
            pp = (f - 1) % 2
            epi = gelu_ops(A, f - 1, lambda a_: (ACC + pp * 16 + a_ * 8, ACC + pp * 16 + a_ * 8 + 4), 0, C0, C1, IR, 4, sc, TQ=TE, TY=TE + 4, TO=(2, 14), PK=PK)
        k = (sig % NB) * 2
        side = []
        if sig + LOOK < total: side += [lambda: rd1(sig + LOOK, 0), lambda: rd1(sig + LOOK, 1)]
        if f == 0 and s_ + HA < 20: side.append(lambda: hc_load(s_ + HA))
        if sig + 1 < total and not (20 - LOOK <= s_ < 19 and f + 1 < NT):
            nlater = 2 * (min(total, sig + LOOK + 1) - (sig + 2))
            side.append(lambda nlater=nlater: A(f"s_waitcnt lgkmcnt({min(15, max(0, nlater))})"))
        order = [(0, 0), (1, 0), (0, 1), (1, 1)]
        for i, (a_, gu) in enumerate(order):
            acc = ACC + p * 16 + a_ * 8 + gu * 4
            A(f"v_mfma_f32_16x16x32_bf16 {v(acc, 4)}, {v(AF + (k + gu) * 4, 4)}, {v(HB + (a_ * 20 + s_) * 4, 4)}, {v(acc, 4) if s_ > 0 else 0}")
            if side: side.pop(0)()
            if epi and s_ >= 1: epi.pop(0)()
            if epi and s_ >= 1 and i == 3 and len(epi) > 4 * (19 - s_): epi.pop(0)()
        while side: side.pop(0)()
        if s_ == 19:
            while epi: epi.pop(0)()
    A.stamp(4)
    p = (NT - 1) % 2
    for fn in gelu_ops(A, NT - 1, lambda a_: (ACC + p * 16 + a_ * 8, ACC + p * 16 + a_ * 8 + 4), AF, C0, C1, IR, 4, sc, TQ=TE, TY=TE + 4, TO=(2, 14), PK=PK): fn()

def gen_p4(name="p4_kernel", stamps=False, kidx=3):
    A = Asm(); A.endlabel = f"L{name}_end"; A.stamps = stamps
    A.p4_pre_var = lambda: None; A.p4_pre_hc = lambda: None; A.p4_tail_dma = lambda f: []
    A.raw(f".globl {name}\n.p2align 8\n.type {name},@function\n{name}:")
    A("s_cmp_ge_u32 s2, 256"); A("s_cbranch_scc1 " + A.endlabel)
    A.stamp(0)
    A("s_load_dwordx2 s[8:9], s[0:1], 80")
    A("v_and_b32 v1, 63, v0"); A("v_lshrrev_b32 v2, 6, v0")
    A("v_readfirstlane_b32 s22, v2"); A("v_lshrrev_b32 v3, 4, v1"); A("v_and_b32 v21, 15, v1")
    A("s_and_b32 s25, s22, 3")
    ids_p4(A)
    A("s_waitcnt lgkmcnt(0)")
    A("s_mov_b32 s12, s8"); A("s_mov_b32 s13, s9"); A(f"s_mov_b32 s14, {WS_USED}"); A("s_mov_b32 s15, 0x20000")
    sc = ("", "")
    A("s_cmp_ge_u32 s22, 4"); A(f"s_cbranch_scc1 L{name}_H")
    p4_C(A, sc)
    A(f"s_branch L{name}_fin")
    A.raw(f"L{name}_H:")
    A.hist = []; A.vm = []
    p4_H_setup(A)
    A.stamp(1); A.stamp(2); A.stamp(3); A.stamp(4)
    p4_H(A, sc)
    A.raw(f"L{name}_fin:")
    if stamps:
        A("s_waitcnt vmcnt(0)")
        import os
        if not os.environ.get("FINE4"): A.stamp(5)
        A.stamp_dump(8, 9, TS_OFF + kidx * 131072, 0)
    A.raw(A.endlabel + ":")
    A("s_endpgm")
    return A.text(), kernel_desc(name, 256, 102, 256), (256, 512, LDS4)
```

```python
from asmlib import *
from layout import *
from k4 import f32hex
from k1 import udiv_small

NUNITS = 2168
def decode(A, U):
    A(f"s_mov_b32 s44, 5"); A("s_mov_b32 s45, 0"); A("s_mov_b32 s46, 0")
    A(f"s_cmp_ge_u32 s{U}, 560"); A("s_cselect_b32 s49, 560, 0"); A("s_cselect_b32 s44, 1, 0"); A(f"s_sub_u32 s49, s{U}, s49")
    A("s_mul_i32 s45, s49, 9363"); A("s_lshr_b32 s45, s45, 16"); A("s_mul_i32 s50, s45, 7"); A("s_sub_u32 s46, s49, s50")
    A(f"s_cmp_ge_u32 s{U}, 1768"); A("s_cselect_b32 s50, 3, 2"); A("s_cselect_b32 s49, 648, 0"); A("s_add_u32 s49, s49, 1120"); A(f"s_sub_u32 s49, s{U}, s49")
    A("s_mul_i32 s51, s49, 21846"); A("s_lshr_b32 s51, s51, 16"); A("s_mul_i32 s52, s51, 3"); A("s_sub_u32 s52, s49, s52")
    A(f"s_cmp_ge_u32 s{U}, 1120"); A("s_cselect_b32 s44, s50, s44"); A("s_cselect_b32 s45, s51, s45"); A("s_cselect_b32 s46, s52, s46")
    A(f"s_sub_u32 s49, s{U}, 2008")
    A(f"s_cmp_ge_u32 s{U}, 2008"); A("s_cselect_b32 s44, 4, s44"); A("s_cselect_b32 s45, s49, s45")
    A(f"s_cmp_ge_u32 s{U}, {NUNITS}"); A("s_cselect_b32 s44, 5, s44")
    A("s_lshr_b32 s47, s45, 2"); A("s_and_b32 s48, s45, 3")

def issue(A, lbl, U, RL, vl8, vl16c, dum):
    vmb = list(A.vm)
    decode(A, U)
    A("s_mov_b32 s55, 0x20000")
    A("s_lshl_b32 s56, s46, 9")
    A("s_cmp_eq_u32 s44, 4"); A(f"s_cbranch_scc1 {lbl}_wb")
    A("s_cmp_eq_u32 s44, 5"); A(f"s_cbranch_scc1 {lbl}_no")
    A("s_mul_i32 s49, s47, 13"); A("s_lshr_b32 s49, s49, 6"); A("s_mul_i32 s50, s49, 5"); A("s_sub_u32 s50, s47, s50")
    A("s_mul_i32 s49, s49, 160")
    A("s_cmp_ge_u32 s44, 2"); A(f"s_cbranch_scc1 {lbl}_dw")
    A("s_cmp_eq_u32 s44, 1"); A("s_cselect_b32 s52, s70, s68"); A("s_cselect_b32 s53, s71, s69"); A(f"s_mov_b32 s54, {640 * 1728 * 2}")
    A("s_mul_i32 s51, s48, 20"); A("s_add_u32 s49, s49, s51"); A("s_lshl_b32 s50, s50, 3"); A("s_add_u32 s49, s49, s50")
    for j in range(8):
        A(f"s_add_u32 s51, s50, {j}"); A("s_cmp_ge_u32 s51, 20"); A("s_cselect_b32 s51, 60, 0"); A("s_add_u32 s51, s51, s49")
        A(f"s_add_u32 s51, s51, {j}") if j else None
        A("s_mul_i32 s51, s51, 3456"); A("s_add_u32 s51, s51, s56")
        A(f"buffer_load_dwordx2 {v(RL + 2 * j, 2)}, v{vl8}, s[52:55], s51 offen")
    A(f"s_branch {lbl}_dn")
    A.raw(f"{lbl}_dw:")
    A("s_cmp_eq_u32 s44, 3"); A("s_cselect_b32 s52, s66, s72"); A("s_cselect_b32 s53, s67, s73")
    A(f"s_mov_b32 s54, {1728 * 640 * 2}"); A(f"s_cselect_b32 s54, {640 * 640 * 2}, s54")
    A("s_mul_i32 s51, s48, 10"); A("s_add_u32 s49, s49, s51")
    A("s_mul_i32 s51, s50, 40"); A("s_add_u32 s57, s49, s51")
    A("s_lshl_b32 s58, s47, 5"); A("s_lshl_b32 s51, s48, 2"); A("s_add_u32 s58, s58, s51")
    for j in range(8):
        A(f"s_add_u32 s51, s57, {j}"); A(f"s_add_u32 s59, s49, {40 * (j >> 1) + 8 + (j & 1)}")
        A("s_cmp_eq_u32 s50, 4"); A("s_cselect_b32 s51, s59, s51")
        A(f"s_add_u32 s59, s58, {16 * (j >> 2) + (j & 3)}")
        A("s_cmp_eq_u32 s44, 2"); A("s_cselect_b32 s51, s59, s51")
        A("s_mul_i32 s51, s51, 1280"); A("s_add_u32 s51, s51, s56")
        A(f"buffer_load_dwordx2 {v(RL + 2 * j, 2)}, v{vl8}, s[52:55], s51 offen")
    A(f"s_branch {lbl}_dn")
    A.raw(f"{lbl}_wb:")
    A("s_mov_b32 s52, s66"); A("s_mov_b32 s53, s67"); A(f"s_mov_b32 s54, {640 * 640 * 2}")
    A("s_mul_i32 s51, s45, 5120")
    for n in range(4): A(f"buffer_load_dwordx4 {v(RL + 4 * n, 4)}, v{vl16c}, s[52:55], s51 offen offset:{256 * n}")
    A(f"buffer_load_dwordx4 {v(RL + 16, 4)}, v{vl16c}, s[52:55], s51 offen offset:1024")
    for n in range(3): A(f"buffer_load_dword v{dum}, v{vl16c}, s[52:55], s51 offen")
    A(f"s_branch {lbl}_dn")
    A.raw(f"{lbl}_no:")
    for n in range(8): A(f"buffer_load_dword v{dum}, v{vl8}, s[12:15], 0 offen")
    A.raw(f"{lbl}_dn:")
    A.vm = vmb + [('rl', RL)] * 8

def finish(A, lbl, U, RL, T, scratch_s, sc):
    vmb = list(A.vm)
    decode(A, U)
    A("s_cmp_eq_u32 s44, 4"); A(f"s_cbranch_scc1 {lbl}_wb")
    A("s_cmp_eq_u32 s44, 5"); A(f"s_cbranch_scc1 {lbl}_no")
    RO = T
    A("s_mov_b32 s52, 0x05040100"); A("s_mov_b32 s53, 0x07060302")
    for e_ in range(4):
        for m_ in range(4):
            lo = RL + 2 * (2 * m_) + (e_ >> 1); hi = RL + 2 * (2 * m_ + 1) + (e_ >> 1)
            A(f"v_perm_b32 v{RO + 4 * e_ + m_}, v{hi}, v{lo}, s{52 + (e_ & 1)}")
    A(f"v_lshlrev_b32 v{T + 16}, 6, v1"); A(f"v_add_u32 v{T + 16}, s{scratch_s}, v{T + 16}")
    for e_ in range(4): A(f"ds_write_b128 v{T + 16}, {v(RO + 4 * e_, 4)} offset:{16 * e_}")
    A(f"v_lshlrev_b32 v{T + 16}, 4, v1"); A(f"v_add_u32 v{T + 16}, s{scratch_s}, v{T + 16}")
    A("s_cmp_ge_u32 s44, 2"); A(f"s_cbranch_scc1 {lbl}_dw")
    A(f"v_mul_u32_u24 v{T + 20}, 40960, v3"); A(f"v_lshl_add_u32 v{T + 20}, v21, 4, v{T + 20}")
    A("s_mul_i32 s49, s46, 655360"); A("s_lshl_b32 s50, s47, 11"); A("s_add_u32 s49, s49, s50"); A("s_lshl_b32 s50, s44, 10"); A("s_add_u32 s49, s49, s50")
    A("s_lshl_b32 s50, s48, 8"); A("s_add_u32 s49, s49, s50"); A(f"s_add_u32 s49, s49, {WGU_OFF}")
    A("s_waitcnt lgkmcnt(0)")
    for i_ in range(4): A(f"ds_read_b128 {v(RO + 4 * i_, 4)}, v{T + 16} offset:{1024 * i_}")
    A("s_waitcnt lgkmcnt(0)")
    for i_ in range(4):
        A(f"s_add_u32 s50, s49, {163840 * i_}")
        if i_ == 3:
            A("s_cmp_eq_u32 s46, 6"); A("s_cselect_b32 s50, 0x7ff00000, s50")
        A(f"buffer_store_dwordx4 {v(RO + 4 * i_, 4)}, v{T + 20}, s[12:15], s50 offen{sc}")
    A(f"s_branch {lbl}_dn")
    A.raw(f"{lbl}_dw:")
    A("s_cmp_eq_u32 s44, 3"); A("s_mov_b32 s51, 270"); A("s_cselect_b32 s51, 100, s51"); A(f"s_mov_b32 s49, {WD_OFF}"); A(f"s_cselect_b32 s49, {WO_OFF}, s49")
    A("s_mul_i32 s50, s47, 5120"); A("s_add_u32 s49, s49, s50"); A("s_lshl_b32 s50, s48, 8"); A("s_add_u32 s49, s49, s50")
    A("s_lshl_b32 s50, s46, 6")
    A(f"v_lshrrev_b32 v{T + 17}, 2, v1"); A(f"v_add_u32 v{T + 17}, s50, v{T + 17}")
    A(f"v_and_b32 v{T + 18}, 3, v1"); A(f"v_lshlrev_b32 v{T + 18}, 4, v{T + 18}")
    for i_ in range(4):
        c = T + 24; a_, b_, d_ = T + 25, T + 26, T + 27
        A(f"v_add_u32 v{c}, {16 * i_}, v{T + 17}")
        udiv_small(A, a_, c, 20); A(f"v_mul_u32_u24 v{b_}, 20, v{a_}"); A(f"v_sub_u32 v{b_}, v{c}, v{b_}")
        udiv_small(A, d_, b_, 5); A(f"v_mul_u32_u24 v{T + 19}, 5, v{d_}"); A(f"v_sub_u32 v{b_}, v{b_}, v{T + 19}")
        A(f"v_mul_lo_u32 v{a_}, v{a_}, s51"); A(f"v_add_u32 v{a_}, v{a_}, v{b_}"); A(f"v_lshlrev_b32 v{a_}, 10, v{a_}")
        A(f"v_lshl_add_u32 v{a_}, v{d_}, 6, v{a_}"); A(f"v_add_u32 v{a_}, v{a_}, v{T + 18}")
        A(f"v_mov_b32 v{b_}, 0x7ff00000"); A(f"v_cmp_gt_u32 vcc, 160, v{c}"); A(f"v_cndmask_b32 v{T + 20 + i_}, v{b_}, v{a_}, vcc")
    A("s_waitcnt lgkmcnt(0)")
    for i_ in range(4): A(f"ds_read_b128 {v(RO + 4 * i_, 4)}, v{T + 16} offset:{1024 * i_}")
    A("s_waitcnt lgkmcnt(0)")
    for i_ in range(4): A(f"buffer_store_dwordx4 {v(RO + 4 * i_, 4)}, v{T + 20 + i_}, s[12:15], s49 offen{sc}")
    A(f"s_branch {lbl}_dn")
    A.raw(f"{lbl}_wb:")
    A(f"v_mov_b32 v{T}, 0"); A(f"v_mov_b32 v{T + 1}, 0")
    for n in range(20):
        A(f"v_lshlrev_b32 v{T + 2}, 16, v{RL + n}"); A(f"v_and_b32 v{T + 3}, 0xffff0000, v{RL + n}")
        A(f"v_add_f32 v{T}, v{T}, v{T + 2}"); A(f"v_add_f32 v{T + 1}, v{T + 1}, v{T + 3}")
    A(f"v_add_f32 v{T}, v{T}, v{T + 1}")
    for sh in (8, 4, 2, 1):
        A(f"v_add_f32_dpp v{T + 1}, v{T}, v{T} row_ror:{sh} row_mask:0xf bank_mask:0xf"); A(f"v_mov_b32 v{T}, v{T + 1}")
    A(f"v_mul_f32 v{T}, {f32hex(1.0 / 640)}, v{T}"); A(f"v_cvt_pk_bf16_f32 v{T}, v{T}, v{T}")
    R0 = T + 4
    A("s_lshl_b32 s49, s45, 2"); A(f"v_add_u32 v{R0}, s49, v3")
    udiv_small(A, R0 + 1, R0, 160); A(f"v_mul_u32_u24 v{R0 + 2}, 160, v{R0 + 1}"); A(f"v_sub_u32 v{R0 + 2}, v{R0}, v{R0 + 2}")
    udiv_small(A, R0 + 3, R0 + 2, 40); A(f"v_mul_u32_u24 v{R0 + 8}, 40, v{R0 + 3}"); A(f"v_sub_u32 v{R0 + 8}, v{R0 + 2}, v{R0 + 8}")
    udiv_small(A, R0 + 9, R0 + 8, 10); A(f"v_mul_u32_u24 v{R0 + 2}, 10, v{R0 + 9}"); A(f"v_sub_u32 v{R0 + 2}, v{R0 + 8}, v{R0 + 2}")
    A(f"v_cmp_gt_u32 vcc, 8, v{R0 + 2}")
    A(f"v_mov_b32 v{R0 + 8}, 4"); A(f"v_cndmask_b32 v{R0 + 8}, v{R0 + 8}, v{R0 + 3}, vcc")
    A(f"v_lshl_add_u32 v{R0 + 4}, v{R0 + 3}, 1, v{R0 + 2}"); A(f"v_subrev_u32 v{R0 + 4}, 8, v{R0 + 4}")
    A(f"v_cndmask_b32 v{R0 + 3}, v{R0 + 4}, v{R0 + 2}, vcc")
    A(f"v_mul_u32_u24 v{R0 + 1}, 5, v{R0 + 1}"); A(f"v_add_u32 v{R0 + 1}, v{R0 + 1}, v{R0 + 8}")
    A(f"v_lshl_add_u32 v{R0 + 1}, v{R0 + 1}, 2, v{R0 + 9}"); A(f"v_lshl_add_u32 v{R0 + 1}, v{R0 + 1}, 3, v{R0 + 3}")
    A(f"v_lshlrev_b32 v{R0}, 1, v{R0 + 1}"); A(f"v_add_u32 v{R0}, {WBAR_OFF}, v{R0}")
    for n in range(4): A(f"buffer_store_short v{T}, v{R0}, s[12:15], 0 offen{sc}")
    A(f"s_branch {lbl}_dn")
    A.raw(f"{lbl}_no:")
    A(f"v_mov_b32 v{T}, {TS_OFF + (2 << 20) - 256}")
    for n in range(4): A(f"buffer_store_dword v{T}, v{T}, s[12:15], 0 offen")
    A.raw(f"{lbl}_dn:")
    A.vm = vmb + [('rs', RL)] * 4
```

```python
from asmlib import *
from layout import *
from k4 import f32hex, bf16_round
from k3 import xlane_sum_g
import p1 as P1
import p4 as P4
from k2 import p2_body, zero_afr

SC = (" sc1", " sc0 sc1")
FA, FW, FO, FH, FG, FW3 = 0, 1, 2, 3, 4, 5
NONCE_LDS = 163832

def flag_set(A, phase, sidx):
    A(f"s_lshl_b32 s31, s{sidx}, 6"); A(f"s_add_u32 s31, s31, {FLAG_OFF + phase * 16384}")
    A("v_mov_b32 v8, 0"); A("v_mov_b32 v9, s96")
    A("s_mov_b64 exec, 1")
    A("buffer_store_dword v9, v8, s[12:15], s31 offen sc0 sc1")
    A("s_mov_b64 exec, -1")

def flag_wait(A, lbl, phase, sbase, n):
    if sbase is None: A(f"s_mov_b32 s31, {FLAG_OFF + phase * 16384}")
    else:
        A(f"s_lshl_b32 s31, s{sbase}, 6"); A(f"s_add_u32 s31, s31, {FLAG_OFF + phase * 16384}")
    A("v_lshlrev_b32 v8, 6, v1")
    A("s_mov_b32 s97, 0")
    if n == 16: A("s_mov_b64 exec, 0xffff")
    A.raw(f"{lbl}:")
    nl = {16: 1, 128: 2, 256: 4}[n]
    for k in range(nl):
        if k: A(f"s_add_u32 s30, s31, {4096 * k}")
        A(f"buffer_load_dword v{9 + k}, v8, s[12:15], s{31 if k == 0 else 30} offen sc1")
    A("s_add_u32 s97, s97, 1")
    A("s_waitcnt vmcnt(0)")
    for k in range(nl): A(f"v_xor_b32 v{9 + k}, s96, v{9 + k}")
    for k in range(1, nl): A(f"v_or_b32 v9, v9, v{9 + k}")
    A("v_cmp_ne_u32 vcc, 0, v9")
    A("s_cmp_gt_u32 s97, 0x40000")
    A(f"s_cbranch_scc1 {lbl}_x")
    A(f"s_cbranch_vccnz {lbl}")
    A.raw(f"{lbl}_x:")
    A("s_mov_b64 exec, -1")

def ids_p35(A):
    A("s_and_b32 s20, s2, 7"); A("s_lshr_b32 s21, s2, 3")
    if os.environ.get("MAP35") == "old":
        A("s_lshr_b32 s23, s20, 1"); A("s_lshl_b32 s23, s23, 3"); A("s_lshr_b32 s24, s21, 2"); A("s_add_u32 s23, s23, s24")
        A("s_and_b32 s24, s20, 1"); A("s_lshl_b32 s24, s24, 2"); A("s_and_b32 s27, s21, 3"); A("s_add_u32 s24, s24, s27")
    else:
        A("s_lshl_b32 s23, s20, 2"); A("s_lshr_b32 s24, s21, 3"); A("s_add_u32 s23, s23, s24")
        A("s_and_b32 s24, s21, 7")
    A("s_lshl_b32 s26, s23, 2"); A("s_add_u32 s26, s26, s25")

def l2_prefetch(A, base, per_xcd_sel, per_wg, per_wave, n):
    A(f"s_mul_i32 s56, s21, {per_wg}"); A(f"s_mul_i32 s57, s25, {per_wave}"); A("s_add_u32 s56, s56, s57"); A(f"s_add_u32 s56, s56, {base}")
    if per_xcd_sel:
        A("s_and_b32 s57, s20, 1"); A(f"s_mul_i32 s57, s57, {per_xcd_sel}"); A("s_add_u32 s56, s56, s57")
    A("v_lshlrev_b32 v12, 4, v1")
    for k in range(n):
        if k and k % 4 == 0: A("s_add_u32 s56, s56, 4096")
        A(f"buffer_load_dwordx4 v[8:11], v12, s[12:15], s56 offen offset:{(k % 4) * 1024}{SC[0]}", tag='pf')

def p3_H_dma(A):
    A("v_lshlrev_b32 v4, 4, v1"); A("v_lshlrev_b32 v5, 4, v3")
    A("s_mul_i32 s28, s24, 102400"); A(f"s_add_u32 s28, s28, {WO_OFF}")
    A("s_mul_i32 s29, s25, 6144")
    A("s_and_b32 s33, s21, 3"); A("s_mul_i32 s33, s33, 5"); A("s_add_u32 s33, s33, s25")
    for r in range(5):
        A("s_cmp_ge_u32 s33, 20"); A("s_cselect_b32 s34, 20, 0"); A("s_sub_u32 s33, s33, s34")
        A("s_mul_i32 s34, s33, 5120"); A("s_add_u32 s34, s34, s28")
        A("s_lshl_b32 s30, s33, 6"); A(f"s_add_u32 s30, s30, {WBAR_OFF}")
        A(f"s_add_u32 m0, s29, {r * 4 * 6144}")
        for t in range(4):
            A(f"buffer_load_dwordx4 v4, s[12:15], s34 offen offset:{t * 1024}{SC[0]} lds", tag=('r', r))
        A(f"s_add_u32 m0, s29, {r * 4 * 6144 + 4096}")
        A("s_add_u32 s32, s34, 4096")
        A(f"buffer_load_dwordx4 v4, s[12:15], s32 offen{SC[0]} lds", tag=('r', r))
        A(f"s_add_u32 m0, s29, {r * 4 * 6144 + 5120}")
        A(f"buffer_load_dwordx4 v5, s[12:15], s30 offen{SC[0]} lds", tag=('r', r))
        A("s_add_u32 s33, s33, 4")

def p3_H_loop(A):
    for r in range(5):
        A.vm_wait(('r', r))
        A("s_barrier")
    A("s_barrier")

XR3 = 216
HLDS = 143360
import os
def p3_C_pre(A):
    A("v_lshlrev_b32 v4, 4, v1"); A("v_add_u32 v5, 61440, v4")
    A("s_lshl_b32 s31, s26, 4"); A("v_add_u32 v6, s31, v21")
    A("v_mul_u32_u24 v8, 1280, v6"); A("v_mul_u32_u24 v9, 40, v3"); A("s_mul_i32 s33, s24, 160"); A("v_add3_u32 v8, v8, v9, s33")
    A("s_mov_b32 s16, s4"); A("s_mov_b32 s17, s5"); A(f"s_mov_b32 s18, {S * D * 2}"); A("s_mov_b32 s19, 0x20000")
    A(f"buffer_load_dwordx4 {v(XR3, 4)}, v8, s[16:19], 0 offen", tag='x')
    A(f"buffer_load_dwordx4 {v(XR3 + 4, 4)}, v8, s[16:19], 0 offen offset:16", tag='x')
    A(f"buffer_load_dwordx2 {v(XR3 + 8, 2)}, v8, s[16:19], 0 offen offset:32", tag='x')

def p3_C(A, name):
    BR = 16; AF = 96; ACC = 192; XR = XR3; MR = 226
    A("v_mov_b32 v7, v21"); A("v_mov_b32 v2, v3")
    A("s_mul_i32 s27, s26, 20480"); A(f"s_add_u32 s27, s27, {O_OFF}")
    A("v_mul_u32_u24 v12, 20, v1")
    A("s_and_b32 s33, s21, 3")
    for J in range(4):
        A(f"s_add_u32 s34, s33, {J}"); A("s_and_b32 s34, s34, 3"); A("s_mul_i32 s34, s34, 5120"); A("s_add_u32 s34, s34, s27")
        for jj in range(4):
            st = 5 * J + jj
            A(f"buffer_load_dwordx4 {v(BR + st * 4, 4)}, v12, s[12:15], s34 offen offset:{jj * 1280}{SC[0]}", tag=('b', st))
        for jj in range(4):
            st = 5 * J + 4
            A(f"buffer_load_dword v{BR + st * 4 + jj}, v12, s[12:15], s34 offen offset:{jj * 1280 + 16}{SC[0]}", tag=('b', st))
    A("v_lshlrev_b32 v10, 2, v6"); A(f"s_mov_b32 s34, {MEAN1_OFF}")
    A(f"buffer_load_dword v{MR}, v10, s[12:15], s34 offen{SC[0]}", tag='m')
    for r in range(6):
        rds, mfs = [], []
        A("s_waitcnt lgkmcnt(0)")
        A("s_barrier")
        if r < 5:
            for k in range(24):
                st = 4 * r + k // 6
                base, off = (4, st * 6144) if st < 10 else (5, (st - 10) * 6144)
                rds.append((k, base, off + (k % 6) * 1024))
        if r >= 1:
            mfs = list(range(24)); A.vm_wait([('b', 4 * (r - 1) + i) for i in range(4)])
        for k in range(24):
            if mfs:
                st = 4 * (r - 1) + k // 6; t = k % 6
                c = v(ACC + 4 * t, 4) if st > 0 else "0"
                A(f"v_mfma_f32_16x16x32_bf16 {v(ACC + 4 * t, 4)}, {v(AF + k * 4, 4)}, {v(BR + st * 4, 4)}, {c}")
            if rds:
                kk, base, off = rds[k]
                A(f"ds_read_b128 {v(AF + kk * 4, 4)}, v{base} offset:{off}")
    A.vm_wait('m')
    T = 16; AB = T; HF = T + 16; XF = T + 40
    for p in range(10):
        t, r = divmod(2 * p, 4); a0 = ACC + 4 * t + r
        A(f"v_cvt_pk_bf16_f32 v{AB + p}, v{a0}, v{a0 + 1}")
    for p in range(10):
        A(f"v_lshlrev_b32 v{HF + 2 * p}, 16, v{AB + p}"); A(f"v_and_b32 v{HF + 2 * p + 1}, 0xffff0000, v{AB + p}")
        A(f"v_lshlrev_b32 v{XF + 2 * p}, 16, v{XR + p}"); A(f"v_and_b32 v{XF + 2 * p + 1}, 0xffff0000, v{XR + p}")
    for e in range(0, 20, 2): A(f"v_pk_add_f32 {v(HF + e, 2)}, {v(HF + e, 2)}, {v(XF + e, 2)}")
    HP = T + 64
    for p in range(10): A(f"v_cvt_pk_bf16_f32 v{HP + p}, v{HF + 2 * p}, v{HF + 2 * p + 1}")
    A(f"v_add_f32 v{MR}, v{MR}, v{ACC + 20}")
    bf16_round(A, MR + 1, MR, MR + 2)
    for p in range(10):
        A(f"v_lshlrev_b32 v{HF + 2 * p}, 16, v{HP + p}"); A(f"v_and_b32 v{HF + 2 * p + 1}, 0xffff0000, v{HP + p}")
    for e in range(20): A(f"v_sub_f32 v{XF + e}, v{HF + e}, v{MR + 1}")
    CP = T + 76
    for p in range(10): A(f"v_cvt_pk_bf16_f32 v{CP + p}, v{XF + 2 * p}, v{XF + 2 * p + 1}")
    A("s_lshr_b32 s36, s24, 1"); A("s_mul_i32 s36, s36, 5120"); A("s_mul_i32 s37, s26, 20480"); A("s_add_u32 s36, s36, s37")
    A(f"s_add_u32 s36, s36, {HC_OFF}")
    A("v_lshlrev_b32 v11, 3, v1")
    A("s_bitcmp1_b32 s24, 0"); A(f"s_cbranch_scc1 L{name}_odd")
    A(f"buffer_store_dwordx4 {v(CP, 4)}, v4, s[12:15], s36 offen{SC[1]}")
    A(f"buffer_store_dwordx4 {v(CP + 4, 4)}, v4, s[12:15], s36 offen offset:1024{SC[1]}")
    A(f"buffer_store_dwordx2 {v(CP + 8, 2)}, v11, s[12:15], s36 offen offset:2048{SC[1]}")
    A(f"s_branch L{name}_st")
    A.raw(f"L{name}_odd:")
    A(f"buffer_store_dwordx2 {v(CP, 2)}, v11, s[12:15], s36 offen offset:2560{SC[1]}")
    A(f"buffer_store_dwordx4 {v(CP + 2, 4)}, v4, s[12:15], s36 offen offset:3072{SC[1]}")
    A("s_add_u32 s36, s36, 4096")
    A(f"buffer_store_dwordx4 {v(CP + 6, 4)}, v4, s[12:15], s36 offen{SC[1]}")
    A.raw(f"L{name}_st:")
    for e in range(20): A(f"v_sub_f32 v{HF + e}, v{HF + e}, v{MR}")
    A(f"v_mul_f32 v{MR + 2}, v{HF}, v{HF}"); A(f"v_mul_f32 v{MR + 3}, v{HF + 1}, v{HF + 1}")
    for e in range(2, 20): A(f"v_fmac_f32 v{MR + 2 + (e & 1)}, v{HF + e}, v{HF + e}")
    A(f"v_add_f32 v{MR + 2}, v{MR + 2}, v{MR + 3}")
    xlane_sum_g(A, MR + 2, MR + 3)
    A("v_lshlrev_b32 v10, 2, v6"); A("s_lshl_b32 s37, s24, 13"); A(f"s_add_u32 s37, s37, {VARP_OFF}")
    A(f"buffer_store_dword v{MR + 2}, v10, s[12:15], s37 offen{SC[1]}")
    A("s_mul_i32 s35, s25, 3072"); A(f"s_add_u32 s35, s35, {HLDS}"); A("v_add_u32 v10, s35, v4")
    A(f"ds_write_b128 v10, {v(HP, 4)}"); A(f"ds_write_b128 v10, {v(HP + 4, 4)} offset:1024"); A(f"ds_write_b128 v10, {v(HP + 8, 4)} offset:2048")
    if os.environ.get("DBGH"):
        A("s_lshl_b32 s35, s23, 3"); A("s_add_u32 s35, s35, s24"); A("s_lshl_b32 s35, s35, 2"); A("s_add_u32 s35, s35, s25")
        A("s_mul_i32 s35, s35, 2560"); A(f"s_add_u32 s35, s35, {H_OFF}")
        A("v_lshlrev_b32 v11, 3, v1")
        A(f"buffer_store_dwordx4 {v(HP, 4)}, v4, s[12:15], s35 offen{SC[1]}")
        A(f"buffer_store_dwordx4 {v(HP + 4, 4)}, v4, s[12:15], s35 offen offset:1024{SC[1]}")
        A(f"buffer_store_dwordx2 {v(HP + 8, 2)}, v11, s[12:15], s35 offen offset:2048{SC[1]}")
    A("v_mov_b32 v21, v7"); A("v_mov_b32 v3, v2")

SL5 = [122880, 40960, 61440, 81920, 102400, 0, 20480]
NR5 = 14
def p5_H_setup(A):
    A("v_lshlrev_b32 v4, 4, v1")
    A(f"s_mul_i32 s40, s24, {54 * 5120}"); A(f"s_add_u32 s40, s40, {WD_OFF}"); A("s_mul_i32 s41, s25, 5120")
    A("s_and_b32 s43, s21, 7"); A("s_mul_i32 s43, s43, 7"); A("s_add_u32 s43, s43, s25")
def p5_round_dma(A, r):
    base = SL5[r % 7]
    out = []
    for t in range(5):
        def f(t=t):
            if t == 0:
                A("s_cmp_ge_u32 s43, 54"); A("s_cselect_b32 s42, 54, 0"); A("s_sub_u32 s43, s43, s42")
                A("s_mul_i32 s42, s43, 5120"); A("s_add_u32 s42, s42, s40"); A("s_add_u32 s43, s43, 4")
                A(f"s_add_u32 m0, s41, {base}")
            if t == 4:
                A(f"s_add_u32 m0, s41, {base + 4096}"); A(f"s_add_u32 s42, s42, 4096")
                A(f"buffer_load_dwordx4 v4, s[12:15], s42 offen{SC[0]} lds", tag=('r5', r))
            else:
                A(f"buffer_load_dwordx4 v4, s[12:15], s42 offen offset:{t * 1024}{SC[0]} lds", tag=('r5', r))
        out.append(f)
    return out
def p5_H(A, issued):
    for r in range(NR5):
        A.vm_wait(('r5', r))
        A("s_barrier")
        if r >= 1 and issued < NR5 and issued == r + 6:
            for f in p5_round_dma(A, issued): f()
            issued += 1

def p5_C(A, name):
    RING = 7; AHEAD = 5; A0 = 2
    BREG = 16; AFR = BREG + RING * 16; ACC = AFR + 80; HREG = ACC + 20
    A("v_mov_b32 v7, v21"); A("v_mov_b32 v2, v3")
    A("v_lshlrev_b32 v4, 4, v1"); A("v_add_u32 v5, 61440, v4"); A("v_add_u32 v6, 122880, v4")
    A(f"s_mul_i32 s27, s26, {54 * 1024}"); A(f"s_add_u32 s27, s27, {ACT_OFF}")
    A("v_lshlrev_b32 v8, 3, v1")
    A("s_and_b32 s33, s21, 7"); A("s_mul_i32 s33, s33, 7")
    def loads(r):
        out = []
        for i in range(4):
            if 4 * r + i < 54:
                def f(i=i):
                    b = BREG + ((r % RING) * 4 + i) * 4
                    A("s_cmp_ge_u32 s33, 54"); A("s_cselect_b32 s34, 54, 0"); A("s_sub_u32 s33, s33, s34")
                    A("s_lshl_b32 s34, s33, 10"); A("s_add_u32 s34, s34, s27"); A("s_add_u32 s33, s33, 1")
                    A(f"buffer_load_dwordx4 {v(b, 4)}, v4, s[12:15], s34 offen{SC[0]}", tag=('b5', r))
                out.append(f)
        return out
    for r in range(A0):
        for f in loads(r): f()
    nxt = [A0]
    A("s_load_dwordx2 s[4:5], s[0:1], 64")
    A("s_lshl_b32 s30, s26, 4"); A("v_add_u32 v9, s30, v7"); A("v_mul_u32_u24 v9, 1280, v9"); A("v_mul_u32_u24 v10, 40, v2")
    A("s_mul_i32 s31, s24, 160"); A("v_add3_u32 v9, v9, v10, s31")
    A("s_waitcnt lgkmcnt(0)")
    A("s_mov_b32 s16, s4"); A("s_mov_b32 s17, s5"); A(f"s_mov_b32 s18, {S * D * 2}"); A("s_mov_b32 s19, 0x20000")
    def nst(r): return 4 if 4 * r + 3 < 54 else 54 - 4 * r
    for r in range(NR5 + 1):
        pend, rds, mfs = [], [], []
        A("s_waitcnt lgkmcnt(0)")
        if r < NR5:
            A("s_barrier")
            if os.environ.get("P5FINE") and r < 12:
                A.stamps = True; A.stamp(r + 2); A.stamps = False
            pend = []
            for _ in range(2 if nxt[0] < r + AHEAD else 1):
                if nxt[0] < NR5 and nxt[0] <= r + AHEAD:
                    pend += loads(nxt[0]); nxt[0] += 1
            lo = SL5[r % 7]
            base, off0 = (4, lo) if lo < 61440 else ((5, lo - 61440) if lo < 122880 else (6, lo - 122880))
            rds = [(k, base, off0 + (k // 5) * 5120 + (k % 5) * 1024) for k in range(nst(r) * 5)]
        if r >= 1:
            ps = (r - 1) % RING
            mfs = [(k, BREG + (ps * 4 + k // 5) * 4) for k in range(nst(r - 1) * 5)]
            A.vm_wait(('b5', r - 1))
        n = max(len(rds), len(mfs))
        for k in range(n):
            if k < len(mfs):
                kk, b = mfs[k]; t = kk % 5
                first = (r == 1 and kk < 5)
                A(f"v_mfma_f32_16x16x32_bf16 {v(ACC + 4 * t, 4)}, {v(AFR + kk * 4, 4)}, {v(b, 4)}, {v(ACC + 4 * t, 4) if not first else 0}")
            if k < len(rds):
                kk, base, off = rds[k]
                A(f"ds_read_b128 {v(AFR + kk * 4, 4)}, v{base} offset:{off}")
            if k % 2 == 1 and pend: pend.pop(0)()
        while pend: pend.pop(0)()
    A("s_mul_i32 s35, s25, 3072"); A(f"s_add_u32 s35, s35, {HLDS}"); A("v_add_u32 v10, s35, v4")
    A(f"ds_read_b128 {v(HREG, 4)}, v10"); A(f"ds_read_b128 {v(HREG + 4, 4)}, v10 offset:1024"); A(f"ds_read_b128 {v(HREG + 8, 4)}, v10 offset:2048")
    A("s_waitcnt lgkmcnt(0)")
    T = 16
    for p in range(10):
        t, r = divmod(2 * p, 4); a0 = ACC + 4 * t + r
        A(f"v_cvt_pk_bf16_f32 v{T + p}, v{a0}, v{a0 + 1}")
    for p in range(10):
        A(f"v_lshlrev_b32 v{T + 16 + 2 * p}, 16, v{T + p}"); A(f"v_and_b32 v{T + 17 + 2 * p}, 0xffff0000, v{T + p}")
        A(f"v_lshlrev_b32 v{T + 40 + 2 * p}, 16, v{HREG + p}"); A(f"v_and_b32 v{T + 41 + 2 * p}, 0xffff0000, v{HREG + p}")
    for p in range(10): A(f"v_pk_add_f32 {v(T + 16 + 2 * p, 2)}, {v(T + 16 + 2 * p, 2)}, {v(T + 40 + 2 * p, 2)}")
    O = 80
    for p in range(10): A(f"v_cvt_pk_bf16_f32 v{O + p}, v{T + 16 + 2 * p}, v{T + 17 + 2 * p}")
    A(f"buffer_store_dwordx4 {v(O, 4)}, v9, s[16:19], 0 offen")
    A(f"buffer_store_dwordx4 {v(O + 4, 4)}, v9, s[16:19], 0 offen offset:16")
    A(f"buffer_store_dwordx2 {v(O + 8, 2)}, v9, s[16:19], 0 offen offset:32")

def w0(A, lbl):
    A("s_cmp_lg_u32 s22, 0"); A(f"s_cbranch_scc1 {lbl}")

NPF = 12
import os
def gen_mega(name="mega_kernel", stamps=False, kidx=0):
    A = Asm(); A.endlabel = f"L{name}_end"; A.stamps = False; A.rl_sc = SC[1]; A.nonce_c = True
    def dbgt(k):
        if not os.environ.get("DBGT"): return
        lbl = f"L{name}_dt{k}"
        A("s_cmp_lg_u32 s22, 0"); A(f"s_cbranch_scc1 {lbl}")
        A("s_memrealtime s[94:95]"); A("s_waitcnt lgkmcnt(0)")
        if k == 0: A("s_not_b32 s94, s94")
        A("s_mov_b64 s[92:93], exec"); A("s_mov_b64 exec, 1")
        A(f"v_mov_b32 v10, {4 * (k + 1)}"); A("v_mov_b32 v11, s94")
        A("global_atomic_umax v10, v11, s[98:99]")
        A("s_mov_b64 exec, s[92:93]")
        A.raw(f"{lbl}:")
    def mstamp(k):
        if (os.environ.get("P5FINE") or os.environ.get("P4FINE")) and k not in (0,):
            if os.environ.get("P5FINE") and k == 12: k = 1
            elif os.environ.get("P4FINE") and k == 10: k = 1
            elif os.environ.get("P4FINE") and k == 11: k = 9
            elif k == 13 and os.environ.get("P5FINE"): return
            elif k == 13: pass
            else: return
        if os.environ.get("P1FINE") and k not in (0, 13) and not (k == 1): return
        if os.environ.get("P1FINE") and k == 1: k = 12
        A.stamps = stamps; A.stamp(k); A.stamps = False
    A.raw(f".globl {name}\n.p2align 8\n.type {name},@function\n{name}:")
    A("s_cmp_ge_u32 s2, 256"); A("s_cbranch_scc1 " + A.endlabel)
    mstamp(0)
    P1.p1_common_setup(A)
    A("s_cmp_ge_u32 s22, 4"); A(f"s_cbranch_scc1 L{name}_H1")

    if not os.environ.get("NOL2PF"):
        A("s_waitcnt lgkmcnt(0)")
        dbgt(0)
        A("s_mov_b32 s36, s4"); A("s_mov_b32 s37, s5"); A(f"s_mov_b32 s38, {S * D * 2}"); A("s_mov_b32 s39, 0x20000")
        A("s_mov_b32 s40, s6"); A("s_mov_b32 s41, s7"); A(f"s_mov_b32 s42, {640 * 1920 * 2}"); A("s_mov_b32 s43, 0x20000")
        A("s_mul_i32 s52, s21, 20"); A("s_mul_i32 s53, s25, 5"); A("s_add_u32 s52, s52, s53"); A("s_mul_i32 s52, s52, 3840")
        A("s_and_b32 s53, s20, 1"); A("s_mul_i32 s53, s53, 640"); A("s_add_u32 s52, s52, s53")
        for h in range(2):
            A(f"v_add_u32 v30, {60 * h}, v1"); A(f"v_min_u32 v30, 119, v30")
            P1.udiv_small(A, 31, 30, 40); A("v_mul_u32_u24 v29, 40, v31"); A("v_sub_u32 v30, v30, v29")
            A(f"v_mul_u32_u24 v31, 1280, v31"); A(f"v_lshl_add_u32 v{226 + h}, v30, 4, v31")
        for row in range(5):
            for h in range(2):
                A(f"buffer_load_dwordx4 v[232:235], v{226 + h}, s[40:43], s52 offen")
            A("s_add_u32 s52, s52, 3840")
        A("s_lshr_b32 s52, s20, 1"); A("s_lshl_b32 s52, s52, 9"); A("s_lshl_b32 s53, s21, 4"); A("s_add_u32 s52, s52, s53"); A("s_lshl_b32 s53, s25, 2"); A("s_add_u32 s52, s52, s53")
        A("s_mul_i32 s52, s52, 1280")
        A("v_lshlrev_b32 v30, 4, v1")
        for k in range(4): A(f"buffer_load_dwordx4 v[232:235], v30, s[36:39], s52 offen offset:{1024 * k}")
        A("s_add_u32 s52, s52, 4096")
        A(f"buffer_load_dwordx4 v[232:235], v30, s[36:39], s52 offen")
    def code_pf():
        A("s_getpc_b64 s[50:51]")
        A.raw(f"L{name}_pc:")
        A(f"s_sub_u32 s50, s50, (L{name}_pc - {name})"); A("s_subb_u32 s51, s51, 0")
        A("v_lshlrev_b32 v30, 4, v1"); A("s_mul_i32 s52, s25, CODE_Q"); A("v_add_u32 v30, s52, v30")
        for k in range(NPF):
            A(f"global_load_dwordx4 v[232:235], v30, s[50:51] offset:{(k % 4) * 1024}")
            if k % 4 == 3: A("v_add_u32 v30, 4096, v30")
    A.code_pf = (lambda: None) if os.environ.get('NOPF') else code_pf
    R = P1.p1_C(A, name)
    A("s_waitcnt lgkmcnt(0)")
    A("s_barrier")
    A(f"s_branch L{name}_epi")
    A.raw(f"L{name}_H1:")
    A.hist = []; A.vm = []
    P1.p1_H(A, name)
    A("s_barrier")
    R_ = R
    A(f"s_mul_i32 s31, s25, 9216"); A(f"v_lshlrev_b32 v228, 4, v1"); A(f"v_add_u32 v228, s31, v228")
    for t in range(8): A(f"ds_read_b128 {v(R['ACC'] + 4 * t, 4)}, v228 offset:{P1.HO + 1024 * t}")
    A(f"s_lshl_b32 s31, s25, 11"); A(f"s_add_u32 s31, s31, {P1.HO2}"); A(f"v_lshlrev_b32 v229, 4, v1"); A(f"v_add_u32 v229, s31, v229")
    A(f"ds_read_b128 {v(R['GR'], 4)}, v229"); A(f"ds_read_b128 {v(R['SX'], 4)}, v229 offset:1024")
    A("s_waitcnt lgkmcnt(0)")
    A.raw(f"L{name}_epi:")
    A.hist = []; A.vm = []
    A("s_nop 7")
    mstamp(1); dbgt(1)
    PH = P1.p1_epilogue(A, name, R, True)
    mstamp(2)
    A("s_waitcnt vmcnt(0)")
    A("s_barrier")
    mstamp(3); dbgt(2)
    zero_afr(A, 8)
    w0(A, f"L{name}_a0")
    P1.nonce_get(A, name, None, 8)
    A("s_lshl_b32 s33, s24, 4"); A("s_add_u32 s33, s33, s23")
    flag_set(A, FA, 33)
    A(f"v_mov_b32 v8, {NONCE_LDS}"); A("v_mov_b32 v9, s96"); A("ds_write_b32 v8, v9")
    A.raw(f"L{name}_a0:")
    import rl2
    A.vm = []
    A("s_lshl_b32 s60, s22, 12"); A("s_add_u32 s60, s60, 98304")
    rl2.finish(A, f"L{name}_f0", 16, 236, 64, 60, A.rl_sc)
    A("s_cmp_lt_u32 s22, 4"); A(f"s_cbranch_scc1 L{name}_f1x")
    rl2.finish(A, f"L{name}_f1", 17, 152, 64, 60, A.rl_sc)
    A.raw(f"L{name}_f1x:")
    w0(A, f"L{name}_a1b")
    A("s_lshl_b32 s33, s24, 4")
    flag_wait(A, f"L{name}_pa", FA, 33, 16)
    A.raw(f"L{name}_a1b:")
    A("s_waitcnt vmcnt(0)")
    A.raw(f"L{name}_a1:")
    A("s_waitcnt lgkmcnt(0)")
    A("s_barrier")
    mstamp(4); dbgt(3)
    A(f"v_mov_b32 v8, {NONCE_LDS}"); A("ds_read_b32 v9, v8"); A("s_waitcnt lgkmcnt(0)"); A("v_readfirstlane_b32 s96, v9")
    w0(A, f"L{name}_a2")
    flag_set(A, FW, 2)
    A.raw(f"L{name}_a2:")
    A.vm = []
    p2_body(A, name, PH, sc=SC[0], osc=SC[1])
    mstamp(5)
    A("s_waitcnt vmcnt(0)")
    A("s_barrier")
    mstamp(6); dbgt(4)
    w0(A, f"L{name}_a3")
    A("s_lshl_b32 s33, s23, 4"); A("s_add_u32 s33, s33, s24")
    flag_set(A, FO, 33)
    flag_wait(A, f"L{name}_pw", FW, None, 256)
    A.raw(f"L{name}_a3:")
    ids_p35(A)
    A("s_barrier")
    mstamp(7)
    A("s_cmp_ge_u32 s22, 4"); A(f"s_cbranch_scc1 L{name}_H3")
    A.hist = []; A.vm = []
    p3_C_pre(A)
    w0(A, f"L{name}_a4")
    A("s_waitcnt vmcnt(0)") if False else None
    A("s_lshr_b32 s33, s23, 1"); A("s_lshl_b32 s33, s33, 4")
    flag_wait(A, f"L{name}_po", FO, 33, 16)
    A.raw(f"L{name}_a4:")
    A("s_barrier")
    mstamp(8); dbgt(5)
    A.vm = ['x', 'x', 'x']
    p3_C(A, name)
    mstamp(9)
    A("s_waitcnt vmcnt(0)")
    A("s_barrier")
    w0(A, f"L{name}_a5")
    A("s_lshl_b32 s33, s23, 3"); A("s_add_u32 s33, s33, s24")
    flag_set(A, FH, 33)
    A.raw(f"L{name}_a5:")
    P4.ids_p4(A)
    w0(A, f"L{name}_a6")
    A("s_lshl_b32 s33, s23, 4")
    flag_wait(A, f"L{name}_ph", FH, 33, 16)
    A.raw(f"L{name}_a6:")
    A("s_barrier")
    mstamp(10); dbgt(6)
    A.hist = []; A.vm = []
    A.p4_pre_hc = lambda: None
    P4.p4_C(A, SC)
    mstamp(11)
    A("s_waitcnt vmcnt(0)")
    A("s_barrier")
    w0(A, f"L{name}_a7")
    A("s_lshl_b32 s33, s23, 4"); A("s_add_u32 s33, s33, s18")
    flag_set(A, FG, 33)
    A.raw(f"L{name}_a7:")
    A("v_and_b32 v21, 15, v1"); A("v_lshrrev_b32 v3, 4, v1")
    ids_p35(A)
    w0(A, f"L{name}_a8")
    A("s_lshr_b32 s33, s23, 1"); A("s_lshl_b32 s33, s33, 4")
    flag_wait(A, f"L{name}_pg", FG, 33, 16)
    A.raw(f"L{name}_a8:")
    A("s_barrier")
    mstamp(12); dbgt(7)
    A.hist = []; A.vm = []
    p5_C(A, name)
    if os.environ.get("DBGT"): A("s_waitcnt vmcnt(0)")
    dbgt(8)
    A(f"s_branch L{name}_fin")
    A.raw(f"L{name}_H3:")
    A.hist = []; A.vm = []
    p3_H_dma(A)
    if os.environ.get("L2GU"): l2_prefetch(A, WGU_OFF, 56 * 40960, 71680, 17920, 18)
    A("s_barrier")
    mstamp(8)
    p3_H_loop(A)
    P4.ids_p4(A)
    P4.p4_H_setup(A)
    for f in range(3):
        for fn in P4.p4_tile_dma(A, f, SC): fn()
    A("s_barrier")
    A("s_barrier")
    mstamp(9); mstamp(10); mstamp(11)
    A.p4_pre_var = lambda: None
    A("s_mov_b32 s44, s23"); A("s_mov_b32 s45, s24"); A("s_mov_b32 s46, s26")
    ids_p35(A); p5_H_setup(A)
    A("s_mov_b32 s23, s44"); A("s_mov_b32 s24, s45"); A("s_mov_b32 s26, s46")
    state = {'n': 0}
    def tail(f):
        rounds = {4: [0, 1, 2], 5: [3, 4]}.get(f, [])
        out = []
        for r in rounds: out += p5_round_dma(A, r)
        state['n'] += len(rounds)
        return out
    A.p4_tail_dma = tail
    if os.environ.get("L2WD"): l2_prefetch(A, WD_OFF, 0, 69120, 17280, 17)
    P4.p4_H(A, SC, prefetched=3)
    A("s_barrier")
    for r in (5, 6):
        for f in p5_round_dma(A, r): f()
    A("s_barrier")
    mstamp(12)
    p5_H(A, 7)
    A.raw(f"L{name}_fin:")
    if stamps:
        A("s_waitcnt vmcnt(0)")
        mstamp(13); A.stamps = True; A.nstamp = 14
        A("v_lshlrev_b32 v0, 6, s22") if False else None
        A("v_mov_b32 v0, s22"); A("v_lshlrev_b32 v0, 6, v0")
        A.stamp_dump(8, 9, TS_OFF, 8)
    A.raw(A.endlabel + ":")
    A("s_endpgm")
    A.raw(f"L{name}_last:")
    A.raw(".fill 1024, 4, 0xbf800000")
    txt = A.text().replace("CODE_Q", str(NPF * 1024))
    return txt, kernel_desc(name, 256, 102, 256), (256, 512, 163840)
```

```python
from asmlib import *
from layout import *
from k4 import f32hex, bf16_round
from k3 import xlane_sum_g
import p1 as P1
import p4 as P4
from k2 import p2_body, zero_afr

SC = (" sc1", " sc0 sc1")
FA, FW, FO, FH, FG, FW3 = 0, 1, 2, 3, 4, 5
NONCE_LDS = 163832

def flag_set(A, phase, sidx):
    A(f"s_lshl_b32 s31, s{sidx}, 6"); A(f"s_add_u32 s31, s31, {FLAG_OFF + phase * 16384}")
    A("v_mov_b32 v8, 0"); A("v_mov_b32 v9, s96")
    A("s_mov_b64 exec, 1")
    A("buffer_store_dword v9, v8, s[12:15], s31 offen sc0 sc1")
    A("s_mov_b64 exec, -1")

def flag_wait(A, lbl, phase, sbase, n):
    if sbase is None: A(f"s_mov_b32 s31, {FLAG_OFF + phase * 16384}")
    else:
        A(f"s_lshl_b32 s31, s{sbase}, 6"); A(f"s_add_u32 s31, s31, {FLAG_OFF + phase * 16384}")
    A("v_lshlrev_b32 v8, 6, v1")
    A("s_mov_b32 s97, 0")
    if n == 16:
        NP = 3
        A("s_mov_b64 exec, 0xffff")
        A("s_waitcnt vmcnt(0)")
        for k in range(NP):
            A(f"buffer_load_dword v{253 + k}, v8, s[12:15], s31 offen sc1")
            if k < NP - 1: A("s_sleep 2")
        A.raw(f"{lbl}:")
        for k in range(NP):
            A(f"s_waitcnt vmcnt({NP - 1})")
            A(f"v_cmp_ne_u32 vcc, s96, v{253 + k}")
            A(f"s_cbranch_vccz {lbl}_x")
            A(f"buffer_load_dword v{253 + k}, v8, s[12:15], s31 offen sc1")
        A("s_add_u32 s97, s97, 1")
        A("s_cmp_le_u32 s97, 0x20000")
        A(f"s_cbranch_scc1 {lbl}")
        A.raw(f"{lbl}_x:")
        A("s_mov_b64 exec, -1")
        return
    A.raw(f"{lbl}:")
    nl = {128: 2, 256: 4}[n]
    for k in range(nl):
        if k: A(f"s_add_u32 s30, s31, {4096 * k}")
        A(f"buffer_load_dword v{9 + k}, v8, s[12:15], s{31 if k == 0 else 30} offen sc1")
    A("s_add_u32 s97, s97, 1")
    A("s_waitcnt vmcnt(0)")
    for k in range(nl): A(f"v_xor_b32 v{9 + k}, s96, v{9 + k}")
    for k in range(1, nl): A(f"v_or_b32 v9, v9, v{9 + k}")
    A("v_cmp_ne_u32 vcc, 0, v9")
    A("s_cmp_gt_u32 s97, 0x40000")
    A(f"s_cbranch_scc1 {lbl}_x")
    A(f"s_cbranch_vccnz {lbl}")
    A.raw(f"{lbl}_x:")
    A("s_mov_b64 exec, -1")

def ids_p35(A):
    A("s_and_b32 s20, s2, 7"); A("s_lshr_b32 s21, s2, 3")
    if os.environ.get("MAP35") == "old":
        A("s_lshr_b32 s23, s20, 1"); A("s_lshl_b32 s23, s23, 3"); A("s_lshr_b32 s24, s21, 2"); A("s_add_u32 s23, s23, s24")
        A("s_and_b32 s24, s20, 1"); A("s_lshl_b32 s24, s24, 2"); A("s_and_b32 s27, s21, 3"); A("s_add_u32 s24, s24, s27")
    else:
        A("s_lshl_b32 s23, s20, 2"); A("s_lshr_b32 s24, s21, 3"); A("s_add_u32 s23, s23, s24")
        A("s_and_b32 s24, s21, 7")
    A("s_lshl_b32 s26, s23, 2"); A("s_add_u32 s26, s26, s25")

def l2_prefetch(A, base, per_xcd_sel, per_wg, per_wave, n):
    A(f"s_mul_i32 s56, s21, {per_wg}"); A(f"s_mul_i32 s57, s25, {per_wave}"); A("s_add_u32 s56, s56, s57"); A(f"s_add_u32 s56, s56, {base}")
    if per_xcd_sel:
        A("s_and_b32 s57, s20, 1"); A(f"s_mul_i32 s57, s57, {per_xcd_sel}"); A("s_add_u32 s56, s56, s57")
    A("v_lshlrev_b32 v12, 4, v1")
    for k in range(n):
        if k and k % 4 == 0: A("s_add_u32 s56, s56, 4096")
        A(f"buffer_load_dwordx4 v[8:11], v12, s[12:15], s56 offen offset:{(k % 4) * 1024}{SC[0]}", tag='pf')

def p3_H_dma(A):
    A("v_lshlrev_b32 v4, 4, v1"); A("v_lshlrev_b32 v5, 4, v3")
    A("s_mul_i32 s28, s24, 102400"); A(f"s_add_u32 s28, s28, {WO_OFF}")
    A("s_mul_i32 s29, s25, 6144")
    A("s_and_b32 s33, s21, 3"); A("s_mul_i32 s33, s33, 5"); A("s_add_u32 s33, s33, s25")
    for r in range(5):
        A("s_cmp_ge_u32 s33, 20"); A("s_cselect_b32 s34, 20, 0"); A("s_sub_u32 s33, s33, s34")
        A("s_mul_i32 s34, s33, 5120"); A("s_add_u32 s34, s34, s28")
        A("s_lshl_b32 s30, s33, 6"); A(f"s_add_u32 s30, s30, {WBAR_OFF}")
        A(f"s_add_u32 m0, s29, {r * 4 * 6144}")
        for t in range(4):
            A(f"buffer_load_dwordx4 v4, s[12:15], s34 offen offset:{t * 1024}{SC[0]} lds", tag=('r', r))
        A(f"s_add_u32 m0, s29, {r * 4 * 6144 + 4096}")
        A("s_add_u32 s32, s34, 4096")
        A(f"buffer_load_dwordx4 v4, s[12:15], s32 offen{SC[0]} lds", tag=('r', r))
        A(f"s_add_u32 m0, s29, {r * 4 * 6144 + 5120}")
        A(f"buffer_load_dwordx4 v5, s[12:15], s30 offen{SC[0]} lds", tag=('r', r))
        A("s_add_u32 s33, s33, 4")

def p3_H_loop(A):
    for r in range(5):
        A.vm_wait(('r', r))
        A("s_barrier")
    A("s_barrier")

XR3 = 216
HLDS = 143360
import os
def p3_C_pre(A):
    A("v_lshlrev_b32 v4, 4, v1"); A("v_add_u32 v5, 61440, v4")
    A("s_lshl_b32 s31, s26, 4"); A("v_add_u32 v6, s31, v21")
    A("v_mul_u32_u24 v8, 1280, v6"); A("v_mul_u32_u24 v9, 40, v3"); A("s_mul_i32 s33, s24, 160"); A("v_add3_u32 v8, v8, v9, s33")
    A("s_mov_b32 s16, s4"); A("s_mov_b32 s17, s5"); A(f"s_mov_b32 s18, {S * D * 2}"); A("s_mov_b32 s19, 0x20000")
    A(f"buffer_load_dwordx4 {v(XR3, 4)}, v8, s[16:19], 0 offen", tag='x')
    A(f"buffer_load_dwordx4 {v(XR3 + 4, 4)}, v8, s[16:19], 0 offen offset:16", tag='x')
    A(f"buffer_load_dwordx2 {v(XR3 + 8, 2)}, v8, s[16:19], 0 offen offset:32", tag='x')

def p3_C(A, name):
    BR = 16; AF = 96; ACC = 192; XR = XR3; MR = 226
    A("v_mov_b32 v7, v21"); A("v_mov_b32 v2, v3")
    A("s_mul_i32 s27, s26, 20480"); A(f"s_add_u32 s27, s27, {O_OFF}")
    A("v_mul_u32_u24 v12, 20, v1")
    A("s_and_b32 s33, s21, 3")
    for J in range(4):
        A(f"s_add_u32 s34, s33, {J}"); A("s_and_b32 s34, s34, 3"); A("s_mul_i32 s34, s34, 5120"); A("s_add_u32 s34, s34, s27")
        for jj in range(4):
            st = 5 * J + jj
            A(f"buffer_load_dwordx4 {v(BR + st * 4, 4)}, v12, s[12:15], s34 offen offset:{jj * 1280}{SC[0]}", tag=('b', st))
        for jj in range(4):
            st = 5 * J + 4
            A(f"buffer_load_dword v{BR + st * 4 + jj}, v12, s[12:15], s34 offen offset:{jj * 1280 + 16}{SC[0]}", tag=('b', st))
    A("v_lshlrev_b32 v10, 2, v6"); A(f"s_mov_b32 s34, {MEAN1_OFF}")
    A(f"buffer_load_dword v{MR}, v10, s[12:15], s34 offen{SC[0]}", tag='m')
    for r in range(6):
        rds, mfs = [], []
        A("s_waitcnt lgkmcnt(0)")
        A("s_barrier")
        if r < 5:
            for k in range(24):
                st = 4 * r + k // 6
                base, off = (4, st * 6144) if st < 10 else (5, (st - 10) * 6144)
                rds.append((k, base, off + (k % 6) * 1024))
        if r >= 1:
            mfs = list(range(24)); A.vm_wait([('b', 4 * (r - 1) + i) for i in range(4)])
        for k in range(24):
            if mfs:
                st = 4 * (r - 1) + k // 6; t = k % 6
                c = v(ACC + 4 * t, 4) if st > 0 else "0"
                A(f"v_mfma_f32_16x16x32_bf16 {v(ACC + 4 * t, 4)}, {v(AF + k * 4, 4)}, {v(BR + st * 4, 4)}, {c}")
            if rds:
                kk, base, off = rds[k]
                A(f"ds_read_b128 {v(AF + kk * 4, 4)}, v{base} offset:{off}")
    A.vm_wait('m')
    T = 16; AB = T; HF = T + 16; XF = T + 40
    for p in range(10):
        t, r = divmod(2 * p, 4); a0 = ACC + 4 * t + r
        A(f"v_cvt_pk_bf16_f32 v{AB + p}, v{a0}, v{a0 + 1}")
    for p in range(10):
        A(f"v_lshlrev_b32 v{HF + 2 * p}, 16, v{AB + p}"); A(f"v_and_b32 v{HF + 2 * p + 1}, 0xffff0000, v{AB + p}")
        A(f"v_lshlrev_b32 v{XF + 2 * p}, 16, v{XR + p}"); A(f"v_and_b32 v{XF + 2 * p + 1}, 0xffff0000, v{XR + p}")
    for e in range(0, 20, 2): A(f"v_pk_add_f32 {v(HF + e, 2)}, {v(HF + e, 2)}, {v(XF + e, 2)}")
    HP = T + 64
    for p in range(10): A(f"v_cvt_pk_bf16_f32 v{HP + p}, v{HF + 2 * p}, v{HF + 2 * p + 1}")
    A(f"v_add_f32 v{MR}, v{MR}, v{ACC + 20}")
    bf16_round(A, MR + 1, MR, MR + 2)
    for p in range(10):
        A(f"v_lshlrev_b32 v{HF + 2 * p}, 16, v{HP + p}"); A(f"v_and_b32 v{HF + 2 * p + 1}, 0xffff0000, v{HP + p}")
    for e in range(20): A(f"v_sub_f32 v{XF + e}, v{HF + e}, v{MR + 1}")
    CP = T + 76
    for p in range(10): A(f"v_cvt_pk_bf16_f32 v{CP + p}, v{XF + 2 * p}, v{XF + 2 * p + 1}")
    A("s_lshr_b32 s36, s24, 1"); A("s_mul_i32 s36, s36, 5120"); A("s_mul_i32 s37, s26, 20480"); A("s_add_u32 s36, s36, s37")
    A(f"s_add_u32 s36, s36, {HC_OFF}")
    A("v_lshlrev_b32 v11, 3, v1")
    A("s_bitcmp1_b32 s24, 0"); A(f"s_cbranch_scc1 L{name}_odd")
    A(f"buffer_store_dwordx4 {v(CP, 4)}, v4, s[12:15], s36 offen{SC[1]}")
    A(f"buffer_store_dwordx4 {v(CP + 4, 4)}, v4, s[12:15], s36 offen offset:1024{SC[1]}")
    A(f"buffer_store_dwordx2 {v(CP + 8, 2)}, v11, s[12:15], s36 offen offset:2048{SC[1]}")
    A(f"s_branch L{name}_st")
    A.raw(f"L{name}_odd:")
    A(f"buffer_store_dwordx2 {v(CP, 2)}, v11, s[12:15], s36 offen offset:2560{SC[1]}")
    A(f"buffer_store_dwordx4 {v(CP + 2, 4)}, v4, s[12:15], s36 offen offset:3072{SC[1]}")
    A("s_add_u32 s36, s36, 4096")
    A(f"buffer_store_dwordx4 {v(CP + 6, 4)}, v4, s[12:15], s36 offen{SC[1]}")
    A.raw(f"L{name}_st:")
    for e in range(20): A(f"v_sub_f32 v{HF + e}, v{HF + e}, v{MR}")
    A(f"v_mul_f32 v{MR + 2}, v{HF}, v{HF}"); A(f"v_mul_f32 v{MR + 3}, v{HF + 1}, v{HF + 1}")
    for e in range(2, 20): A(f"v_fmac_f32 v{MR + 2 + (e & 1)}, v{HF + e}, v{HF + e}")
    A(f"v_add_f32 v{MR + 2}, v{MR + 2}, v{MR + 3}")
    xlane_sum_g(A, MR + 2, MR + 3)
    A("v_lshlrev_b32 v10, 2, v6"); A("s_lshl_b32 s37, s24, 13"); A(f"s_add_u32 s37, s37, {VARP_OFF}")
    A(f"buffer_store_dword v{MR + 2}, v10, s[12:15], s37 offen{SC[1]}")
    A("s_mul_i32 s35, s25, 3072"); A(f"s_add_u32 s35, s35, {HLDS}"); A("v_add_u32 v10, s35, v4")
    A(f"ds_write_b128 v10, {v(HP, 4)}"); A(f"ds_write_b128 v10, {v(HP + 4, 4)} offset:1024"); A(f"ds_write_b128 v10, {v(HP + 8, 4)} offset:2048")
    if os.environ.get("DBGH"):
        A("s_lshl_b32 s35, s23, 3"); A("s_add_u32 s35, s35, s24"); A("s_lshl_b32 s35, s35, 2"); A("s_add_u32 s35, s35, s25")
        A("s_mul_i32 s35, s35, 2560"); A(f"s_add_u32 s35, s35, {H_OFF}")
        A("v_lshlrev_b32 v11, 3, v1")
        A(f"buffer_store_dwordx4 {v(HP, 4)}, v4, s[12:15], s35 offen{SC[1]}")
        A(f"buffer_store_dwordx4 {v(HP + 4, 4)}, v4, s[12:15], s35 offen offset:1024{SC[1]}")
        A(f"buffer_store_dwordx2 {v(HP + 8, 2)}, v11, s[12:15], s35 offen offset:2048{SC[1]}")
    A("v_mov_b32 v21, v7"); A("v_mov_b32 v3, v2")

SL5 = [122880, 40960, 61440, 81920, 102400, 0, 20480]
NR5 = 14
def p5_H_setup(A):
    A("v_lshlrev_b32 v4, 4, v1")
    A(f"s_mul_i32 s40, s24, {54 * 5120}"); A(f"s_add_u32 s40, s40, {WD_OFF}"); A("s_mul_i32 s41, s25, 5120")
    A("s_and_b32 s43, s21, 7"); A("s_mul_i32 s43, s43, 7"); A("s_add_u32 s43, s43, s25")
def p5_round_dma(A, r):
    base = SL5[r % 7]
    out = []
    for t in range(5):
        def f(t=t):
            if t == 0:
                A("s_cmp_ge_u32 s43, 54"); A("s_cselect_b32 s42, 54, 0"); A("s_sub_u32 s43, s43, s42")
                A("s_mul_i32 s42, s43, 5120"); A("s_add_u32 s42, s42, s40"); A("s_add_u32 s43, s43, 4")
                A(f"s_add_u32 m0, s41, {base}")
            if t == 4:
                A(f"s_add_u32 m0, s41, {base + 4096}"); A(f"s_add_u32 s42, s42, 4096")
                A(f"buffer_load_dwordx4 v4, s[12:15], s42 offen{SC[0]} lds", tag=('r5', r))
            else:
                A(f"buffer_load_dwordx4 v4, s[12:15], s42 offen offset:{t * 1024}{SC[0]} lds", tag=('r5', r))
        out.append(f)
    return out
def p5_H(A, issued):
    for r in range(NR5):
        A.vm_wait(('r5', r))
        A("s_barrier")
        if r >= 1 and issued < NR5 and issued == r + 6:
            for f in p5_round_dma(A, issued): f()
            issued += 1

def p5_C(A, name):
    RING = 7; AHEAD = 5; A0 = 2
    BREG = 16; AFR = BREG + RING * 16; ACC = AFR + 80; HREG = ACC + 20
    A("v_mov_b32 v7, v21"); A("v_mov_b32 v2, v3")
    A("v_lshlrev_b32 v4, 4, v1"); A("v_add_u32 v5, 61440, v4"); A("v_add_u32 v6, 122880, v4")
    A(f"s_mul_i32 s27, s26, {54 * 1024}"); A(f"s_add_u32 s27, s27, {ACT_OFF}")
    A("v_lshlrev_b32 v8, 3, v1")
    A("s_and_b32 s33, s21, 7"); A("s_mul_i32 s33, s33, 7")
    def loads(r):
        out = []
        for i in range(4):
            if 4 * r + i < 54:
                def f(i=i):
                    b = BREG + ((r % RING) * 4 + i) * 4
                    A("s_cmp_ge_u32 s33, 54"); A("s_cselect_b32 s34, 54, 0"); A("s_sub_u32 s33, s33, s34")
                    A("s_lshl_b32 s34, s33, 10"); A("s_add_u32 s34, s34, s27"); A("s_add_u32 s33, s33, 1")
                    A(f"buffer_load_dwordx4 {v(b, 4)}, v4, s[12:15], s34 offen{SC[0]}", tag=('b5', r))
                out.append(f)
        return out
    for r in range(A0):
        for f in loads(r): f()
    nxt = [A0]
    A("s_load_dwordx2 s[4:5], s[0:1], 64")
    A("s_lshl_b32 s30, s26, 4"); A("v_add_u32 v9, s30, v7"); A("v_mul_u32_u24 v9, 1280, v9"); A("v_mul_u32_u24 v10, 40, v2")
    A("s_mul_i32 s31, s24, 160"); A("v_add3_u32 v9, v9, v10, s31")
    A("s_waitcnt lgkmcnt(0)")
    A("s_mov_b32 s16, s4"); A("s_mov_b32 s17, s5"); A(f"s_mov_b32 s18, {S * D * 2}"); A("s_mov_b32 s19, 0x20000")
    def nst(r): return 4 if 4 * r + 3 < 54 else 54 - 4 * r
    for r in range(NR5 + 1):
        pend, rds, mfs = [], [], []
        A("s_waitcnt lgkmcnt(0)")
        if r < NR5:
            A("s_barrier")
            if os.environ.get("P5FINE") and r < 12:
                A.stamps = True; A.stamp(r + 2); A.stamps = False
            pend = []
            for _ in range(2 if nxt[0] < r + AHEAD else 1):
                if nxt[0] < NR5 and nxt[0] <= r + AHEAD:
                    pend += loads(nxt[0]); nxt[0] += 1
            lo = SL5[r % 7]
            base, off0 = (4, lo) if lo < 61440 else ((5, lo - 61440) if lo < 122880 else (6, lo - 122880))
            rds = [(k, base, off0 + (k // 5) * 5120 + (k % 5) * 1024) for k in range(nst(r) * 5)]
        if r >= 1:
            ps = (r - 1) % RING
            mfs = [(k, BREG + (ps * 4 + k // 5) * 4) for k in range(nst(r - 1) * 5)]
            A.vm_wait(('b5', r - 1))
        n = max(len(rds), len(mfs))
        for k in range(n):
            if k < len(mfs):
                kk, b = mfs[k]; t = kk % 5
                first = (r == 1 and kk < 5)
                A(f"v_mfma_f32_16x16x32_bf16 {v(ACC + 4 * t, 4)}, {v(AFR + kk * 4, 4)}, {v(b, 4)}, {v(ACC + 4 * t, 4) if not first else 0}")
            if k < len(rds):
                kk, base, off = rds[k]
                A(f"ds_read_b128 {v(AFR + kk * 4, 4)}, v{base} offset:{off}")
            if k % 2 == 1 and pend: pend.pop(0)()
        while pend: pend.pop(0)()
    A("s_mul_i32 s35, s25, 3072"); A(f"s_add_u32 s35, s35, {HLDS}"); A("v_add_u32 v10, s35, v4")
    A(f"ds_read_b128 {v(HREG, 4)}, v10"); A(f"ds_read_b128 {v(HREG + 4, 4)}, v10 offset:1024"); A(f"ds_read_b128 {v(HREG + 8, 4)}, v10 offset:2048")
    A("s_waitcnt lgkmcnt(0)")
    T = 16
    for p in range(10):
        t, r = divmod(2 * p, 4); a0 = ACC + 4 * t + r
        A(f"v_cvt_pk_bf16_f32 v{T + p}, v{a0}, v{a0 + 1}")
    for p in range(10):
        A(f"v_lshlrev_b32 v{T + 16 + 2 * p}, 16, v{T + p}"); A(f"v_and_b32 v{T + 17 + 2 * p}, 0xffff0000, v{T + p}")
        A(f"v_lshlrev_b32 v{T + 40 + 2 * p}, 16, v{HREG + p}"); A(f"v_and_b32 v{T + 41 + 2 * p}, 0xffff0000, v{HREG + p}")
    for p in range(10): A(f"v_pk_add_f32 {v(T + 16 + 2 * p, 2)}, {v(T + 16 + 2 * p, 2)}, {v(T + 40 + 2 * p, 2)}")
    O = 80
    for p in range(10): A(f"v_cvt_pk_bf16_f32 v{O + p}, v{T + 16 + 2 * p}, v{T + 17 + 2 * p}")
    A(f"buffer_store_dwordx4 {v(O, 4)}, v9, s[16:19], 0 offen")
    A(f"buffer_store_dwordx4 {v(O + 4, 4)}, v9, s[16:19], 0 offen offset:16")
    A(f"buffer_store_dwordx2 {v(O + 8, 2)}, v9, s[16:19], 0 offen offset:32")

def w0(A, lbl):
    A("s_cmp_lg_u32 s22, 0"); A(f"s_cbranch_scc1 {lbl}")

NPF = 12
import os
def gen_mega(name="mega_kernel", stamps=False, kidx=0):
    A = Asm(); A.endlabel = f"L{name}_end"; A.stamps = False; A.rl_sc = SC[1]; A.nonce_c = True
    def dbgt(k):
        if not os.environ.get("DBGT"): return
        lbl = f"L{name}_dt{k}"
        A("s_cmp_lg_u32 s22, 0"); A(f"s_cbranch_scc1 {lbl}")
        if os.environ.get("DBGT") == "2":
            A("s_cmp_lg_u32 s2, 100"); A(f"s_cbranch_scc1 {lbl}")
        A("s_memrealtime s[94:95]"); A("s_waitcnt lgkmcnt(0)")
        if k == 0: A("s_not_b32 s94, s94")
        A("s_mov_b64 s[92:93], exec"); A("s_mov_b64 exec, 1")
        A(f"v_mov_b32 v10, {4 * (k + 1)}"); A("v_mov_b32 v11, s94")
        A("global_atomic_umax v10, v11, s[98:99]")
        A("s_mov_b64 exec, s[92:93]")
        A.raw(f"{lbl}:")
    def mstamp(k):
        if (os.environ.get("P5FINE") or os.environ.get("P4FINE") or os.environ.get("P4BAR")) and k not in (0,):
            if os.environ.get("P5FINE") and k == 12: k = 1
            elif (os.environ.get("P4FINE") or os.environ.get("P4BAR")) and k == 10: k = 1
            elif (os.environ.get("P4FINE") or os.environ.get("P4BAR")) and k == 11: k = 9
            elif k == 13 and os.environ.get("P5FINE"): return
            elif k == 13: pass
            else: return
        if os.environ.get("P1FINE") and k not in (0, 13) and not (k == 1): return
        if os.environ.get("P1FINE") and k == 1: k = 12
        A.stamps = stamps; A.stamp(k); A.stamps = False
    A.raw(f".globl {name}\n.p2align 8\n.type {name},@function\n{name}:")
    A("s_cmp_ge_u32 s2, 256"); A("s_cbranch_scc1 " + A.endlabel)
    mstamp(0)
    P1.p1_common_setup(A)
    A("s_cmp_ge_u32 s22, 4"); A(f"s_cbranch_scc1 L{name}_H1")

    if not os.environ.get("NOL2PF"):
        A("s_waitcnt lgkmcnt(0)")
        dbgt(0)
        A("s_mov_b32 s36, s4"); A("s_mov_b32 s37, s5"); A(f"s_mov_b32 s38, {S * D * 2}"); A("s_mov_b32 s39, 0x20000")
        A("s_mov_b32 s40, s6"); A("s_mov_b32 s41, s7"); A(f"s_mov_b32 s42, {640 * 1920 * 2}"); A("s_mov_b32 s43, 0x20000")
        A("s_mul_i32 s52, s21, 20"); A("s_mul_i32 s53, s25, 5"); A("s_add_u32 s52, s52, s53"); A("s_mul_i32 s52, s52, 3840")
        A("s_and_b32 s53, s20, 1"); A("s_mul_i32 s53, s53, 640"); A("s_add_u32 s52, s52, s53")
        for h in range(2):
            A(f"v_add_u32 v30, {60 * h}, v1"); A(f"v_min_u32 v30, 119, v30")
            P1.udiv_small(A, 31, 30, 40); A("v_mul_u32_u24 v29, 40, v31"); A("v_sub_u32 v30, v30, v29")
            A(f"v_mul_u32_u24 v31, 1280, v31"); A(f"v_lshl_add_u32 v{226 + h}, v30, 4, v31")
        for row in range(5 if os.environ.get("PFW", "1") == "1" else 0):
            for h in range(2):
                A(f"buffer_load_dwordx4 v[232:235], v{226 + h}, s[40:43], s52 offen")
            A("s_add_u32 s52, s52, 3840")
        A("s_lshr_b32 s52, s20, 1"); A("s_lshl_b32 s52, s52, 9"); A("s_lshl_b32 s53, s21, 4"); A("s_add_u32 s52, s52, s53"); A("s_lshl_b32 s53, s25, 2"); A("s_add_u32 s52, s52, s53")
        A("s_mul_i32 s52, s52, 1280")
        A("v_lshlrev_b32 v30, 4, v1")
        if os.environ.get("PFX", "1") == "1":
            for k in range(4): A(f"buffer_load_dwordx4 v[232:235], v30, s[36:39], s52 offen offset:{1024 * k}")
            A("s_add_u32 s52, s52, 4096")
            A(f"buffer_load_dwordx4 v[232:235], v30, s[36:39], s52 offen")
    def code_pf():
        A("s_getpc_b64 s[50:51]")
        A.raw(f"L{name}_pc:")
        A(f"s_sub_u32 s50, s50, (L{name}_pc - {name})"); A("s_subb_u32 s51, s51, 0")
        A("v_lshlrev_b32 v30, 4, v1"); A("s_mul_i32 s52, s25, CODE_Q"); A("v_add_u32 v30, s52, v30")
        for k in range(NPF):
            A(f"global_load_dwordx4 v[232:235], v30, s[50:51] offset:{(k % 4) * 1024}")
            if k % 4 == 3: A("v_add_u32 v30, 4096, v30")
    A.code_pf = (lambda: None) if os.environ.get('NOPF') else code_pf
    R = P1.p1_C(A, name)
    A("s_waitcnt lgkmcnt(0)")
    A("s_barrier")
    A(f"s_branch L{name}_epi")
    A.raw(f"L{name}_H1:")
    A.hist = []; A.vm = []
    P1.p1_H(A, name)
    A("s_barrier")
    R_ = R
    A(f"s_mul_i32 s31, s25, 9216"); A(f"v_lshlrev_b32 v228, 4, v1"); A(f"v_add_u32 v228, s31, v228")
    for t in range(8): A(f"ds_read_b128 {v(R['ACC'] + 4 * t, 4)}, v228 offset:{P1.HO + 1024 * t}")
    A(f"s_lshl_b32 s31, s25, 11"); A(f"s_add_u32 s31, s31, {P1.HO2}"); A(f"v_lshlrev_b32 v229, 4, v1"); A(f"v_add_u32 v229, s31, v229")
    A(f"ds_read_b128 {v(R['GR'], 4)}, v229"); A(f"ds_read_b128 {v(R['SX'], 4)}, v229 offset:1024")
    A("s_waitcnt lgkmcnt(0)")
    A.raw(f"L{name}_epi:")
    A.hist = []; A.vm = []
    A("s_nop 7")
    mstamp(1); dbgt(1)
    PH = P1.p1_epilogue(A, name, R, True)
    mstamp(2)
    A("s_waitcnt vmcnt(0)")
    A("s_barrier")
    mstamp(3); dbgt(2)
    zero_afr(A, 8)
    w0(A, f"L{name}_a0")
    P1.nonce_get(A, name, None, 8)
    A("s_lshl_b32 s33, s24, 4"); A("s_add_u32 s33, s33, s23")
    flag_set(A, FA, 33)
    A(f"v_mov_b32 v8, {NONCE_LDS}"); A("v_mov_b32 v9, s96"); A("ds_write_b32 v8, v9")
    A.raw(f"L{name}_a0:")
    import rl2
    A.vm = []
    A("s_lshl_b32 s60, s22, 12"); A("s_add_u32 s60, s60, 98304")
    rl2.finish(A, f"L{name}_f0", 16, 236, 64, 60, A.rl_sc)
    A("s_cmp_lt_u32 s22, 4"); A(f"s_cbranch_scc1 L{name}_f1x")
    rl2.finish(A, f"L{name}_f1", 17, 152, 64, 60, A.rl_sc)
    A.raw(f"L{name}_f1x:")
    w0(A, f"L{name}_a1b")
    A("s_lshl_b32 s33, s24, 4")
    flag_wait(A, f"L{name}_pa", FA, 33, 16)
    A.raw(f"L{name}_a1b:")
    A.raw(f"L{name}_a1:")
    A("s_waitcnt lgkmcnt(0)")
    A("s_barrier")
    mstamp(4); dbgt(3)
    A(f"v_mov_b32 v8, {NONCE_LDS}"); A("ds_read_b32 v9, v8"); A("s_waitcnt lgkmcnt(0)"); A("v_readfirstlane_b32 s96, v9")
    A.vm = []
    def after_bar():
        w0(A, f"L{name}_a2")
        flag_set(A, FW, 2)
        A.raw(f"L{name}_a2:")
    p2_body(A, name, PH, sc=SC[0], osc=SC[1], after_bar=after_bar)
    mstamp(5)
    A("s_waitcnt vmcnt(0)")
    A("s_barrier")
    mstamp(6); dbgt(4)
    w0(A, f"L{name}_a3")
    A("s_lshl_b32 s33, s23, 4"); A("s_add_u32 s33, s33, s24")
    flag_set(A, FO, 33)
    A.raw(f"L{name}_a3:")
    ids_p35(A)
    mstamp(7)
    A("s_cmp_ge_u32 s22, 4"); A(f"s_cbranch_scc1 L{name}_H3")
    A.hist = []; A.vm = []
    p3_C_pre(A)
    A("s_lshr_b32 s33, s23, 1"); A("s_lshl_b32 s33, s33, 4")
    flag_wait(A, f"L{name}_po", FO, 33, 16)
    mstamp(8); dbgt(5)
    A.vm = ['x', 'x', 'x']
    p3_C(A, name)
    mstamp(9)
    A("s_waitcnt vmcnt(0)")
    A("s_barrier")
    w0(A, f"L{name}_a5")
    A("s_lshl_b32 s33, s23, 3"); A("s_add_u32 s33, s33, s24")
    flag_set(A, FH, 33)
    A.raw(f"L{name}_a5:")
    P4.ids_p4(A)
    w0(A, f"L{name}_a6")
    A("s_lshl_b32 s33, s23, 4")
    flag_wait(A, f"L{name}_ph", FH, 33, 16)
    A.raw(f"L{name}_a6:")
    A("s_barrier")
    mstamp(10); dbgt(6)
    A.hist = []; A.vm = []
    A.p4_pre_hc = lambda: None
    P4.p4_C(A, SC)
    mstamp(11)
    A("s_waitcnt vmcnt(0)")
    A("s_barrier")
    w0(A, f"L{name}_a7")
    A("s_lshl_b32 s33, s23, 4"); A("s_add_u32 s33, s33, s18")
    flag_set(A, FG, 33)
    A.raw(f"L{name}_a7:")
    A("v_and_b32 v21, 15, v1"); A("v_lshrrev_b32 v3, 4, v1")
    ids_p35(A)
    w0(A, f"L{name}_a8")
    A("s_lshr_b32 s33, s23, 1"); A("s_lshl_b32 s33, s33, 4")
    flag_wait(A, f"L{name}_pg", FG, 33, 16)
    A.raw(f"L{name}_a8:")
    A("s_barrier")
    mstamp(12); dbgt(7)
    A.hist = []; A.vm = []
    p5_C(A, name)
    if os.environ.get("DBGT"): A("s_waitcnt vmcnt(0)")
    dbgt(8)
    A(f"s_branch L{name}_fin")
    A.raw(f"L{name}_H3:")
    A.hist = []; A.vm = []
    flag_wait(A, f"L{name}_pw", FW, None, 256)
    p3_H_dma(A)
    if os.environ.get("L2GU"): l2_prefetch(A, WGU_OFF, 56 * 40960, 71680, 17920, 18)
    mstamp(8)
    p3_H_loop(A)
    P4.ids_p4(A)
    P4.p4_H_setup(A)
    for f in range(3):
        for fn in P4.p4_tile_dma(A, f, SC): fn()
    A("s_barrier")
    A("s_barrier")
    mstamp(9); mstamp(10); mstamp(11)
    A.p4_pre_var = lambda: None
    A("s_mov_b32 s44, s23"); A("s_mov_b32 s45, s24"); A("s_mov_b32 s46, s26")
    ids_p35(A); p5_H_setup(A)
    A("s_mov_b32 s23, s44"); A("s_mov_b32 s24, s45"); A("s_mov_b32 s26, s46")
    state = {'n': 0}
    def tail(f):
        rounds = {4: [0, 1, 2], 5: [3, 4]}.get(f, [])
        out = []
        for r in rounds: out += p5_round_dma(A, r)
        state['n'] += len(rounds)
        return out
    A.p4_tail_dma = tail
    if os.environ.get("L2WD"): l2_prefetch(A, WD_OFF, 0, 69120, 17280, 17)
    P4.p4_H(A, SC, prefetched=3)
    A("s_barrier")
    for r in (5, 6):
        for f in p5_round_dma(A, r): f()
    A("s_barrier")
    mstamp(12)
    p5_H(A, 7)
    A.raw(f"L{name}_fin:")
    if stamps:
        A("s_waitcnt vmcnt(0)")
        mstamp(13); A.stamps = True; A.nstamp = 14
        A("v_lshlrev_b32 v0, 6, s22") if False else None
        A("v_mov_b32 v0, s22"); A("v_lshlrev_b32 v0, 6, v0")
        A.stamp_dump(8, 9, TS_OFF, 8)
    A.raw(A.endlabel + ":")
    A("s_endpgm")
    A.raw(f"L{name}_last:")
    A.raw(".fill 1024, 4, 0xbf800000")
    txt = A.text().replace("CODE_Q", str(NPF * 1024))
    return txt, kernel_desc(name, 256, 102, 256), (256, 512, 163840)
```

```python
from asmlib import *
from layout import *
from k4 import f32hex, bf16_round, K0, K1
from k3 import xlane_sum_g

NT = 7; LOOK = 3; RING = 3
STG = RING * 40960
CST = STG + 32768
LDS4 = CST + 8192

def ids_p4(A):
    A("s_and_b32 s20, s2, 7"); A("s_lshr_b32 s21, s2, 3")
    import os
    if os.environ.get("MAP4") == "new":
        A("s_lshr_b32 s23, s20, 1"); A("s_lshl_b32 s23, s23, 2"); A("s_lshr_b32 s24, s21, 3"); A("s_add_u32 s23, s23, s24")
        A("s_and_b32 s24, s20, 1"); A("s_lshl_b32 s24, s24, 3"); A("s_and_b32 s27, s21, 7"); A("s_add_u32 s24, s24, s27")
    else:
        A("s_lshr_b32 s23, s20, 2"); A("s_lshl_b32 s23, s23, 3"); A("s_lshr_b32 s24, s21, 2"); A("s_add_u32 s23, s23, s24")
        A("s_and_b32 s24, s20, 3"); A("s_lshl_b32 s24, s24, 2"); A("s_and_b32 s27, s21, 3"); A("s_add_u32 s24, s24, s27")
    A("s_mov_b32 s18, s24")
    A("s_mul_i32 s24, s24, 7"); A("s_min_u32 s24, s24, 101")
    A("s_lshl_b32 s26, s23, 7"); A("s_lshl_b32 s27, s25, 5"); A("s_add_u32 s26, s26, s27")

def var_load(A, vt, sc, addr_done=False):
    A(f"v_add_u32 v14, s26, v21"); A(f"v_lshlrev_b32 v14, 2, v14"); A(f"v_lshl_add_u32 v14, v3, 14, v14")
    A(f"s_mov_b32 s34, {VARP_OFF}"); A(f"s_mov_b32 s33, {VARP_OFF + 8192}")
    for a_ in range(2):
        A(f"buffer_load_dword v{vt + 2 * a_}, v14, s[12:15], s34 offen offset:{64 * a_}{sc}", tag='var')
        A(f"buffer_load_dword v{vt + 2 * a_ + 1}, v14, s[12:15], s33 offen offset:{64 * a_}{sc}", tag='var')

def var_consts(A, vt, C0, C1, IR):
    A.vm_wait('var')
    for a_ in range(2):
        b = vt + 4 + 4 * a_
        A(f"v_add_f32 v{b}, v{vt + 2 * a_}, v{vt + 2 * a_ + 1}")
        xlane_sum_g(A, b, b + 1)
        A(f"v_mul_f32 v{b}, {f32hex(1.0 / 640)}, v{b}")
        bf16_round(A, b, b, b + 1)
        A(f"v_add_f32 v{b}, {f32hex(1e-5)}, v{b}")
        bf16_round(A, b, b, b + 1)
        A(f"v_sqrt_f32 v{b}, v{b}")
        bf16_round(A, b, b, b + 1)
        A(f"v_mul_f32 v{IR[a_]}, v{b}, v{b}")
        A(f"v_rcp_f32 v{b + 1}, v{b}")
        A(f"v_mul_f32 v{C0[a_]}, {f32hex(K0)}, v{b + 1}")
        A(f"v_mul_f32 v{b + 3}, v{b + 1}, v{b + 1}")
        A(f"v_mul_f32 v{b + 3}, v{b + 3}, v{b + 1}")
        A(f"v_mul_f32 v{C1[a_]}, {f32hex(K1)}, v{b + 3}")

def gelu_ops(A, f, gbase, T, C0, C1, IR, vlane16, sc, TQ=None, TY=None, TO=None, PK=None):
    ops = []
    def add(kind, txt, deps=(), tag=None):
        ops.append((kind, txt, tag, tuple(deps))); return len(ops) - 1
    sc0 = []
    def sadd(txt): sc0.append(add('s', txt, sc0[-1:] ))
    sadd(f"s_add_u32 s37, s24, {f}"); sadd("s_lshr_b32 s36, s37, 1"); sadd("s_lshl_b32 s36, s36, 10"); sadd("s_add_u32 s36, s36, s35")
    sadd("s_bitcmp1_b32 s37, 0|s_cselect_b64 s[50:51], -1, 0|s_cselect_b64 s[48:49], 0, -1|s_cselect_b32 s52, s36, s53" + ("|s_cselect_b32 s55, s53, s36" if f == NT - 1 else ""))
    if f == NT - 1: sadd(f"s_add_u32 s56, s55, {54 * 1024}")
    sadd(f"s_add_u32 s54, s52, {54 * 1024}")
    if f == 0: sadd("s_add_u32 s55, s52, 8"); sadd("s_add_u32 s56, s54, 8")
    slast = sc0[-1]
    prev_store = None
    for a_ in range(2):
        gb, ub = gbase(a_)
        acts = []
        for pr in range(2):
            g = gb + 2 * pr; u = ub + 2 * pr; t = TQ + 2 * (2 * a_ + pr)
            y = add('p', f"v_pk_mul_f32 {v(u, 2)}, {v(g, 2)}, {v(u, 2)}")
            t1 = add('p', f"v_pk_mul_f32 {v(t, 2)}, {v(g, 2)}, {v(g, 2)}")
            t2a = add('p', f"v_fma_f32 v{t}, v{t}, v{C1[a_]}, v{C0[a_]}", [t1]); t2b = add('p', f"v_fma_f32 v{t + 1}, v{t + 1}, v{C1[a_]}, v{C0[a_]}", [t1])
            q = add('p', f"v_pk_mul_f32 {v(g, 2)}, {v(t, 2)}, {v(g, 2)}", [t2a, t2b, y])
            e0 = add('t', f"v_exp_f32 v{g}, v{g}", [q]); e1 = add('t', f"v_exp_f32 v{g + 1}, v{g + 1}", [q])
            d0 = add('p', f"v_fma_f32 v{g}, v{g}, v{IR[a_]}, v{IR[a_]}", [e0]); d1 = add('p', f"v_fma_f32 v{g + 1}, v{g + 1}, v{IR[a_]}, v{IR[a_]}", [e1])
            r0 = add('t', f"v_rcp_f32 v{g}, v{g}", [d0]); r1 = add('t', f"v_rcp_f32 v{g + 1}, v{g + 1}", [d1])
            ac = add('p', f"v_pk_mul_f32 {v(u, 2)}, {v(u, 2)}, {v(g, 2)}", [r0, r1])
            acts.append(ac)
        o = TO[a_]; pk = PK[a_]
        pd = [prev_store] if prev_store is not None else []
        c0 = add('p', f"v_cvt_pk_bf16_f32 v{o}, v{ub}, v{ub + 1}", [acts[0]]); c1 = add('p', f"v_cvt_pk_bf16_f32 v{o + 1}, v{ub + 2}, v{ub + 3}", [acts[1]])
        last = [c0, c1]
        if f in (0, NT - 1):
            lb = f"Lp4sh_{id(A) % 100000}_{f}_{a_}"
            add('p', f"s_bitcmp{1 if f == 0 else 0}_b32 s37, 0|s_cbranch_scc0 {lb}|buffer_store_dwordx2 {v(o, 2)}, v{vlane16}, s[12:15], s{55 + a_} offen{sc[1]}|{lb}:", [c0, c1, slast], tag=('st', f))
        if f >= 1:
            m0 = add('p', f"v_mov_b32 v{pk + 2}, v{o}", [c0]); m1 = add('p', f"v_mov_b32 v{pk + 3}, v{o + 1}", [c1])
            lb = f"Lp4st_{id(A) % 100000}_{f}_{a_}"
            st = add('p', f"s_bitcmp1_b32 s37, 0|s_cbranch_scc0 {lb}|buffer_store_dwordx4 {v(pk, 4)}, v{vlane16}, s[12:15], s{52 if a_ == 0 else 54} offen{sc[1]}|{lb}:", [m0, m1, slast], tag=('st', f))
            last = [st]
        if f < NT - 1:
            add('p', f"v_cndmask_b32 v{pk}, v{pk}, v{o}, s[48:49]", last + [slast]); add('p', f"v_cndmask_b32 v{pk + 1}, v{pk + 1}, v{o + 1}, s[48:49]", last + [slast])
    return ops

class Sched:
    def __init__(self, A, ops): self.A = A; self.ops = ops; self.done = [False] * len(ops)
    def emit(self, i):
        kind, txt, tag, deps = self.ops[i]
        for t in txt.split("|"):
            if t.endswith(":"): self.A.raw(t)
            else: self.A(t, tag=tag)
        self.done[i] = True
    def ready(self, i): return not self.done[i] and all(self.done[d] for d in self.ops[i][3])
    def pick(self, kinds):
        for i in range(len(self.ops)):
            if self.ops[i][0] in kinds and self.ready(i):
                self.emit(i); return True
        return False
    def remaining(self): return self.done.count(False)
    def flush(self):
        while self.remaining():
            assert self.pick('pts')

def act_base(A):
    A("s_lshr_b32 s35, s26, 4"); A(f"s_mul_i32 s35, s35, {54 * 1024}"); A(f"s_add_u32 s35, s35, {ACT_OFF}")

def p4_tile_dma(A, f, sc):
    slot = f % RING
    out = []
    for n in range(10):
        def fn(n=n):
            if n % 4 == 0:
                A(f"s_add_u32 m0, s29, {slot * 40960 + n * 1024}")
                A(f"s_add_u32 s32, s28, {f * 40960 + n * 1024}")
            A(f"buffer_load_dwordx4 v3x, s[12:15], s32 offen offset:{(n % 4) * 1024}{sc[0]} lds".replace("v3x", "v4"), tag=('w', f))
        out.append(fn)
    return out

def p4_H_setup(A):
    A("v_lshlrev_b32 v4, 4, v1")
    A("s_mul_i32 s28, s24, 40960"); A("s_and_b32 s29, s21, 3"); A("s_add_u32 s29, s29, s25"); A("s_and_b32 s29, s29, 3"); A("s_mul_i32 s29, s29, 10240")
    A("s_add_u32 s28, s28, s29"); A(f"s_add_u32 s28, s28, {WGU_OFF}"); A("s_mul_i32 s29, s25, 10240")

def interleave(main, side, every):
    side = list(side)
    for i, fn in enumerate(main):
        fn()
        if side and i % every == every - 1: side.pop(0)()
    while side: side.pop(0)()

def p4_H(A, sc, prefetched=0):
    VT = 24; C0 = [40, 43]; C1 = [41, 44]; IR = [42, 45]; SR = 48; T = 64
    if prefetched < 1:
        for fn in p4_tile_dma(A, 0, sc): fn()
    act_base(A)
    A(f"s_lshl_b32 s30, s25, 12"); A(f"v_add_u32 v5, s30, v4"); A(f"v_add_u32 v5, {STG}, v5")
    A.p4_pre_var()
    var_load(A, VT, sc[0])
    A.vm_wait(('w', 0))
    A("s_barrier")
    for f in range(max(prefetched, 1), 3):
        for fn in p4_tile_dma(A, f, sc): fn()
    var_consts(A, VT, C0, C1, IR)
    A(f"s_lshl_b32 s30, s25, 11"); A(f"s_add_u32 s30, s30, {CST}"); A(f"v_add_u32 v6, s30, v4")
    A("ds_write_b128 v6, v[40:43]"); A("ds_write_b128 v6, v[44:47] offset:1024")
    for f in range(NT - 1):
        A.vm_wait(('w', f + 1))
        A("s_waitcnt lgkmcnt(0)")
        A("s_barrier")
        dma = p4_tile_dma(A, f + 3, sc) if f + 3 < NT else list(A.p4_tail_dma(f))
        for fn in dma: fn()

def p4_C(A, sc):
    HB = 16; AF = 176; ACC = 216; T = 240; PK = (208, 212)
    A("s_mov_b32 s53, 0x7ff00000")
    A("v_lshlrev_b32 v4, 4, v1"); A("v_add_u32 v5, 40960, v4"); A("v_add_u32 v6, 81920, v4")
    A("v_lshlrev_b32 v7, 3, v1")
    A("s_lshr_b32 s38, s26, 4"); A("s_mul_i32 s38, s38, 20480"); A(f"s_add_u32 s38, s38, {HC_OFF}")
    A.p4_pre_hc()
    A("s_and_b32 s43, s21, 3")
    def hc_load(s_):
        if s_ % 5 == 0:
            g_ = s_ // 5
            A(f"s_add_u32 s44, s43, {g_}"); A("s_and_b32 s44, s44, 3"); A("s_mul_i32 s44, s44, 5120"); A("s_add_u32 s44, s44, s38")
            A("s_add_u32 s45, s44, 20480"); A("s_add_u32 s46, s44, 4096"); A("s_add_u32 s47, s44, 24576")
        for a_ in range(2):
            e = s_ % 5
            sreg = (44 + a_) if e < 4 else (46 + a_)
            off = (e % 4) * 1024
            if e == 2:
                A(f"buffer_load_dwordx2 {v(HB + (a_ * 20 + s_) * 4, 2)}, v7, s[12:15], s{sreg} offen offset:{off}{sc[0]}", tag=('h', s_))
                A(f"buffer_load_dwordx2 {v(HB + (a_ * 20 + s_) * 4 + 2, 2)}, v7, s[12:15], s{sreg} offen offset:{off + 512}{sc[0]}", tag=('h', s_))
            else:
                A(f"buffer_load_dwordx4 {v(HB + (a_ * 20 + s_) * 4, 4)}, v4, s[12:15], s{sreg} offen offset:{off}{sc[0]}", tag=('h', s_))
    HA = 6
    for s_ in range(HA): hc_load(s_)
    act_base(A)
    import os
    if not os.environ.get("FINE4"): A.stamp(1)
    A("s_barrier")
    if not os.environ.get("FINE4"): A.stamp(2)
    bases = [4, 5, 6]
    total = NT * 20
    C0 = [8, 11]; C1 = [9, 12]; IR = [10, 13]
    NB = LOOK + 1
    A(f"s_lshl_b32 s30, s25, 11"); A(f"s_add_u32 s30, s30, {CST}"); A(f"v_add_u32 v14, s30, v4")
    def rd1(sig, gu):
        f, s_ = divmod(sig, 20)
        k = (sig % NB) * 2 + gu
        A(f"ds_read_b128 {v(AF + k * 4, 4)}, v{bases[f % RING]} offset:{s_ * 2048 + gu * 1024}")
    for sig in range(LOOK): rd1(sig, 0); rd1(sig, 1)
    A(f"s_waitcnt lgkmcnt({2 * (LOOK - 1)})")
    epi = None
    TE = 248
    for sig in range(total):
        f, s_ = divmod(sig, 20)
        p = f % 2
        if f == 3 and s_ == 0: A.stamp(3)
        import os
        if os.environ.get("P4FINE") and s_ == 0:
            A.stamps = True; A.stamp(f + 2); A.stamps = False
        if f == 0:
            A.vm_wait(('h', s_))
        bar = (s_ == 20 - LOOK) and f + 1 < NT
        if bar:
            import os
            if os.environ.get("P4BAR") and f in (2, 3, 4):
                A.stamps = True; A.stamp(2 + 2 * (f - 2)); A.stamps = False
            A("s_waitcnt lgkmcnt(0)")
            A("s_barrier")
            if os.environ.get("P4BAR") and f in (2, 3, 4):
                A.stamps = True; A.stamp(3 + 2 * (f - 2)); A.stamps = False
        if f == 0 and s_ == 17:
            A("ds_read_b128 v[8:11], v14"); A("ds_read_b64 v[12:13], v14 offset:1024")
        if f >= 1 and s_ == 0:
            pp = (f - 1) % 2
            epi = Sched(A, gelu_ops(A, f - 1, lambda a_: (ACC + pp * 16 + a_ * 8, ACC + pp * 16 + a_ * 8 + 4), 0, C0, C1, IR, 4, sc, TQ=TE, TY=TE + 4, TO=(2, 14), PK=PK))
        k = (sig % NB) * 2
        side = []
        if sig + LOOK < total: side += [lambda: rd1(sig + LOOK, 0), lambda: rd1(sig + LOOK, 1)]
        if f == 0 and s_ + HA < 20: side.append(lambda: hc_load(s_ + HA))
        if sig + 1 < total and not (20 - LOOK <= s_ < 19 and f + 1 < NT):
            nlater = 2 * (min(total, sig + LOOK + 1) - (sig + 2))
            side.append(lambda nlater=nlater: A(f"s_waitcnt lgkmcnt({min(15, max(0, nlater))})"))
        order = [(0, 0), (1, 0), (0, 1), (1, 1)]
        for i, (a_, gu) in enumerate(order):
            acc = ACC + p * 16 + a_ * 8 + gu * 4
            A(f"v_mfma_f32_16x16x32_bf16 {v(acc, 4)}, {v(AF + (k + gu) * 4, 4)}, {v(HB + (a_ * 20 + s_) * 4, 4)}, {v(acc, 4) if s_ > 0 else 0}")
            had = bool(side)
            if side: side.pop(0)()
            if epi is not None and s_ >= 1:
                if i == 3 or not had:
                    if not epi.pick('t'):
                        epi.pick('ps'); epi.pick('ps')
                    epi.pick('s')
                else:
                    epi.pick('ps')
        while side: side.pop(0)()
        if s_ == 19 and epi is not None:
            epi.flush(); epi = None
    A.stamp(4)
    p = (NT - 1) % 2
    Sched(A, gelu_ops(A, NT - 1, lambda a_: (ACC + p * 16 + a_ * 8, ACC + p * 16 + a_ * 8 + 4), AF, C0, C1, IR, 4, sc, TQ=TE, TY=TE + 4, TO=(2, 14), PK=PK)).flush()

def gen_p4(name="p4_kernel", stamps=False, kidx=3):
    A = Asm(); A.endlabel = f"L{name}_end"; A.stamps = stamps
    A.p4_pre_var = lambda: None; A.p4_pre_hc = lambda: None; A.p4_tail_dma = lambda f: []
    A.raw(f".globl {name}\n.p2align 8\n.type {name},@function\n{name}:")
    A("s_cmp_ge_u32 s2, 256"); A("s_cbranch_scc1 " + A.endlabel)
    A.stamp(0)
    A("s_load_dwordx2 s[8:9], s[0:1], 80")
    A("v_and_b32 v1, 63, v0"); A("v_lshrrev_b32 v2, 6, v0")
    A("v_readfirstlane_b32 s22, v2"); A("v_lshrrev_b32 v3, 4, v1"); A("v_and_b32 v21, 15, v1")
    A("s_and_b32 s25, s22, 3")
    ids_p4(A)
    A("s_waitcnt lgkmcnt(0)")
    A("s_mov_b32 s12, s8"); A("s_mov_b32 s13, s9"); A(f"s_mov_b32 s14, {WS_USED}"); A("s_mov_b32 s15, 0x20000")
    sc = ("", "")
    A("s_cmp_ge_u32 s22, 4"); A(f"s_cbranch_scc1 L{name}_H")
    p4_C(A, sc)
    A(f"s_branch L{name}_fin")
    A.raw(f"L{name}_H:")
    A.hist = []; A.vm = []
    p4_H_setup(A)
    A.stamp(1); A.stamp(2); A.stamp(3); A.stamp(4)
    p4_H(A, sc)
    A.raw(f"L{name}_fin:")
    if stamps:
        A("s_waitcnt vmcnt(0)")
        import os
        if not os.environ.get("FINE4"): A.stamp(5)
        A.stamp_dump(8, 9, TS_OFF + kidx * 131072, 0)
    A.raw(A.endlabel + ":")
    A("s_endpgm")
    return A.text(), kernel_desc(name, 256, 102, 256), (256, 512, LDS4)
```

```python
from asmlib import *
from layout import *
from k4 import f32hex, bf16_round
from k3 import xlane_sum_g
import p1 as P1
import p4 as P4
from k2 import p2_body, zero_afr

SC = (" sc1", " sc0 sc1")
FA, FW, FO, FH, FG, FW3 = 0, 1, 2, 3, 4, 5
NONCE_LDS = 163832

def flag_set(A, phase, sidx):
    A(f"s_lshl_b32 s31, s{sidx}, 6"); A(f"s_add_u32 s31, s31, {FLAG_OFF + phase * 16384}")
    A("v_mov_b32 v8, 0"); A("v_mov_b32 v9, s96")
    A("s_mov_b64 exec, 1")
    A("buffer_store_dword v9, v8, s[12:15], s31 offen sc0 sc1")
    A("s_mov_b64 exec, -1")

def flag_wait(A, lbl, phase, sbase, n):
    if sbase is None: A(f"s_mov_b32 s31, {FLAG_OFF + phase * 16384}")
    else:
        A(f"s_lshl_b32 s31, s{sbase}, 6"); A(f"s_add_u32 s31, s31, {FLAG_OFF + phase * 16384}")
    A("v_lshlrev_b32 v8, 6, v1")
    A("s_mov_b32 s97, 0")
    if n == 16:
        NP = 3
        A("s_mov_b64 exec, 0xffff")
        A("s_waitcnt vmcnt(0)")
        for k in range(NP):
            A(f"buffer_load_dword v{253 + k}, v8, s[12:15], s31 offen sc1")
            if k < NP - 1: A("s_sleep 2")
        A.raw(f"{lbl}:")
        for k in range(NP):
            A(f"s_waitcnt vmcnt({NP - 1})")
            A(f"v_cmp_ne_u32 vcc, s96, v{253 + k}")
            A(f"s_cbranch_vccz {lbl}_x")
            A(f"buffer_load_dword v{253 + k}, v8, s[12:15], s31 offen sc1")
        A("s_add_u32 s97, s97, 1")
        A("s_cmp_le_u32 s97, 0x20000")
        A(f"s_cbranch_scc1 {lbl}")
        A.raw(f"{lbl}_x:")
        A("s_mov_b64 exec, -1")
        return
    A.raw(f"{lbl}:")
    nl = {128: 2, 256: 4}[n]
    for k in range(nl):
        if k: A(f"s_add_u32 s30, s31, {4096 * k}")
        A(f"buffer_load_dword v{9 + k}, v8, s[12:15], s{31 if k == 0 else 30} offen sc1")
    A("s_add_u32 s97, s97, 1")
    A("s_waitcnt vmcnt(0)")
    for k in range(nl): A(f"v_xor_b32 v{9 + k}, s96, v{9 + k}")
    for k in range(1, nl): A(f"v_or_b32 v9, v9, v{9 + k}")
    A("v_cmp_ne_u32 vcc, 0, v9")
    A("s_cmp_gt_u32 s97, 0x40000")
    A(f"s_cbranch_scc1 {lbl}_x")
    A(f"s_cbranch_vccnz {lbl}")
    A.raw(f"{lbl}_x:")
    A("s_mov_b64 exec, -1")

def ids_p35(A):
    A("s_and_b32 s20, s2, 7"); A("s_lshr_b32 s21, s2, 3")
    if os.environ.get("MAP35") == "old":
        A("s_lshr_b32 s23, s20, 1"); A("s_lshl_b32 s23, s23, 3"); A("s_lshr_b32 s24, s21, 2"); A("s_add_u32 s23, s23, s24")
        A("s_and_b32 s24, s20, 1"); A("s_lshl_b32 s24, s24, 2"); A("s_and_b32 s27, s21, 3"); A("s_add_u32 s24, s24, s27")
    else:
        A("s_lshl_b32 s23, s20, 2"); A("s_lshr_b32 s24, s21, 3"); A("s_add_u32 s23, s23, s24")
        A("s_and_b32 s24, s21, 7")
    A("s_lshl_b32 s26, s23, 2"); A("s_add_u32 s26, s26, s25")

def l2_prefetch(A, base, per_xcd_sel, per_wg, per_wave, n):
    A(f"s_mul_i32 s56, s21, {per_wg}"); A(f"s_mul_i32 s57, s25, {per_wave}"); A("s_add_u32 s56, s56, s57"); A(f"s_add_u32 s56, s56, {base}")
    if per_xcd_sel:
        A("s_and_b32 s57, s20, 1"); A(f"s_mul_i32 s57, s57, {per_xcd_sel}"); A("s_add_u32 s56, s56, s57")
    A("v_lshlrev_b32 v12, 4, v1")
    for k in range(n):
        if k and k % 4 == 0: A("s_add_u32 s56, s56, 4096")
        A(f"buffer_load_dwordx4 v[8:11], v12, s[12:15], s56 offen offset:{(k % 4) * 1024}{SC[0]}", tag='pf')

def p3_H_dma(A):
    A("v_lshlrev_b32 v4, 4, v1"); A("v_lshlrev_b32 v5, 4, v3")
    A("s_mul_i32 s28, s24, 102400"); A(f"s_add_u32 s28, s28, {WO_OFF}")
    A("s_mul_i32 s29, s25, 6144")
    A("s_and_b32 s33, s21, 3"); A("s_mul_i32 s33, s33, 5"); A("s_add_u32 s33, s33, s25")
    for r in range(5):
        A("s_cmp_ge_u32 s33, 20"); A("s_cselect_b32 s34, 20, 0"); A("s_sub_u32 s33, s33, s34")
        A("s_mul_i32 s34, s33, 5120"); A("s_add_u32 s34, s34, s28")
        A("s_lshl_b32 s30, s33, 6"); A(f"s_add_u32 s30, s30, {WBAR_OFF}")
        A(f"s_add_u32 m0, s29, {r * 4 * 6144}")
        for t in range(4):
            A(f"buffer_load_dwordx4 v4, s[12:15], s34 offen offset:{t * 1024}{SC[0]} lds", tag=('r', r))
        A(f"s_add_u32 m0, s29, {r * 4 * 6144 + 4096}")
        A("s_add_u32 s32, s34, 4096")
        A(f"buffer_load_dwordx4 v4, s[12:15], s32 offen{SC[0]} lds", tag=('r', r))
        A(f"s_add_u32 m0, s29, {r * 4 * 6144 + 5120}")
        A(f"buffer_load_dwordx4 v5, s[12:15], s30 offen{SC[0]} lds", tag=('r', r))
        A("s_add_u32 s33, s33, 4")

def p3_H_loop(A):
    for r in range(5):
        A.vm_wait(('r', r))
        A("s_barrier")
    A("s_barrier")

XR3 = 216
HLDS = 143360
import os
def p3_C_pre(A):
    A("v_lshlrev_b32 v4, 4, v1"); A("v_add_u32 v5, 61440, v4")
    A("s_lshl_b32 s31, s26, 4"); A("v_add_u32 v6, s31, v21")
    A("v_mul_u32_u24 v8, 1280, v6"); A("v_mul_u32_u24 v9, 40, v3"); A("s_mul_i32 s33, s24, 160"); A("v_add3_u32 v8, v8, v9, s33")
    A("s_mov_b32 s16, s4"); A("s_mov_b32 s17, s5"); A(f"s_mov_b32 s18, {S * D * 2}"); A("s_mov_b32 s19, 0x20000")
    A(f"buffer_load_dwordx4 {v(XR3, 4)}, v8, s[16:19], 0 offen", tag='x')
    A(f"buffer_load_dwordx4 {v(XR3 + 4, 4)}, v8, s[16:19], 0 offen offset:16", tag='x')
    A(f"buffer_load_dwordx2 {v(XR3 + 8, 2)}, v8, s[16:19], 0 offen offset:32", tag='x')

def p3_C(A, name):
    BR = 16; AF = 96; ACC = 192; XR = XR3; MR = 226
    A("v_mov_b32 v7, v21"); A("v_mov_b32 v2, v3")
    A("s_mul_i32 s27, s26, 20480"); A(f"s_add_u32 s27, s27, {O_OFF}")
    A("v_mul_u32_u24 v12, 20, v1")
    A("s_and_b32 s33, s21, 3")
    for J in range(4):
        A(f"s_add_u32 s{40 + J}, s33, {J}"); A(f"s_and_b32 s{40 + J}, s{40 + J}, 3"); A(f"s_mul_i32 s{40 + J}, s{40 + J}, 5120"); A(f"s_add_u32 s{40 + J}, s{40 + J}, s27")
    def o_loads(st):
        J, e = divmod(st, 5)
        if e < 4:
            return [lambda: A(f"buffer_load_dwordx4 {v(BR + st * 4, 4)}, v12, s[12:15], s{40 + J} offen offset:{e * 1280}{SC[0]}", tag=('b', st))]
        return [(lambda jj=jj: A(f"buffer_load_dword v{BR + st * 4 + jj}, v12, s[12:15], s{40 + J} offen offset:{jj * 1280 + 16}{SC[0]}", tag=('b', st))) for jj in range(4)]
    for st in range(8):
        for f in o_loads(st): f()
    A("v_lshlrev_b32 v10, 2, v6"); A(f"s_mov_b32 s34, {MEAN1_OFF}")
    if os.environ.get("P3FINE"):
        A.stamps = True; A.stamp(2); A.stamps = False
    for r in range(6):
        rds, mfs = [], []
        A("s_waitcnt lgkmcnt(0)")
        A("s_barrier")
        if os.environ.get("P3FINE"):
            A.stamps = True; A.stamp(3 + r); A.stamps = False
        if r < 5:
            for k in range(24):
                st = 4 * r + k // 6
                base, off = (4, st * 6144) if st < 10 else (5, (st - 10) * 6144)
                rds.append((k, base, off + (k % 6) * 1024))
        pend = []
        if r < 3:
            for st in range(8 + 4 * r, 12 + 4 * r): pend += o_loads(st)
        if r == 3: pend.append(lambda: A(f"buffer_load_dword v{MR}, v10, s[12:15], s34 offen{SC[0]}", tag='m'))
        if r >= 1:
            mfs = list(range(24)); A.vm_wait([('b', 4 * (r - 1) + i) for i in range(4)])
        for k in range(24):
            if k % 3 == 2 and pend: pend.pop(0)()
            if mfs:
                st = 4 * (r - 1) + k // 6; t = k % 6
                c = v(ACC + 4 * t, 4) if st > 0 else "0"
                A(f"v_mfma_f32_16x16x32_bf16 {v(ACC + 4 * t, 4)}, {v(AF + k * 4, 4)}, {v(BR + st * 4, 4)}, {c}")
            if rds:
                kk, base, off = rds[k]
                A(f"ds_read_b128 {v(AF + kk * 4, 4)}, v{base} offset:{off}")
    A.vm_wait('m')
    T = 16; AB = T; HF = T + 16; XF = T + 40
    for p in range(10):
        t, r = divmod(2 * p, 4); a0 = ACC + 4 * t + r
        A(f"v_cvt_pk_bf16_f32 v{AB + p}, v{a0}, v{a0 + 1}")
    for p in range(10):
        A(f"v_lshlrev_b32 v{HF + 2 * p}, 16, v{AB + p}"); A(f"v_and_b32 v{HF + 2 * p + 1}, 0xffff0000, v{AB + p}")
        A(f"v_lshlrev_b32 v{XF + 2 * p}, 16, v{XR + p}"); A(f"v_and_b32 v{XF + 2 * p + 1}, 0xffff0000, v{XR + p}")
    for e in range(0, 20, 2): A(f"v_pk_add_f32 {v(HF + e, 2)}, {v(HF + e, 2)}, {v(XF + e, 2)}")
    HP = T + 64
    for p in range(10): A(f"v_cvt_pk_bf16_f32 v{HP + p}, v{HF + 2 * p}, v{HF + 2 * p + 1}")
    A(f"v_add_f32 v{MR}, v{MR}, v{ACC + 20}")
    bf16_round(A, MR + 1, MR, MR + 2)
    for p in range(10):
        A(f"v_lshlrev_b32 v{HF + 2 * p}, 16, v{HP + p}"); A(f"v_and_b32 v{HF + 2 * p + 1}, 0xffff0000, v{HP + p}")
    for e in range(20): A(f"v_sub_f32 v{XF + e}, v{HF + e}, v{MR + 1}")
    CP = T + 76
    for p in range(10): A(f"v_cvt_pk_bf16_f32 v{CP + p}, v{XF + 2 * p}, v{XF + 2 * p + 1}")
    A("s_lshr_b32 s36, s24, 1"); A("s_mul_i32 s36, s36, 5120"); A("s_mul_i32 s37, s26, 20480"); A("s_add_u32 s36, s36, s37")
    A(f"s_add_u32 s36, s36, {HC_OFF}")
    A("v_lshlrev_b32 v11, 3, v1")
    A("s_bitcmp1_b32 s24, 0"); A(f"s_cbranch_scc1 L{name}_odd")
    A(f"buffer_store_dwordx4 {v(CP, 4)}, v4, s[12:15], s36 offen{SC[1]}")
    A(f"buffer_store_dwordx4 {v(CP + 4, 4)}, v4, s[12:15], s36 offen offset:1024{SC[1]}")
    A(f"buffer_store_dwordx2 {v(CP + 8, 2)}, v11, s[12:15], s36 offen offset:2048{SC[1]}")
    A(f"s_branch L{name}_st")
    A.raw(f"L{name}_odd:")
    A(f"buffer_store_dwordx2 {v(CP, 2)}, v11, s[12:15], s36 offen offset:2560{SC[1]}")
    A(f"buffer_store_dwordx4 {v(CP + 2, 4)}, v4, s[12:15], s36 offen offset:3072{SC[1]}")
    A("s_add_u32 s36, s36, 4096")
    A(f"buffer_store_dwordx4 {v(CP + 6, 4)}, v4, s[12:15], s36 offen{SC[1]}")
    A.raw(f"L{name}_st:")
    for e in range(20): A(f"v_sub_f32 v{HF + e}, v{HF + e}, v{MR}")
    A(f"v_mul_f32 v{MR + 2}, v{HF}, v{HF}"); A(f"v_mul_f32 v{MR + 3}, v{HF + 1}, v{HF + 1}")
    for e in range(2, 20): A(f"v_fmac_f32 v{MR + 2 + (e & 1)}, v{HF + e}, v{HF + e}")
    A(f"v_add_f32 v{MR + 2}, v{MR + 2}, v{MR + 3}")
    xlane_sum_g(A, MR + 2, MR + 3)
    A("v_lshlrev_b32 v10, 2, v6"); A("s_lshl_b32 s37, s24, 13"); A(f"s_add_u32 s37, s37, {VARP_OFF}")
    A(f"buffer_store_dword v{MR + 2}, v10, s[12:15], s37 offen{SC[1]}")
    A("s_mul_i32 s35, s25, 3072"); A(f"s_add_u32 s35, s35, {HLDS}"); A("v_add_u32 v10, s35, v4")
    A(f"ds_write_b128 v10, {v(HP, 4)}"); A(f"ds_write_b128 v10, {v(HP + 4, 4)} offset:1024"); A(f"ds_write_b128 v10, {v(HP + 8, 4)} offset:2048")
    if os.environ.get("DBGH"):
        A("s_lshl_b32 s35, s23, 3"); A("s_add_u32 s35, s35, s24"); A("s_lshl_b32 s35, s35, 2"); A("s_add_u32 s35, s35, s25")
        A("s_mul_i32 s35, s35, 2560"); A(f"s_add_u32 s35, s35, {H_OFF}")
        A("v_lshlrev_b32 v11, 3, v1")
        A(f"buffer_store_dwordx4 {v(HP, 4)}, v4, s[12:15], s35 offen{SC[1]}")
        A(f"buffer_store_dwordx4 {v(HP + 4, 4)}, v4, s[12:15], s35 offen offset:1024{SC[1]}")
        A(f"buffer_store_dwordx2 {v(HP + 8, 2)}, v11, s[12:15], s35 offen offset:2048{SC[1]}")
    A("v_mov_b32 v21, v7"); A("v_mov_b32 v3, v2")

SL5 = [122880, 40960, 61440, 81920, 102400, 0, 20480]
NR5 = 14
def p5_H_setup(A):
    A("v_lshlrev_b32 v4, 4, v1")
    A(f"s_mul_i32 s40, s24, {54 * 5120}"); A(f"s_add_u32 s40, s40, {WD_OFF}"); A("s_mul_i32 s41, s25, 5120")
    A("s_and_b32 s43, s21, 7"); A("s_mul_i32 s43, s43, 7"); A("s_add_u32 s43, s43, s25")
def p5_round_dma(A, r):
    base = SL5[r % 7]
    out = []
    for t in range(5):
        def f(t=t):
            if t == 0:
                A("s_cmp_ge_u32 s43, 54"); A("s_cselect_b32 s42, 54, 0"); A("s_sub_u32 s43, s43, s42")
                A("s_mul_i32 s42, s43, 5120"); A("s_add_u32 s42, s42, s40"); A("s_add_u32 s43, s43, 4")
                A(f"s_add_u32 m0, s41, {base}")
            if t == 4:
                A(f"s_add_u32 m0, s41, {base + 4096}"); A(f"s_add_u32 s42, s42, 4096")
                A(f"buffer_load_dwordx4 v4, s[12:15], s42 offen{SC[0]} lds", tag=('r5', r))
            else:
                A(f"buffer_load_dwordx4 v4, s[12:15], s42 offen offset:{t * 1024}{SC[0]} lds", tag=('r5', r))
        out.append(f)
    return out
def p5_H(A, issued):
    for r in range(NR5):
        A.vm_wait(('r5', r))
        A("s_barrier")
        if r >= 1 and issued < NR5 and issued == r + 6:
            for f in p5_round_dma(A, issued): f()
            issued += 1

def p5_C(A, name):
    RING = 7; AHEAD = 5; A0 = 2
    BREG = 16; AFR = BREG + RING * 16; ACC = AFR + 80; HREG = ACC + 20
    A("v_mov_b32 v7, v21"); A("v_mov_b32 v2, v3")
    A("v_lshlrev_b32 v4, 4, v1"); A("v_add_u32 v5, 61440, v4"); A("v_add_u32 v6, 122880, v4")
    A(f"s_mul_i32 s27, s26, {54 * 1024}"); A(f"s_add_u32 s27, s27, {ACT_OFF}")
    A("v_lshlrev_b32 v8, 3, v1")
    A("s_and_b32 s33, s21, 7"); A("s_mul_i32 s33, s33, 7")
    def loads(r):
        out = []
        for i in range(4):
            if 4 * r + i < 54:
                def f(i=i):
                    b = BREG + ((r % RING) * 4 + i) * 4
                    A("s_cmp_ge_u32 s33, 54"); A("s_cselect_b32 s34, 54, 0"); A("s_sub_u32 s33, s33, s34")
                    A("s_lshl_b32 s34, s33, 10"); A("s_add_u32 s34, s34, s27"); A("s_add_u32 s33, s33, 1")
                    A(f"buffer_load_dwordx4 {v(b, 4)}, v4, s[12:15], s34 offen{SC[0]}", tag=('b5', r))
                out.append(f)
        return out
    for r in range(A0):
        for f in loads(r): f()
    nxt = [A0]
    A("s_load_dwordx2 s[4:5], s[0:1], 64")
    A("s_lshl_b32 s30, s26, 4"); A("v_add_u32 v9, s30, v7"); A("v_mul_u32_u24 v9, 1280, v9"); A("v_mul_u32_u24 v10, 40, v2")
    A("s_mul_i32 s31, s24, 160"); A("v_add3_u32 v9, v9, v10, s31")
    A("s_waitcnt lgkmcnt(0)")
    A("s_mov_b32 s16, s4"); A("s_mov_b32 s17, s5"); A(f"s_mov_b32 s18, {S * D * 2}"); A("s_mov_b32 s19, 0x20000")
    def nst(r): return 4 if 4 * r + 3 < 54 else 54 - 4 * r
    for r in range(NR5 + 1):
        pend, rds, mfs = [], [], []
        A("s_waitcnt lgkmcnt(0)")
        if r < NR5:
            A("s_barrier")
            if os.environ.get("P5FINE") and r < 12:
                A.stamps = True; A.stamp(r + 2); A.stamps = False
            pend = []
            for _ in range(2 if nxt[0] < r + AHEAD else 1):
                if nxt[0] < NR5 and nxt[0] <= r + AHEAD:
                    pend += loads(nxt[0]); nxt[0] += 1
            lo = SL5[r % 7]
            base, off0 = (4, lo) if lo < 61440 else ((5, lo - 61440) if lo < 122880 else (6, lo - 122880))
            rds = [(k, base, off0 + (k // 5) * 5120 + (k % 5) * 1024) for k in range(nst(r) * 5)]
        if r >= 1:
            ps = (r - 1) % RING
            mfs = [(k, BREG + (ps * 4 + k // 5) * 4) for k in range(nst(r - 1) * 5)]
            A.vm_wait(('b5', r - 1))
        n = max(len(rds), len(mfs))
        for k in range(n):
            if k < len(mfs):
                kk, b = mfs[k]; t = kk % 5
                first = (r == 1 and kk < 5)
                A(f"v_mfma_f32_16x16x32_bf16 {v(ACC + 4 * t, 4)}, {v(AFR + kk * 4, 4)}, {v(b, 4)}, {v(ACC + 4 * t, 4) if not first else 0}")
            if k < len(rds):
                kk, base, off = rds[k]
                A(f"ds_read_b128 {v(AFR + kk * 4, 4)}, v{base} offset:{off}")
            if k % 2 == 1 and pend: pend.pop(0)()
        while pend: pend.pop(0)()
    A("s_mul_i32 s35, s25, 3072"); A(f"s_add_u32 s35, s35, {HLDS}"); A("v_add_u32 v10, s35, v4")
    A(f"ds_read_b128 {v(HREG, 4)}, v10"); A(f"ds_read_b128 {v(HREG + 4, 4)}, v10 offset:1024"); A(f"ds_read_b128 {v(HREG + 8, 4)}, v10 offset:2048")
    A("s_waitcnt lgkmcnt(0)")
    T = 16
    for p in range(10):
        t, r = divmod(2 * p, 4); a0 = ACC + 4 * t + r
        A(f"v_cvt_pk_bf16_f32 v{T + p}, v{a0}, v{a0 + 1}")
    for p in range(10):
        A(f"v_lshlrev_b32 v{T + 16 + 2 * p}, 16, v{T + p}"); A(f"v_and_b32 v{T + 17 + 2 * p}, 0xffff0000, v{T + p}")
        A(f"v_lshlrev_b32 v{T + 40 + 2 * p}, 16, v{HREG + p}"); A(f"v_and_b32 v{T + 41 + 2 * p}, 0xffff0000, v{HREG + p}")
    for p in range(10): A(f"v_pk_add_f32 {v(T + 16 + 2 * p, 2)}, {v(T + 16 + 2 * p, 2)}, {v(T + 40 + 2 * p, 2)}")
    O = 80
    for p in range(10): A(f"v_cvt_pk_bf16_f32 v{O + p}, v{T + 16 + 2 * p}, v{T + 17 + 2 * p}")
    A(f"buffer_store_dwordx4 {v(O, 4)}, v9, s[16:19], 0 offen")
    A(f"buffer_store_dwordx4 {v(O + 4, 4)}, v9, s[16:19], 0 offen offset:16")
    A(f"buffer_store_dwordx2 {v(O + 8, 2)}, v9, s[16:19], 0 offen offset:32")

def w0(A, lbl):
    A("s_cmp_lg_u32 s22, 0"); A(f"s_cbranch_scc1 {lbl}")

NPF = 12
import os
def gen_mega(name="mega_kernel", stamps=False, kidx=0):
    A = Asm(); A.endlabel = f"L{name}_end"; A.stamps = False; A.rl_sc = SC[1]; A.nonce_c = True
    def dbgt(k):
        if not os.environ.get("DBGT"): return
        lbl = f"L{name}_dt{k}"
        A("s_cmp_lg_u32 s22, 0"); A(f"s_cbranch_scc1 {lbl}")
        if os.environ.get("DBGT") == "2":
            A("s_cmp_lg_u32 s2, 100"); A(f"s_cbranch_scc1 {lbl}")
        A("s_memrealtime s[94:95]"); A("s_waitcnt lgkmcnt(0)")
        if k == 0: A("s_not_b32 s94, s94")
        A("s_mov_b64 s[92:93], exec"); A("s_mov_b64 exec, 1")
        A(f"v_mov_b32 v10, {4 * (k + 1)}"); A("v_mov_b32 v11, s94")
        A("global_atomic_umax v10, v11, s[98:99]")
        A("s_mov_b64 exec, s[92:93]")
        A.raw(f"{lbl}:")
    def mstamp(k):
        if (os.environ.get("P5FINE") or os.environ.get("P4FINE") or os.environ.get("P4BAR") or os.environ.get("P3FINE")) and k not in (0,):
            if os.environ.get("P3FINE") and k in (8, 9, 10): k = {8: 1, 9: 9, 10: 10}[k]
            elif os.environ.get("P5FINE") and k == 12: k = 1
            elif (os.environ.get("P4FINE") or os.environ.get("P4BAR")) and k == 10: k = 1
            elif (os.environ.get("P4FINE") or os.environ.get("P4BAR")) and k == 11: k = 9
            elif k == 13 and os.environ.get("P5FINE"): return
            elif k == 13: pass
            else: return
        if os.environ.get("P1FINE") and k not in (0, 13) and not (k == 1): return
        if os.environ.get("P1FINE") and k == 1: k = 12
        A.stamps = stamps; A.stamp(k); A.stamps = False
    A.raw(f".globl {name}\n.p2align 8\n.type {name},@function\n{name}:")
    A("s_cmp_ge_u32 s2, 256"); A("s_cbranch_scc1 " + A.endlabel)
    mstamp(0)
    P1.p1_common_setup(A)
    A("s_cmp_ge_u32 s22, 4"); A(f"s_cbranch_scc1 L{name}_H1")

    if not os.environ.get("NOL2PF"):
        A("s_waitcnt lgkmcnt(0)")
        dbgt(0)
        P1.phi_issue_C(A)
        if os.environ.get("PFSLEEP"): A(f"s_sleep {os.environ['PFSLEEP']}")
        A("s_mov_b32 s36, s4"); A("s_mov_b32 s37, s5"); A(f"s_mov_b32 s38, {S * D * 2}"); A("s_mov_b32 s39, 0x20000")
        A("s_mov_b32 s40, s6"); A("s_mov_b32 s41, s7"); A(f"s_mov_b32 s42, {640 * 1920 * 2}"); A("s_mov_b32 s43, 0x20000")
        if os.environ.get("PFMODE", "chunk") == "chunk":
            A("s_lshl_b32 s52, s21, 2"); A("s_add_u32 s52, s52, s25")
            A("s_and_b32 s53, s52, 1"); A("s_mul_i32 s53, s53, 60")
            A("v_add_u32 v30, s53, v1"); A("v_min_u32 v30, 119, v30")
            P1.udiv_small(A, 31, 30, 40); A("v_mul_u32_u24 v29, 40, v31"); A("v_sub_u32 v30, v30, v29")
            A("v_mul_u32_u24 v31, 1280, v31"); A("v_lshl_add_u32 v226, v30, 4, v31")
            A("s_lshr_b32 s53, s52, 1"); A("s_mul_i32 s53, s53, 3840"); A("s_and_b32 s54, s20, 1"); A("s_mul_i32 s54, s54, 640"); A("s_add_u32 s53, s53, s54")
            A("s_lshr_b32 s54, s20, 1"); A("s_lshl_b32 s54, s54, 9"); A("s_lshl_b32 s55, s52, 2"); A("s_add_u32 s54, s54, s55"); A("s_mul_i32 s54, s54, 1280")
            A("v_mul_u32_u24 v227, 1280, v3"); A("v_lshl_add_u32 v227, v21, 4, v227")
            for pr in range(1, 5):
                for cc in range(2):
                    A(f"s_add_u32 s55, s53, {(2 * pr + cc) * 64 * 3840}")
                    A(f"buffer_load_dwordx4 v[232:235], v226, s[40:43], s55 offen")
                A(f"buffer_load_dwordx4 v[232:235], v227, s[36:39], s54 offen offset:{256 * pr}")
                if pr < 4 and os.environ.get('PFS'): A(f"s_sleep {os.environ.get('PFS')}")
        else:
            A("s_mul_i32 s52, s21, 20"); A("s_mul_i32 s53, s25, 5"); A("s_add_u32 s52, s52, s53"); A("s_mul_i32 s52, s52, 3840")
            A("s_and_b32 s53, s20, 1"); A("s_mul_i32 s53, s53, 640"); A("s_add_u32 s52, s52, s53")
            for h in range(2):
                A(f"v_add_u32 v30, {60 * h}, v1"); A(f"v_min_u32 v30, 119, v30")
                P1.udiv_small(A, 31, 30, 40); A("v_mul_u32_u24 v29, 40, v31"); A("v_sub_u32 v30, v30, v29")
                A(f"v_mul_u32_u24 v31, 1280, v31"); A(f"v_lshl_add_u32 v{226 + h}, v30, 4, v31")
            for row in range(5):
                for h in range(2):
                    A(f"buffer_load_dwordx4 v[232:235], v{226 + h}, s[40:43], s52 offen")
                A("s_add_u32 s52, s52, 3840")
            A("s_lshr_b32 s52, s20, 1"); A("s_lshl_b32 s52, s52, 9"); A("s_lshl_b32 s53, s21, 4"); A("s_add_u32 s52, s52, s53"); A("s_lshl_b32 s53, s25, 2"); A("s_add_u32 s52, s52, s53")
            A("s_mul_i32 s52, s52, 1280")
            A("v_lshlrev_b32 v30, 4, v1")
            for k in range(4): A(f"buffer_load_dwordx4 v[232:235], v30, s[36:39], s52 offen offset:{1024 * k}")
            A("s_add_u32 s52, s52, 4096")
            A(f"buffer_load_dwordx4 v[232:235], v30, s[36:39], s52 offen")
    def code_pf():
        A("s_getpc_b64 s[50:51]")
        A.raw(f"L{name}_pc:")
        A(f"s_sub_u32 s50, s50, (L{name}_pc - {name})"); A("s_subb_u32 s51, s51, 0")
        A("v_lshlrev_b32 v30, 4, v1"); A("s_mul_i32 s52, s25, CODE_Q"); A("v_add_u32 v30, s52, v30")
        for k in range(NPF):
            A(f"global_load_dwordx4 v[232:235], v30, s[50:51] offset:{(k % 4) * 1024}")
            if k % 4 == 3: A("v_add_u32 v30, 4096, v30")
    A.code_pf = (lambda: None) if os.environ.get('NOPF') else code_pf
    R = P1.p1_C(A, name)
    A("s_waitcnt lgkmcnt(0)")
    A("s_barrier")
    A(f"s_branch L{name}_epi")
    A.raw(f"L{name}_H1:")
    A.hist = []; A.vm = []
    P1.p1_H(A, name)
    A("s_barrier")
    R_ = R
    A(f"s_mul_i32 s31, s25, 9216"); A(f"v_lshlrev_b32 v228, 4, v1"); A(f"v_add_u32 v228, s31, v228")
    for t in range(8): A(f"ds_read_b128 {v(R['ACC'] + 4 * t, 4)}, v228 offset:{P1.HO + 1024 * t}")
    A(f"s_lshl_b32 s31, s25, 11"); A(f"s_add_u32 s31, s31, {P1.HO2}"); A(f"v_lshlrev_b32 v229, 4, v1"); A(f"v_add_u32 v229, s31, v229")
    A(f"ds_read_b128 {v(R['GR'], 4)}, v229"); A(f"ds_read_b128 {v(R['SX'], 4)}, v229 offset:1024")
    A("s_waitcnt lgkmcnt(0)")
    A.raw(f"L{name}_epi:")
    A.hist = []; A.vm = []
    A("s_nop 7")
    mstamp(1); dbgt(1)
    PH = P1.p1_epilogue(A, name, R, True)
    mstamp(2)
    A("s_waitcnt vmcnt(0)")
    A("s_barrier")
    mstamp(3); dbgt(2)
    zero_afr(A, 8)
    w0(A, f"L{name}_a0")
    P1.nonce_get(A, name, None, 8)
    A("s_lshl_b32 s33, s24, 4"); A("s_add_u32 s33, s33, s23")
    flag_set(A, FA, 33)
    A(f"v_mov_b32 v8, {NONCE_LDS}"); A("v_mov_b32 v9, s96"); A("ds_write_b32 v8, v9")
    A.raw(f"L{name}_a0:")
    import rl2
    A.vm = []
    A("s_lshl_b32 s60, s22, 12"); A("s_add_u32 s60, s60, 98304")
    rl2.finish(A, f"L{name}_f0", 16, 236, 64, 60, A.rl_sc)
    A("s_cmp_lt_u32 s22, 4"); A(f"s_cbranch_scc1 L{name}_f1x")
    rl2.finish(A, f"L{name}_f1", 17, 152, 64, 60, A.rl_sc)
    A.raw(f"L{name}_f1x:")
    w0(A, f"L{name}_a1b")
    A("s_lshl_b32 s33, s24, 4")
    flag_wait(A, f"L{name}_pa", FA, 33, 16)
    A.raw(f"L{name}_a1b:")
    A.raw(f"L{name}_a1:")
    A("s_waitcnt lgkmcnt(0)")
    A("s_barrier")
    mstamp(4); dbgt(3)
    A(f"v_mov_b32 v8, {NONCE_LDS}"); A("ds_read_b32 v9, v8"); A("s_waitcnt lgkmcnt(0)"); A("v_readfirstlane_b32 s96, v9")
    A.vm = []
    def after_bar():
        w0(A, f"L{name}_a2")
        flag_set(A, FW, 2)
        A.raw(f"L{name}_a2:")
    p2_body(A, name, PH, sc=SC[0], osc=SC[1], after_bar=after_bar)
    mstamp(5)
    A("s_waitcnt vmcnt(0)")
    A("s_barrier")
    mstamp(6); dbgt(4)
    w0(A, f"L{name}_a3")
    A("s_lshl_b32 s33, s23, 4"); A("s_add_u32 s33, s33, s24")
    flag_set(A, FO, 33)
    A.raw(f"L{name}_a3:")
    ids_p35(A)
    mstamp(7)
    A("s_cmp_ge_u32 s22, 4"); A(f"s_cbranch_scc1 L{name}_H3")
    A.hist = []; A.vm = []
    p3_C_pre(A)
    A("s_lshr_b32 s33, s23, 1"); A("s_lshl_b32 s33, s33, 4")
    flag_wait(A, f"L{name}_po", FO, 33, 16)
    mstamp(8); dbgt(5)
    A.vm = ['x', 'x', 'x']
    p3_C(A, name)
    mstamp(9)
    A("s_waitcnt vmcnt(0)")
    A("s_barrier")
    w0(A, f"L{name}_a5")
    A("s_lshl_b32 s33, s23, 3"); A("s_add_u32 s33, s33, s24")
    flag_set(A, FH, 33)
    A.raw(f"L{name}_a5:")
    P4.ids_p4(A)
    w0(A, f"L{name}_a6")
    A("s_lshl_b32 s33, s23, 4")
    flag_wait(A, f"L{name}_ph", FH, 33, 16)
    A.raw(f"L{name}_a6:")
    A("s_barrier")
    mstamp(10); dbgt(6)
    A.hist = []; A.vm = []
    A.p4_pre_hc = lambda: None
    P4.p4_C(A, SC)
    mstamp(11)
    A("s_waitcnt vmcnt(0)")
    A("s_barrier")
    w0(A, f"L{name}_a7")
    A("s_lshl_b32 s33, s23, 4"); A("s_add_u32 s33, s33, s18")
    flag_set(A, FG, 33)
    A.raw(f"L{name}_a7:")
    A("v_and_b32 v21, 15, v1"); A("v_lshrrev_b32 v3, 4, v1")
    ids_p35(A)
    w0(A, f"L{name}_a8")
    A("s_lshr_b32 s33, s23, 1"); A("s_lshl_b32 s33, s33, 4")
    flag_wait(A, f"L{name}_pg", FG, 33, 16)
    A.raw(f"L{name}_a8:")
    A("s_barrier")
    mstamp(12); dbgt(7)
    A.hist = []; A.vm = []
    p5_C(A, name)
    if os.environ.get("DBGT"): A("s_waitcnt vmcnt(0)")
    dbgt(8)
    A(f"s_branch L{name}_fin")
    A.raw(f"L{name}_H3:")
    A.hist = []; A.vm = []
    flag_wait(A, f"L{name}_pw", FW, None, 256)
    p3_H_dma(A)
    if os.environ.get("L2GU"): l2_prefetch(A, WGU_OFF, 56 * 40960, 71680, 17920, 18)
    mstamp(8)
    p3_H_loop(A)
    P4.ids_p4(A)
    P4.p4_H_setup(A)
    for f in range(3):
        for fn in P4.p4_tile_dma(A, f, SC): fn()
    A("s_barrier")
    A("s_barrier")
    mstamp(9); mstamp(10); mstamp(11)
    A.p4_pre_var = lambda: None
    A("s_mov_b32 s44, s23"); A("s_mov_b32 s45, s24"); A("s_mov_b32 s46, s26")
    ids_p35(A); p5_H_setup(A)
    A("s_mov_b32 s23, s44"); A("s_mov_b32 s24, s45"); A("s_mov_b32 s26, s46")
    state = {'n': 0}
    def tail(f):
        rounds = {4: [0, 1, 2], 5: [3, 4]}.get(f, [])
        out = []
        for r in rounds: out += p5_round_dma(A, r)
        state['n'] += len(rounds)
        return out
    A.p4_tail_dma = tail
    if os.environ.get("L2WD"): l2_prefetch(A, WD_OFF, 0, 69120, 17280, 17)
    P4.p4_H(A, SC, prefetched=3)
    A("s_barrier")
    for r in (5, 6):
        for f in p5_round_dma(A, r): f()
    A("s_barrier")
    mstamp(12)
    p5_H(A, 7)
    A.raw(f"L{name}_fin:")
    if stamps:
        A("s_waitcnt vmcnt(0)")
        mstamp(13); A.stamps = True; A.nstamp = 14
        A("v_lshlrev_b32 v0, 6, s22") if False else None
        A("v_mov_b32 v0, s22"); A("v_lshlrev_b32 v0, 6, v0")
        A.stamp_dump(8, 9, TS_OFF, 8)
    A.raw(A.endlabel + ":")
    A("s_endpgm")
    A.raw(f"L{name}_last:")
    A.raw(".fill 1024, 4, 0xbf800000")
    txt = A.text().replace("CODE_Q", str(NPF * 1024))
    return txt, kernel_desc(name, 256, 102, 256), (256, 512, 163840)
```

```python
from asmlib import *
from layout import *
from k4 import f32hex, bf16_round
from k3 import xlane_sum_g
from k1 import POS, INV, pack3, PAIRS, SLOT, NSLOT, MISC, PHT, ZP, CSA, PST, VST, AFR, L2E, table_lookup3, udiv_small, ids_p1
import math

HO = 40960
NCH = 10

def poll_flags(A, lbl, nfl, vaddr, vdat, sbase):
    A("s_mov_b32 s97, 0")
    A(f"s_mov_b64 exec, {hex((1 << nfl) - 1) if nfl <= 32 else '-1'}")
    A.raw(f"{lbl}:")
    A(f"buffer_load_dword v{vdat}, v{vaddr}, s[12:15], s{sbase} offen sc1")
    A("s_add_u32 s97, s97, 1")
    A("s_waitcnt vmcnt(0)")
    A(f"v_cmp_ne_u32 vcc, s96, v{vdat}")
    A(f"s_cmp_gt_u32 s97, 0x40000")
    A(f"s_cbranch_scc1 {lbl}_x")
    A(f"s_cbranch_vccnz {lbl}")
    A.raw(f"{lbl}_x:")
    A("s_mov_b64 exec, -1")

def nonce_publish(A, name, vt):
    A("s_cmp_lg_u32 s2, 0"); A(f"s_cbranch_scc1 L{name}_n1")
    A("s_cmp_lg_u32 s22, 0"); A(f"s_cbranch_scc1 L{name}_n1")
    A(f"v_mov_b32 v{vt}, 0"); A(f"s_mov_b32 s97, {NONCE_OFF}")
    A(f"buffer_load_dword v{vt + 1}, v{vt}, s[12:15], s97 offen sc1")
    A("s_waitcnt vmcnt(0)")
    A(f"s_mov_b32 s96, 0x9e3779b1"); A(f"v_mul_lo_u32 v{vt + 1}, v{vt + 1}, s96"); A(f"v_add_u32 v{vt + 1}, 0x7f4a7c15, v{vt + 1}")
    A(f"v_max_u32 v{vt + 1}, 1, v{vt + 1}")
    A(f"buffer_store_dword v{vt + 1}, v{vt}, s[12:15], s97 offen sc0 sc1")
    A(f"global_store_dword v{vt}, v{vt + 1}, s[98:99] sc0 sc1")
    A.raw(f"L{name}_n1:")

def nonce_get(A, name, vpre, vt):
    if vpre is not None: A(f"v_readfirstlane_b32 s96, v{vpre}")
    A("s_cmp_lg_u32 s96, 0"); A(f"s_cbranch_scc1 L{name}_n3")
    A(f"v_mov_b32 v{vt}, 0"); A("s_mov_b32 s97, 0")
    A.raw(f"L{name}_n2:")
    A(f"global_load_dword v{vt + 1}, v{vt}, s[98:99] sc1")
    A("s_add_u32 s97, s97, 1")
    A("s_waitcnt vmcnt(0)")
    A(f"v_readfirstlane_b32 s96, v{vt + 1}")
    A("s_cmp_gt_u32 s97, 0x40000"); A(f"s_cbranch_scc1 L{name}_n3")
    A("s_cmp_eq_u32 s96, 0"); A(f"s_cbranch_scc1 L{name}_n2")
    A.raw(f"L{name}_n3:")

def p1_common_setup(A):
    A("s_load_dwordx4 s[4:7], s[0:1], 0")
    A("s_load_dwordx4 s[64:67], s[0:1], 16")
    A("s_load_dwordx4 s[68:71], s[0:1], 40")
    A("s_load_dwordx2 s[72:73], s[0:1], 56")
    A("s_load_dwordx2 s[8:9], s[0:1], 80")
    A("s_load_dwordx2 s[98:99], s[0:1], 72")
    A("v_and_b32 v1, 63, v0")
    A("v_lshrrev_b32 v2, 6, v0")
    ids_p1(A)
    A("v_readfirstlane_b32 s22, v2")
    A("v_lshrrev_b32 v3, 4, v1")
    A("v_and_b32 v21, 15, v1")
    A("s_and_b32 s25, s22, 3")
    A("s_lshl_b32 s26, s23, 7"); A("s_lshl_b32 s27, s25, 5"); A("s_add_u32 s26, s26, s27"); A("s_lshr_b32 s27, s22, 2"); A("s_lshl_b32 s27, s27, 4"); A("s_add_u32 s26, s26, s27")
    A("s_and_b32 s19, s26, 127")

def make_rl(A, name):
    R0 = 200; RAD = 216
    RLk = [236, 64]; RAk = [230, 84]; MD = ['s16', 's18']; DUM = [231, 85]; RADk = [216, 216]; R0k = [200, 200]
    rl = f"L{name}_rl"
    ROk = [64, 88]
    def rl_setup(k):
        L = f"{rl}{k}"; RA = RAk[k]
        if k == 0:
            A("s_mul_i32 s48, s2, 7"); A("s_add_u32 s48, s48, s22"); A("s_sub_u32 s48, s48, 1")
            A("s_cmp_ge_u32 s48, 1620"); A("s_cselect_b32 s48, 4000, s48")
            A("s_cmp_eq_u32 s22, 0"); A("s_cselect_b32 s48, 4000, s48")
        else:
            A("s_lshl_b32 s48, s17, 2"); A("s_add_u32 s48, s48, s25"); A("s_add_u32 s48, s48, 1620")
        R0 = R0k[k]; RAD = RADk[k]
        A("s_mov_b32 s50, 0")
        A(f"s_cmp_ge_u32 s48, 1980"); A(f"s_cbranch_scc1 {L}_none")
        A(f"s_cmp_ge_u32 s48, 1820"); A(f"s_cbranch_scc1 {L}_wbar")
        A(f"s_cmp_ge_u32 s48, 1080"); A(f"s_cbranch_scc1 {L}_n640")
        A.raw(f"{L}_gu:")
        A("s_mov_b32 s50, 1"); A("s_mov_b32 s49, 0")
        A("s_cmp_ge_u32 s48, 540"); A("s_cselect_b32 s44, s70, s68"); A("s_cselect_b32 s45, s71, s69"); A("s_cselect_b32 s51, 1024, 0"); A("s_cselect_b32 s49, 540, s49")
        A(f"s_mov_b32 s46, {640 * 1728 * 2}"); A("s_mov_b32 s47, 0x20000")
        A("s_sub_u32 s49, s48, s49"); A("s_lshl_b32 s49, s49, 6")
        A(f"v_add_u32 v{R0}, s49, v1")
        A(f"s_mov_b32 s52, {(1 << 24) // 432 + 1}")
        A(f"v_mul_lo_u32 v{R0 + 1}, v{R0}, s52"); A(f"v_lshrrev_b32 v{R0 + 1}, 24, v{R0 + 1}")
        A(f"v_mul_u32_u24 v{R0 + 2}, 432, v{R0 + 1}"); A(f"v_sub_u32 v{R0 + 2}, v{R0}, v{R0 + 2}")
        A(f"v_lshrrev_b32 v{R0 + 3}, 2, v{R0 + 1}"); A(f"v_and_b32 v{R0 + 4}, 3, v{R0 + 1}")
        udiv_small(A, R0 + 5, R0 + 3, 5); A(f"v_mul_u32_u24 v{R0 + 6}, 5, v{R0 + 5}"); A(f"v_sub_u32 v{R0 + 6}, v{R0 + 3}, v{R0 + 6}")
        A(f"v_mul_u32_u24 v{R0 + 5}, 160, v{R0 + 5}"); A(f"v_mul_u32_u24 v{R0 + 7}, 20, v{R0 + 4}"); A(f"v_add_u32 v{R0 + 5}, v{R0 + 5}, v{R0 + 7}")
        A(f"v_lshlrev_b32 v{R0 + 6}, 3, v{R0 + 6}")
        for jj in range(8):
            A(f"v_add_u32 v{R0 + 7}, {jj}, v{R0 + 6}")
            A(f"v_add_u32 v{R0 + 8}, 60, v{R0 + 7}"); A(f"v_cmp_gt_u32 vcc, 20, v{R0 + 7}"); A(f"v_cndmask_b32 v{R0 + 7}, v{R0 + 8}, v{R0 + 7}, vcc")
            A(f"v_add_u32 v{R0 + 7}, v{R0 + 7}, v{R0 + 5}")
            A(f"v_mul_u32_u24 v{R0 + 7}, 3456, v{R0 + 7}"); A(f"v_lshl_add_u32 v{RAD + jj}, v{R0 + 2}, 3, v{R0 + 7}")
        A(f"v_lshrrev_b32 v{R0 + 7}, 2, v{R0 + 2}"); A(f"v_mul_u32_u24 v{R0 + 7}, 20, v{R0 + 7}"); A(f"v_add_u32 v{R0 + 7}, v{R0 + 7}, v{R0 + 3}")
        A(f"v_lshlrev_b32 v{R0 + 7}, 11, v{R0 + 7}")
        A(f"v_and_b32 v{R0 + 8}, 3, v{R0 + 2}"); A(f"v_lshlrev_b32 v{R0 + 8}, 6, v{R0 + 8}"); A(f"v_lshl_add_u32 v{R0 + 8}, v{R0 + 4}, 8, v{R0 + 8}")
        A(f"v_add3_u32 v{RA}, v{R0 + 7}, v{R0 + 8}, s51"); A(f"v_add_u32 v{RA}, {WGU_OFF}, v{RA}")
        A(f"s_branch {L}_done")
        A.raw(f"{L}_n640:")
        A("s_mov_b32 s49, 1080"); A(f"s_mov_b32 s46, {1728 * 640 * 2}")
        A("s_cmp_ge_u32 s48, 1620"); A("s_cselect_b32 s44, s66, s72"); A("s_cselect_b32 s45, s67, s73"); A("s_cselect_b32 s50, 3, 2"); A("s_cselect_b32 s49, 1620, s49")
        A(f"s_cselect_b32 s46, {640 * 640 * 2}, s46"); A("s_mov_b32 s47, 0x20000")
        A("s_sub_u32 s49, s48, s49"); A("s_lshl_b32 s49, s49, 6")
        A(f"v_add_u32 v{R0}, s49, v1")
        A(f"s_mov_b32 s52, {(1 << 24) // 160 + 1}")
        A(f"v_mul_lo_u32 v{R0 + 1}, v{R0}, s52"); A(f"v_lshrrev_b32 v{R0 + 1}, 24, v{R0 + 1}")
        A(f"v_mul_u32_u24 v{R0 + 2}, 160, v{R0 + 1}"); A(f"v_sub_u32 v{R0 + 2}, v{R0}, v{R0 + 2}")
        A(f"v_lshrrev_b32 v{R0 + 3}, 2, v{R0 + 1}"); A(f"v_and_b32 v{R0 + 4}, 3, v{R0 + 1}")
        A("s_cmp_eq_u32 s50, 3"); A("s_cselect_b64 s[54:55], -1, 0")
        udiv_small(A, R0 + 5, R0 + 3, 5); A(f"v_mul_u32_u24 v{R0 + 6}, 5, v{R0 + 5}"); A(f"v_sub_u32 v{R0 + 6}, v{R0 + 3}, v{R0 + 6}")
        A(f"v_mul_u32_u24 v{R0 + 5}, 160, v{R0 + 5}"); A(f"v_mul_u32_u24 v{R0 + 7}, 10, v{R0 + 4}"); A(f"v_add_u32 v{R0 + 5}, v{R0 + 5}, v{R0 + 7}")
        A(f"v_cmp_gt_u32 s[56:57], 4, v{R0 + 6}")
        A(f"v_mul_u32_u24 v{R0 + 6}, 40, v{R0 + 6}"); A(f"v_add_u32 v{R0 + 6}, v{R0 + 6}, v{R0 + 5}")
        A(f"v_lshlrev_b32 v{R0 + 9}, 5, v{R0 + 3}"); A(f"v_lshl_add_u32 v{R0 + 9}, v{R0 + 4}, 2, v{R0 + 9}")
        for jj in range(8):
            A(f"v_add_u32 v{R0 + 7}, {jj}, v{R0 + 6}")
            A(f"v_add_u32 v{R0 + 8}, {40 * (jj >> 1) + 8 + (jj & 1)}, v{R0 + 5}")
            A(f"v_cndmask_b32 v{R0 + 7}, v{R0 + 8}, v{R0 + 7}, s[56:57]")
            A(f"v_add_u32 v{R0 + 8}, {16 * (jj >> 2) + (jj & 3)}, v{R0 + 9}")
            A(f"v_cndmask_b32 v{R0 + 7}, v{R0 + 8}, v{R0 + 7}, s[54:55]")
            A(f"v_mul_u32_u24 v{R0 + 7}, 1280, v{R0 + 7}"); A(f"v_lshl_add_u32 v{RAD + jj}, v{R0 + 2}, 3, v{R0 + 7}")
        udiv_small(A, R0 + 7, R0 + 2, 20); A(f"v_mul_u32_u24 v{R0 + 8}, 20, v{R0 + 7}"); A(f"v_sub_u32 v{R0 + 8}, v{R0 + 2}, v{R0 + 8}")
        udiv_small(A, R0 + 9, R0 + 8, 5); A(f"v_mul_u32_u24 v{R0 + 5}, 5, v{R0 + 9}"); A(f"v_sub_u32 v{R0 + 5}, v{R0 + 8}, v{R0 + 5}")
        A(f"s_mov_b32 s53, {WD_OFF}"); A("s_cmp_eq_u32 s50, 3"); A("s_cselect_b32 s52, 20, 54"); A(f"s_cselect_b32 s53, {WO_OFF}, s53")
        A(f"v_mul_lo_u32 v{R0 + 7}, v{R0 + 7}, s52"); A(f"v_add_u32 v{R0 + 7}, v{R0 + 7}, v{R0 + 3}")
        A(f"v_mul_u32_u24 v{R0 + 7}, 5, v{R0 + 7}"); A(f"v_add_u32 v{R0 + 7}, v{R0 + 7}, v{R0 + 5}"); A(f"v_lshlrev_b32 v{R0 + 7}, 10, v{R0 + 7}")
        A(f"v_lshlrev_b32 v{R0 + 8}, 8, v{R0 + 4}"); A(f"v_lshl_add_u32 v{R0 + 8}, v{R0 + 9}, 6, v{R0 + 8}")
        A(f"v_add3_u32 v{RA}, v{R0 + 7}, v{R0 + 8}, s53")
        A(f"s_branch {L}_done")
        A.raw(f"{L}_wbar:")
        A("s_mov_b32 s50, 4")
        A("s_mov_b32 s44, s66"); A("s_mov_b32 s45, s67"); A(f"s_mov_b32 s46, {640 * 640 * 2}"); A("s_mov_b32 s47, 0x20000")
        A("s_sub_u32 s49, s48, 1820"); A("s_lshl_b32 s49, s49, 2")
        A(f"v_add_u32 v{R0}, s49, v3")
        A(f"v_mul_u32_u24 v{R0 + 1}, 1280, v{R0}"); A(f"v_lshl_add_u32 v{RAD}, v21, 4, v{R0 + 1}")
        for n in range(1, 8): A(f"v_mov_b32 v{RAD + n}, v{RAD}")
        udiv_small(A, R0 + 1, R0, 160); A(f"v_mul_u32_u24 v{R0 + 2}, 160, v{R0 + 1}"); A(f"v_sub_u32 v{R0 + 2}, v{R0}, v{R0 + 2}")
        udiv_small(A, R0 + 3, R0 + 2, 40); A(f"v_mul_u32_u24 v{R0 + 8}, 40, v{R0 + 3}"); A(f"v_sub_u32 v{R0 + 8}, v{R0 + 2}, v{R0 + 8}")
        udiv_small(A, R0 + 9, R0 + 8, 10); A(f"v_mul_u32_u24 v{R0 + 2}, 10, v{R0 + 9}"); A(f"v_sub_u32 v{R0 + 2}, v{R0 + 8}, v{R0 + 2}")
        A(f"v_cmp_gt_u32 vcc, 8, v{R0 + 2}")
        A(f"v_mov_b32 v{R0 + 8}, 4"); A(f"v_cndmask_b32 v{R0 + 8}, v{R0 + 8}, v{R0 + 3}, vcc")
        A(f"v_lshl_add_u32 v{R0 + 4}, v{R0 + 3}, 1, v{R0 + 2}"); A(f"v_subrev_u32 v{R0 + 4}, 8, v{R0 + 4}")
        A(f"v_cndmask_b32 v{R0 + 3}, v{R0 + 4}, v{R0 + 2}, vcc")
        A(f"v_mul_u32_u24 v{R0 + 1}, 5, v{R0 + 1}"); A(f"v_add_u32 v{R0 + 1}, v{R0 + 1}, v{R0 + 8}")
        A(f"v_lshl_add_u32 v{R0 + 1}, v{R0 + 1}, 2, v{R0 + 9}"); A(f"v_lshl_add_u32 v{R0 + 1}, v{R0 + 1}, 3, v{R0 + 3}")
        A(f"v_lshlrev_b32 v{RA}, 1, v{R0 + 1}"); A(f"v_add_u32 v{RA}, {WBAR_OFF}, v{RA}")
        A(f"s_branch {L}_done")
        A.raw(f"{L}_none:")
        A("s_mov_b32 s44, s8"); A("s_mov_b32 s45, s9"); A("s_mov_b32 s46, 4096"); A("s_mov_b32 s47, 0x20000")
        for n in range(8): A(f"v_lshlrev_b32 v{RAD + n}, 2, v1")
        A(f"v_mov_b32 v{RA}, 0")
        A.raw(f"{L}_done:")
        A(f"s_mov_b32 {MD[k]}, s50")
    def rl_issue(k):
        L = f"{rl}{k}"; RL = RLk[k]; RAD = RADk[k]
        vmb = list(A.vm)
        A("s_cmp_eq_u32 s50, 4"); A(f"s_cbranch_scc1 {L}_i4")
        for jj in range(8): A(f"buffer_load_dwordx2 {v(RL + 2 * jj, 2)}, v{RAD + jj}, s[44:47], 0 offen")
        A(f"s_branch {L}_idone")
        A.raw(f"{L}_i4:")
        for n in range(5): A(f"buffer_load_dwordx4 {v(RL + 4 * n, 4)}, v{RAD}, s[44:47], 0 offen offset:{256 * n}")
        for n in range(3): A(f"buffer_load_dword v{DUM[k]}, v{RAD}, s[44:47], 0 offen")
        A.raw(f"{L}_idone:")
        A.vm = vmb + [('rl', k)] * 8
    def rl_finish(k, sc):
        L = f"{rl}{k}"; RL = RLk[k]; RA = RAk[k]
        A.vm_wait(('rl', k))
        vmb = list(A.vm)
        RO = ROk[k]
        A(f"s_cmp_eq_u32 {MD[k]}, 4"); A(f"s_cbranch_scc1 {L}_wb2")
        A(f"s_cmp_eq_u32 {MD[k]}, 0"); A(f"s_cbranch_scc1 {L}_f0")
        A("s_mov_b32 s52, 0x05040100"); A("s_mov_b32 s53, 0x07060302")
        for e_ in range(4):
            for m_ in range(4):
                lo = RL + 2 * (2 * m_) + (e_ >> 1); hi = RL + 2 * (2 * m_ + 1) + (e_ >> 1)
                A(f"v_perm_b32 v{RO + 4 * e_ + m_}, v{hi}, v{lo}, s{52 + (e_ & 1)}")
        if k == 0:
            A(f"s_lshl_b32 s52, s22, 12"); A(f"s_add_u32 s52, s52, 98304")
        else:
            A(f"s_lshl_b32 s52, s25, 12"); A(f"s_add_u32 s52, s52, 95232")
        A(f"v_lshlrev_b32 v{RO + 16}, 6, v1"); A(f"v_add_u32 v{RO + 16}, s52, v{RO + 16}")
        for e_ in range(4): A(f"ds_write_b128 v{RO + 16}, {v(RO + 4 * e_, 4)} offset:{16 * e_}")
        A(f"v_lshrrev_b32 v{RO + 17}, 2, v1"); A(f"v_lshlrev_b32 v{RO + 17}, 2, v{RO + 17}")
        for i_ in range(4):
            A(f"v_add_u32 v{RO + 18}, {64 * i_}, v{RO + 17}")
            A(f"ds_bpermute_b32 v{RO + 20 + i_}, v{RO + 18}, v{RA}")
        A(f"v_lshlrev_b32 v{RO + 16}, 4, v1"); A(f"v_add_u32 v{RO + 16}, s52, v{RO + 16}")
        A("s_waitcnt lgkmcnt(0)")
        for i_ in range(4): A(f"ds_read_b128 {v(RO + 4 * i_, 4)}, v{RO + 16} offset:{1024 * i_}")
        A(f"v_and_b32 v{RO + 17}, 3, v1"); A(f"v_lshlrev_b32 v{RO + 17}, 4, v{RO + 17}")
        for i_ in range(4): A(f"v_add_u32 v{RO + 20 + i_}, v{RO + 20 + i_}, v{RO + 17}")
        A("s_waitcnt lgkmcnt(0)")
        for i_ in range(4):
            A(f"buffer_store_dwordx4 {v(RO + 4 * i_, 4)}, v{RO + 20 + i_}, s[12:15], 0 offen{sc}")
        A(f"s_branch {L}_fin")
        A.raw(f"{L}_wb2:")
        A(f"v_mov_b32 v{RO}, 0"); A(f"v_mov_b32 v{RO + 1}, 0")
        for n in range(20):
            A(f"v_lshlrev_b32 v{RO + 2}, 16, v{RL + n}"); A(f"v_and_b32 v{RO + 3}, 0xffff0000, v{RL + n}")
            A(f"v_add_f32 v{RO}, v{RO}, v{RO + 2}"); A(f"v_add_f32 v{RO + 1}, v{RO + 1}, v{RO + 3}")
        A(f"v_add_f32 v{RO}, v{RO}, v{RO + 1}")
        for sh in (8, 4, 2, 1):
            A(f"v_add_f32_dpp v{RO + 1}, v{RO}, v{RO} row_ror:{sh} row_mask:0xf bank_mask:0xf")
            A(f"v_mov_b32 v{RO}, v{RO + 1}")
        A(f"v_mul_f32 v{RO}, {f32hex(1.0 / 640)}, v{RO}")
        A(f"v_cvt_pk_bf16_f32 v{RO}, v{RO}, v{RO}")
        for n in range(4): A(f"buffer_store_short v{RO}, v{RA}, s[12:15], 0 offen{sc}")
        A(f"s_branch {L}_fin")
        A.raw(f"{L}_f0:")
        A(f"v_mov_b32 v{RO}, {TS_OFF + (1 << 20) - 256}")
        for n in range(4): A(f"buffer_store_dword v{RO}, v{RO}, s[12:15], 0 offen")
        A.raw(f"{L}_fin:")
        A.vm = vmb + [('rs', k)] * 4

    return rl_setup, rl_issue, rl_finish

def p1_H(A, name, RLC=1):
    T0 = 148
    A("v_lshrrev_b32 v22, 3, v1"); A("v_and_b32 v23, 7, v1"); A("v_xor_b32 v23, v23, v22")
    A("v_mul_u32_u24 v19, 1280, v22"); A("v_lshl_add_u32 v19, v23, 4, v19")
    udiv_small(A, T0, 1, 10); A(f"v_mul_u32_u24 v{T0 + 1}, 10, v{T0}"); A(f"v_sub_u32 v{T0 + 1}, v1, v{T0 + 1}")
    A(f"v_lshlrev_b32 v{T0 + 2}, 4, v{T0 + 1}")
    A(f"v_add_u32 v{T0 + 3}, {1280 - 80}, v{T0 + 2}")
    A(f"v_cmp_gt_u32 vcc, 5, v{T0 + 1}")
    A(f"v_cndmask_b32 v{T0 + 2}, v{T0 + 3}, v{T0 + 2}, vcc")
    A(f"v_mul_u32_u24 v20, 3840, v{T0}"); A(f"v_add_u32 v20, v20, v{T0 + 2}")
    A(f"v_subrev_u32 v{T0 + 4}, 40, v1")
    A(f"v_max_i32 v{T0 + 4}, 0, v{T0 + 4}"); A(f"v_min_u32 v{T0 + 4}, 19, v{T0 + 4}")
    table_lookup3(A, T0 + 5, T0 + 4, pack3(INV), T0 + 6)
    udiv_small(A, T0 + 8, T0 + 4, 5)
    A(f"v_mul_u32_u24 v{T0 + 8}, 3840, v{T0 + 8}")
    A(f"v_lshl_add_u32 v{T0 + 8}, v{T0 + 5}, 4, v{T0 + 8}"); A(f"v_add_u32 v{T0 + 8}, 2560, v{T0 + 8}")
    A("v_cmp_gt_u32 vcc, 40, v1")
    A(f"v_cndmask_b32 v20, v{T0 + 8}, v20, vcc")
    A("s_lshl_b32 s27, s23, 7"); A("s_lshl_b32 s28, s25, 5"); A("s_add_u32 s27, s27, s28"); A("s_mul_i32 s27, s27, 1280")
    A("s_mul_i32 s28, s24, 80"); A(f"s_mul_i32 s29, s25, {16 * 3840}"); A("s_add_u32 s28, s28, s29")
    A("s_lshl_b32 s29, s25, 12")
    A("s_mul_i32 s30, s25, 3840"); A("s_add_u32 s30, s30, 16384")
    A("s_waitcnt lgkmcnt(0)")
    A("s_mov_b32 s36, s4"); A("s_mov_b32 s37, s5"); A(f"s_mov_b32 s38, {S * D * 2}"); A("s_mov_b32 s39, 0x20000")
    A("s_mov_b32 s40, s6"); A("s_mov_b32 s41, s7"); A(f"s_mov_b32 s42, {640 * 1920 * 2}"); A("s_mov_b32 s43, 0x20000")
    A("s_mov_b32 s12, s8"); A("s_mov_b32 s13, s9"); A(f"s_mov_b32 s14, {WS_USED}"); A("s_mov_b32 s15, 0x20000")
    A("s_mov_b32 s34, -1"); A("s_mov_b32 s35, 0x0fffffff")
    def chunk_dma(c):
        slot = c % NSLOT
        for b in range(4):
            A(f"s_add_u32 m0, s30, {slot * SLOT + b * 960}")
            A(f"s_add_u32 s32, s28, {c * 64 * 3840 + b * 4 * 3840}")
            A("s_mov_b64 exec, s[34:35]")
            A(f"buffer_load_dwordx4 v20, s[40:43], s32 offen lds", tag=('c', c))
            A("s_mov_b64 exec, -1")
            A(f"s_add_u32 m0, s29, {slot * SLOT + b * 1024}")
            A(f"s_add_u32 s32, s27, {c * 128 + b * 10240}")
            A(f"buffer_load_dwordx4 v19, s[36:39], s32 offen lds", tag=('c', c))
    A("s_mov_b32 s33, 0x3f803f80")
    PT = 176
    def phi_issue():
        A(f"v_subrev_u32 v{PT + 1}, 256, v0")
        A(f"v_mov_b32 v{PT}, 0")
        A(f"v_lshlrev_b32 v{PT + 2}, 2, v{PT + 1}"); A(f"v_add_u32 v{PT + 2}, {ZP}, v{PT + 2}")
        A(f"ds_write_b32 v{PT + 2}, v{PT}")
        A("s_mul_i32 s31, s24, 1600")
        for rep in range(4):
            e = 24 + 8 * rep
            A(f"v_add_u32 v{e}, {256 * rep}, v{PT + 1}"); A(f"v_min_u32 v{e}, 959, v{e}")
            udiv_small(A, e + 1, e, 24, 16)
            A(f"v_mul_u32_u24 v{e + 2}, 24, v{e + 1}"); A(f"v_sub_u32 v{e + 2}, v{e}, v{e + 2}")
            udiv_small(A, e + 3, e + 1, 20, 16)
            A(f"v_mul_u32_u24 v{e + 4}, 20, v{e + 3}"); A(f"v_sub_u32 v{e + 4}, v{e + 1}, v{e + 4}")
            A(f"v_mul_u32_u24 v{e + 5}, 800, v{e + 3}"); A(f"v_mul_u32_u24 v{e + 6}, 40, v{e + 2}")
            A(f"v_add3_u32 v{e + 5}, v{e + 5}, v{e + 6}, s31"); A(f"v_lshl_add_u32 v{e + 5}, v{e + 4}, 1, v{e + 5}")
            A(f"v_min_u32 v{e + 5}, {32 * 800 - 2}, v{e + 5}")
            A(f"global_load_ushort v{e + 6}, v{e + 5}, s[64:65]", tag='phi')
            A(f"v_lshlrev_b32 v{e}, 1, v{e}"); A(f"v_add_u32 v{e}, {PHT}, v{e}")
    rl_setup, rl_issue, rl_finish = make_rl(A, name)
    sc = A.rl_sc
    import os
    AH0 = int(os.environ.get("P1AH0", "2"))
    for c in range(AH0): chunk_dma(c)
    A.stamp(1); A.stamp(2)
    issued = AH0
    for c in range(NCH):
        A.vm_wait(('c', c))
        if os.environ.get("P1FINE"):
            A.stamps = True; A.stamp(c + 1); A.stamps = False
        A("s_barrier")
        if c == 0: A.stamp(3)
        tgt = min(NCH, c + (3 if c < 1 else 4))
        n_iss = 0
        while issued < tgt and n_iss < 2:
            chunk_dma(issued); issued += 1; n_iss += 1
        if getattr(A, 'nonce_c', False) and c in (7, 8):
            import rl2
            if c == 7:
                A("v_lshlrev_b32 v26, 3, v1"); A("v_mul_u32_u24 v28, 1280, v3"); A("v_lshl_add_u32 v28, v21, 4, v28")
                A("s_lshl_b32 s16, s2, 2"); A("s_add_u32 s16, s16, s25"); A("s_add_u32 s17, s16, 1024")
                rl2.issue(A, f"L{name}_r0", 16, 236, 26, 28, 27)
            else:
                rl2.issue(A, f"L{name}_r1", 17, 152, 26, 28, 27)
        if c == 8 and not getattr(A, 'nonce_c', False):
            A("v_mov_b32 v175, 0")
            A("global_load_dword v175, v175, s[98:99] sc1", tag='nz')
    A("s_waitcnt lgkmcnt(0)")
    A.stamp(4)
    A("s_barrier")
    A.rl_fns = (rl_setup, rl_issue, rl_finish)

def phi_issue_C(A):
    PT = 224
    A(f"v_mov_b32 v{PT}, 0")
    A(f"v_lshlrev_b32 v{PT + 2}, 2, v0"); A(f"v_add_u32 v{PT + 2}, {ZP}, v{PT + 2}")
    A(f"ds_write_b32 v{PT + 2}, v{PT}")
    A("s_mul_i32 s31, s24, 1600")
    for rep in range(4):
        e = 48 + 8 * rep
        A(f"v_add_u32 v{e}, {256 * rep}, v0"); A(f"v_min_u32 v{e}, 959, v{e}")
        udiv_small(A, e + 1, e, 24, 16)
        A(f"v_mul_u32_u24 v{e + 2}, 24, v{e + 1}"); A(f"v_sub_u32 v{e + 2}, v{e}, v{e + 2}")
        udiv_small(A, e + 3, e + 1, 20, 16)
        A(f"v_mul_u32_u24 v{e + 4}, 20, v{e + 3}"); A(f"v_sub_u32 v{e + 4}, v{e + 1}, v{e + 4}")
        A(f"v_mul_u32_u24 v{e + 5}, 800, v{e + 3}"); A(f"v_mul_u32_u24 v{e + 6}, 40, v{e + 2}")
        A(f"v_add3_u32 v{e + 5}, v{e + 5}, v{e + 6}, s31"); A(f"v_lshl_add_u32 v{e + 5}, v{e + 4}, 1, v{e + 5}")
        A(f"v_min_u32 v{e + 5}, {32 * 800 - 2}, v{e + 5}")
        A(f"global_load_ushort v{e + 6}, v{e + 5}, s[64:65]", tag='phi')
        A(f"v_lshlrev_b32 v{e}, 1, v{e}"); A(f"v_add_u32 v{e}, {PHT}, v{e}")

def phi_finish_C(A):
    A.vm_wait('phi')
    for rep in range(4):
        e = 48 + 8 * rep
        A(f"v_cmp_gt_u32 vcc, 20, v{e + 2}"); A(f"v_cndmask_b32 v{e + 6}, 0, v{e + 6}, vcc")
        A(f"ds_write_b16 v{e}, v{e + 6}")

def p1_C(A, name):
    T0 = 148
    A("v_lshrrev_b32 v22, 2, v21"); A("v_and_b32 v23, 3, v21")
    AQ = [4, 5, 6]; AV = [[7, 8, 9], [10, 11, 12], [13, 14, 15]]; AX = [[16, 17, 18], [24, 25, 26]]; AC = [[27, 28, 29], [176, 177, 178]]
    SB = [0, 2 * SLOT, 4 * SLOT]
    A(f"v_mul_u32_u24 v4, 1920, v3"); A(f"v_mul_u32_u24 v{T0}, 160, v22"); A(f"v_mul_u32_u24 v{T0 + 1}, 40, v23")
    A(f"v_add3_u32 v4, v4, v{T0}, v{T0 + 1}"); A("v_add_u32 v4, 16384, v4")
    for b in range(3):
        if b < 2:
            A(f"v_lshrrev_b32 v{T0}, 1, v23"); A(f"v_add_u32 v{T0}, {2 * b}, v{T0}")
        else:
            A(f"v_mov_b32 v{T0}, 4")
        A(f"v_mul_u32_u24 v{T0 + 1}, 5, v22"); A(f"v_add_u32 v{T0}, v{T0}, v{T0 + 1}")
        table_lookup3(A, T0 + 2, T0, pack3(POS), T0 + 4)
        A(f"v_mul_u32_u24 v{T0}, 1920, v3"); A(f"v_mul_u32_u24 v{T0 + 1}, 80, v22")
        A(f"v_add_u32 v{T0}, v{T0}, v{T0 + 1}"); A(f"v_lshl_add_u32 v{T0}, v{T0 + 2}, 4, v{T0}")
        A(f"v_and_b32 v{T0 + 1}, 1, v23"); A(f"v_lshl_add_u32 v{T0}, v{T0 + 1}, 3, v{T0}")
        A(f"v_add_u32 v{AV[b][0]}, {16384 + 640}, v{T0}")
    A("s_lshl_b32 s29, s25, 12")
    A(f"v_lshrrev_b32 v{T0}, 3, v21"); A(f"v_and_b32 v{T0 + 1}, 7, v21"); A(f"v_xor_b32 v{T0 + 2}, v3, v{T0 + 1}")
    A(f"v_lshlrev_b32 v{T0}, 10, v{T0}"); A(f"v_lshl_add_u32 v{T0}, v{T0 + 1}, 7, v{T0}"); A(f"v_add_u32 v{T0}, s29, v{T0}")
    A(f"v_lshl_add_u32 v16, v{T0 + 2}, 4, v{T0}")
    A(f"v_xor_b32 v{T0 + 2}, 4, v{T0 + 2}"); A(f"v_lshl_add_u32 v24, v{T0 + 2}, 4, v{T0}")
    for q in range(2):
        d = AC[q][0]
        A(f"s_lshl_b32 s31, s25, 1"); A(f"s_add_u32 s31, s31, {q}")
        A("s_lshl_b32 s32, s31, 3"); A(f"v_add_u32 v{d}, s32, v4")
        for b in range(3):
            A(f"s_cmp_eq_u32 s31, {5 + b}"); A("s_cselect_b64 vcc, -1, 0")
            A(f"v_cndmask_b32 v{d}, v{d}, v{AV[b][0]}, vcc")
    for regs in [AQ] + AV + AX + AC:
        for k in (1, 2): A(f"v_add_u32 v{regs[k]}, {SB[k]}, v{regs[0]}")
    XF = 32
    WF = 48
    ACC = 112
    CF = 180
    CS = 196
    SX = 204
    GR = 212
    ONES = 220
    for k in range(4): A(f"v_mov_b32 v{ONES + k}, 0x3f803f80")
    A("s_waitcnt lgkmcnt(0)")
    A("s_mov_b32 s12, s8"); A("s_mov_b32 s13, s9"); A(f"s_mov_b32 s14, {WS_USED}"); A("s_mov_b32 s15, 0x20000")
    phi_finish_C(A)
    nonce_publish(A, name, 228)
    getattr(A, 'code_pf', lambda: None)()
    import os
    if not os.environ.get("FINE"): A.stamp(1); A.stamp(2)
    SBI = lambda slot: (0, slot * SLOT) if slot < 2 else ((1, (slot - 2) * SLOT) if slot < 4 else (2, 0))
    for c in range(NCH + 1):
        A("s_waitcnt lgkmcnt(0)")
        import os
        if os.environ.get("FINE") and c in (2, 4, 6, 8): A.stamp({2: 1, 4: 2, 6: 5, 8: 6}[c])
        A("s_barrier")
        if os.environ.get("P1FINE"):
            A.stamps = True; A.stamp(c + 1); A.stamps = False
        if c == 0: A.stamp(3)
        if os.environ.get("FINE") and c == 8: A.stamp(7)
        if c < NCH: k, off = SBI(c % NSLOT)
        if c == 7 and getattr(A, 'nonce_c', False):
            A("v_mov_b32 v253, 0"); A("global_load_dword v253, v253, s[98:99] sc1")
        for e in range(2):
            first = (c == 1 and e == 0)
            mf = []
            if c >= 1:
                for t in range(8):
                    for a_ in range(2):
                        acc = v(ACC + (a_ * 8 + t) * 4, 4)
                        mf.append((f"v_mfma_f32_16x16x32_bf16 {acc}, {v(WF + (e * 8 + t) * 4, 4)}, {v(XF + (e * 2 + a_) * 4, 4)}, {acc if not first else 0}", ('w', t) if a_ == 1 else None))
                for q in range(2):
                    mf.append((f"v_mfma_f32_16x16x32_bf16 {v(CS + 4 * q, 4)}, {v(CF + (e * 2 + q) * 4, 4)}, {v(ONES, 4)}, {v(CS + 4 * q, 4) if not first else 0}", ('c', q)))
                for a_ in range(2):
                    x = v(XF + (e * 2 + a_) * 4, 4)
                    mf.append((f"v_mfma_f32_16x16x32_bf16 {v(SX + 4 * a_, 4)}, {v(ONES, 4)}, {x}, {v(SX + 4 * a_, 4) if not first else 0}", None))
                    mf.append((f"v_mfma_f32_16x16x32_bf16 {v(GR + 4 * a_, 4)}, {x}, {x}, {v(GR + 4 * a_, 4) if not first else 0}", ('x', a_)))
            else:
                mf = [(None, ('w', t)) for t in range(8)] + [(None, ('c', q)) for q in range(2)] + [(None, ('x', a_)) for a_ in range(2)]
            pend = []
            for txt, rel in mf:
                if txt: A(txt)
                if pend: A(pend.pop(0))
                if rel and c < NCH:
                    kind, i = rel
                    rr = []
                    if kind == 'x':
                        rr = [f"ds_read_b128 {v(XF + (e * 2 + i) * 4, 4)}, v{AX[e][k]} offset:{off + 2048 * i}"]
                    else:
                        for hf in range(2):
                            imm = off + e * 7680 + hf * 960
                            if kind == 'c': rr.append(f"ds_read_b64_tr_b16 {v(CF + (e * 2 + i) * 4 + 2 * hf, 2)}, v{AC[i][k]} offset:{imm}")
                            elif i < 5: rr.append(f"ds_read_b64_tr_b16 {v(WF + (e * 8 + i) * 4 + 2 * hf, 2)}, v{AQ[k]} offset:{imm + 8 * i}")
                            else: rr.append(f"ds_read_b64_tr_b16 {v(WF + (e * 8 + i) * 4 + 2 * hf, 2)}, v{AV[i - 5][k]} offset:{imm}")
                    A(rr[0])
                    pend += rr[1:]
            while pend: A(pend.pop(0))
    A.stamp(4)
    if getattr(A, 'nonce_c', False):
        import rl2
        A("s_waitcnt vmcnt(0)"); A("v_readfirstlane_b32 s96, v253")
        A("v_lshlrev_b32 v224, 3, v1"); A("v_mul_u32_u24 v226, 1280, v3"); A("v_lshl_add_u32 v226, v21, 4, v226")
        A("s_lshl_b32 s16, s2, 2"); A("s_add_u32 s16, s16, s25"); A("s_add_u32 s16, s16, 2048"); A("s_mov_b32 s17, 4000")
        rl2.issue(A, f"L{name}_r2", 16, 236, 224, 226, 30)
    A(f"s_mul_i32 s31, s25, 9216"); A(f"v_lshlrev_b32 v{T0 + 80}, 4, v1"); A(f"v_add_u32 v{T0 + 80}, s31, v{T0 + 80}")
    HA = T0 + 80
    for t in range(8): A(f"ds_write_b128 v{HA}, {v(ACC + 32 + 4 * t, 4)} offset:{HO + 1024 * t}")
    A(f"ds_write_b128 v{HA}, {v(GR + 4, 4)} offset:{HO - 4096 if False else HO + 8192}") if False else None
    A(f"s_lshl_b32 s31, s25, 11"); A(f"s_add_u32 s31, s31, {HO2}"); A(f"v_lshlrev_b32 v{HA + 1}, 4, v1"); A(f"v_add_u32 v{HA + 1}, s31, v{HA + 1}")
    A(f"ds_write_b128 v{HA + 1}, {v(GR + 4, 4)}")
    A(f"ds_write_b128 v{HA + 1}, {v(SX + 4, 4)} offset:1024")
    A(f"v_lshlrev_b32 v{HA + 2}, 4, v3"); A(f"s_lshl_b32 s31, s25, 7"); A(f"s_add_u32 s31, s31, {CSA}"); A(f"v_add_u32 v{HA + 2}, s31, v{HA + 2}")
    for q in range(2):
        A(f"ds_write_b128 v{HA + 2}, {v(CS + 4 * q, 4)} offset:{64 * q}")
    return dict(ACC=ACC, SX=SX, GR=GR)

HO2 = HO + 4 * 9216

def p1_epilogue(A, name, R, fused):
    ACC, SX, GR = R['ACC'], R['SX'], R['GR']
    E = 40; ST = 32
    A(f"v_and_b32 v{ST + 1}, 3, v21")
    A(f"v_cmp_eq_u32 vcc, 1, v{ST + 1}"); A(f"v_cndmask_b32 v{ST + 2}, v{GR}, v{GR + 1}, vcc")
    A(f"v_cmp_eq_u32 vcc, 2, v{ST + 1}"); A(f"v_cndmask_b32 v{ST + 2}, v{ST + 2}, v{GR + 2}, vcc")
    A(f"v_cmp_eq_u32 vcc, 3, v{ST + 1}"); A(f"v_cndmask_b32 v{ST + 2}, v{ST + 2}, v{GR + 3}, vcc")
    A(f"v_lshrrev_b32 v{ST + 1}, 2, v21"); A(f"v_cmp_eq_u32 vcc, v{ST + 1}, v3"); A(f"v_cndmask_b32 v{ST + 2}, 0, v{ST + 2}, vcc")
    CSR = E + 4
    A(f"v_lshlrev_b32 v{E}, 4, v3"); A(f"v_add_u32 v{E}, {CSA}, v{E}")
    for t in range(8): A(f"ds_read_b128 {v(CSR + 4 * t, 4)}, v{E} offset:{64 * t}")
    xlane_sum_g(A, ST + 2, ST + 3)
    MEAN = ST; VAR = ST + 2
    A(f"v_mul_f32 v{MEAN}, {f32hex(1.0 / 640)}, v{SX}")
    A(f"v_mul_f32 v{VAR}, {f32hex(1.0 / 640)}, v{VAR}")
    A(f"v_fma_f32 v{VAR}, -v{MEAN}, v{MEAN}, v{VAR}"); A(f"v_max_f32 v{VAR}, 0, v{VAR}")
    bf16_round(A, VAR, VAR, ST + 1); A(f"v_add_f32 v{VAR}, {f32hex(1e-5)}, v{VAR}"); bf16_round(A, VAR, VAR, ST + 1)
    A(f"v_sqrt_f32 v{VAR}, v{VAR}"); bf16_round(A, VAR, VAR, ST + 1); A(f"v_rcp_f32 v{VAR}, v{VAR}")
    bf16_round(A, ST + 1, MEAN, ST + 3)
    RSTD = VAR; MB = ST + 1
    A("s_cmp_lg_u32 s24, 0"); A(f"s_cbranch_scc1 L{name}_nomean")
    A(f"v_add_u32 v{E + 1}, s26, v21"); A(f"v_lshlrev_b32 v{E + 1}, 2, v{E + 1}"); A(f"s_mov_b32 s31, {MEAN1_OFF}")
    A(f"buffer_store_dword v{MEAN}, v{E + 1}, s[12:15], s31 offen{A.rl_sc}")
    A.raw(f"L{name}_nomean:")
    PA = E + 1
    A(f"v_lshrrev_b32 v{E + 2}, 2, v21"); A(f"v_and_b32 v{E + 3}, 3, v21"); A(f"v_mul_u32_u24 v{E + 3}, 48, v{E + 3}")
    A(f"v_and_b32 v{PA}, 1, v3"); A(f"v_mul_u32_u24 v{PA}, 960, v{PA}"); A(f"v_add_u32 v{PA}, v{PA}, v{E + 3}"); A(f"v_add_u32 v{PA}, {PHT}, v{PA}")
    A(f"v_cmp_eq_u32 vcc, v{E + 2}, v3"); A(f"v_mov_b32 v{E + 3}, {ZP}"); A(f"v_cndmask_b32 v{PA}, v{E + 3}, v{PA}, vcc")
    PF = 176
    for t in range(5):
        for s_ in range(3):
            A(f"ds_read_b128 {v(PF + (t * 3 + s_) * 4, 4)}, v{PA} offset:{t * 192 + s_ * 16}")
    A("s_waitcnt lgkmcnt(15)")
    for i in range(32): A(f"v_fma_f32 v{ACC + i}, -v{MB}, v{CSR + i}, v{ACC + i}")
    for i in range(20, 32, 2): A(f"v_pk_mul_f32 {v(ACC + i, 2)}, {v(ACC + i, 2)}, {v(RSTD, 2)} op_sel_hi:[1,0]")
    QP = 76; VP = 88
    for p in range(10): A(f"v_cvt_pk_bf16_f32 v{QP + p}, v{ACC + 2 * p}, v{ACC + 2 * p + 1}")
    A(f"v_mov_b32 v{QP + 10}, 0"); A(f"v_mov_b32 v{QP + 11}, 0")
    for p in range(6): A(f"v_cvt_pk_bf16_f32 v{VP + p}, v{ACC + 20 + 2 * p}, v{ACC + 21 + 2 * p}")
    A(f"v_cmp_eq_u32 vcc, 2, v3"); A(f"v_mov_b32 v{E + 2}, 0x3f80"); A(f"v_cndmask_b32 v{E + 2}, 0, v{E + 2}, vcc")
    A(f"v_cmp_gt_u32 vcc, 2, v3"); A(f"v_cndmask_b32 v{VP + 4}, v{E + 2}, v{VP + 4}, vcc"); A(f"v_cndmask_b32 v{VP + 5}, 0, v{VP + 5}, vcc")
    A("s_waitcnt lgkmcnt(0)")
    P = ACC
    for s_ in range(3):
        for t in range(5):
            A(f"v_mfma_f32_16x16x32_bf16 {v(P + 4 * t, 4)}, {v(PF + (t * 3 + s_) * 4, 4)}, {v(QP + 4 * s_, 4)}, {v(P + 4 * t, 4) if s_ > 0 else 0}")
    A(f"v_add_u32 v{E + 2}, s19, v21")
    A(f"v_mul_u32_u24 v{E + 3}, 96, v{E + 2}"); A(f"v_lshl_add_u32 v{E + 3}, v3, 3, v{E + 3}")
    for b in range(3): A(f"ds_write_b64 v{E + 3}, {v(VP + 2 * b, 2)} offset:{VST + 32 * b}")
    MX = 94; MN = 95; SP = 96; SN = 97; TM = 98; SL = 100
    A(f"v_mul_f32 v{SL}, {f32hex(L2E)}, v{RSTD}")
    A(f"v_max3_f32 v{MX}, v{P}, v{P + 1}, v{P + 2}"); A(f"v_min3_f32 v{MN}, v{P}, v{P + 1}, v{P + 2}")
    for i in range(3, 19, 2):
        A(f"v_max3_f32 v{MX}, v{MX}, v{P + i}, v{P + i + 1}"); A(f"v_min3_f32 v{MN}, v{MN}, v{P + i}, v{P + i + 1}")
    A(f"v_max_f32 v{MX}, v{MX}, v{P + 19}"); A(f"v_min_f32 v{MN}, v{MN}, v{P + 19}")
    A(f"v_mul_f32 v{MX}, v{SL}, v{MX}"); A(f"v_mul_f32 v{MN}, v{SL}, v{MN}")
    EP = PF; EN = PF + 20
    for i in range(20):
        A(f"v_fma_f32 v{EP + i}, v{P + i}, v{SL}, -v{MX}")
        A(f"v_fma_f32 v{EN + i}, -v{P + i}, v{SL}, v{MN}")
    for i in range(20):
        A(f"v_exp_f32 v{EP + i}, v{EP + i}"); A(f"v_exp_f32 v{EN + i}, v{EN + i}")
    A(f"v_pk_add_f32 {v(SP, 2)}, {v(EP, 2)}, {v(EP + 2, 2)}"); A(f"v_pk_add_f32 {v(TM, 2)}, {v(EN, 2)}, {v(EN + 2, 2)}")
    for i in range(4, 20, 2):
        A(f"v_pk_add_f32 {v(SP, 2)}, {v(SP, 2)}, {v(EP + i, 2)}"); A(f"v_pk_add_f32 {v(TM, 2)}, {v(TM, 2)}, {v(EN + i, 2)}")
    A(f"v_add_f32 v{SP}, v{SP}, v{SP + 1}"); A(f"v_add_f32 v{TM}, v{TM}, v{TM + 1}")
    A(f"v_rcp_f32 v{SP}, v{SP}"); A(f"v_rcp_f32 v{TM}, v{TM}")
    for i in range(0, 20, 2):
        A(f"v_pk_mul_f32 {v(EP + i, 2)}, {v(EP + i, 2)}, {v(SP, 2)} op_sel_hi:[1,0]")
        A(f"v_pk_mul_f32 {v(EN + i, 2)}, {v(EN + i, 2)}, {v(TM, 2)} op_sel_hi:[1,0]")
    PH = 44
    for p in range(10): A(f"v_cvt_pk_bf16_f32 v{PH + p}, v{EP + 2 * p}, v{EP + 2 * p + 1}")
    for p in range(10): A(f"v_cvt_pk_bf16_f32 v{PH + 10 + p}, v{EN + 2 * p}, v{EN + 2 * p + 1}")
    A(f"v_mul_u32_u24 v{E + 3}, 160, v{E + 2}"); A(f"v_and_b32 v{E + 1}, 1, v3"); A(f"v_mul_u32_u24 v{E + 1}, 80, v{E + 1}")
    A(f"v_add_u32 v{E + 3}, v{E + 3}, v{E + 1}")
    A("s_mov_b32 exec_lo, 0")
    for q in range(5): A(f"ds_write_b128 v{E + 3}, {v(PH + 4 * q, 4)} offset:{PST + 16 * q}")
    A("s_mov_b64 exec, -1")
    import os
    if not os.environ.get("FINE"): A.stamp(5)
    atab = sum(a << (4 * n) for n, (a, b) in enumerate(PAIRS + [(4, 2)] * 3)); btab = sum(b << (4 * n) for n, (a, b) in enumerate(PAIRS + [(4, 2)] * 3))
    A(f"s_mov_b32 s52, 0x{atab & 0xffffffff:08x}"); A(f"s_mov_b32 s53, 0x{atab >> 32:08x}")
    A(f"s_mov_b32 s54, 0x{btab & 0xffffffff:08x}"); A(f"s_mov_b32 s55, 0x{btab >> 32:08x}")
    A("s_lshl_b32 s56, s22, 3")
    A("s_lshr_b64 s[52:53], s[52:53], s56"); A("s_lshr_b64 s[54:55], s[54:55], s56")
    E = 64
    A(f"v_lshrrev_b32 v{E}, 2, v21"); A(f"v_lshl_add_u32 v{E}, v3, 2, v{E}")
    A(f"v_and_b32 v{E + 1}, 3, v21"); A(f"v_lshlrev_b32 v{E + 1}, 3, v{E + 1}")
    A(f"v_mul_u32_u24 v{E + 2}, 160, v{E}"); A(f"v_add_u32 v{E + 2}, v{E + 2}, v{E + 1}")
    A(f"v_mul_u32_u24 v{E + 3}, 96, v{E}"); A(f"v_add_u32 v{E + 3}, v{E + 3}, v{E + 1}"); A(f"v_add_u32 v{E + 3}, {VST}, v{E + 3}")
    KA = 80; KB = 112; KD = 144
    for q in range(2):
        A(f"s_lshr_b32 s57, s52, {4 * q}"); A("s_and_b32 s57, s57, 15"); A("s_lshl_b32 s58, s57, 5")
        A(f"s_lshr_b32 s59, s54, {4 * q}"); A("s_and_b32 s59, s59, 15"); A("s_lshl_b32 s60, s59, 5")
        A(f"v_add_u32 v{E + 4 + 2 * q}, s58, v{E + 2}"); A(f"v_add_u32 v{E + 5 + 2 * q}, s60, v{E + 3}")
        o = E + 8 + q; t1 = E + 10; t2 = E + 11; t3 = E + 12; t4 = E + 13
        A(f"s_lshl_b32 s61, s57, 4"); A(f"v_lshl_add_u32 v{t1}, v3, 2, s61")
        A(f"s_lshl_b32 s61, s59, 4"); A(f"v_add_u32 v{t2}, s61, v21")
        A(f"v_cmp_le_u32 vcc, 40, v{t1}"); A(f"v_cndmask_b32 v{t3}, 0, 1, vcc")
        A(f"v_mul_u32_u24 v{t4}, 40, v{t3}"); A(f"v_sub_u32 v{t1}, v{t1}, v{t4}")
        A(f"v_mul_u32_u24 v{t4}, 20, v{t3}"); A(f"v_sub_u32 v{t4}, v{t2}, v{t4}")
        A(f"v_cmp_eq_u32 vcc, 40, v{t2}"); A(f"v_mov_b32 v{o}, 20"); A(f"v_cndmask_b32 v{t4}, v{t4}, v{o}, vcc")
        A(f"v_cmp_gt_u32 s[62:63], 20, v{t4}"); A(f"v_cmp_gt_u32 s[74:75], 40, v{t2}"); A("s_and_b64 s[62:63], s[62:63], s[74:75]"); A("s_or_b64 s[62:63], s[62:63], vcc")
        A(f"v_mul_u32_u24 v{o}, 21, v{t3}"); A(f"v_add_u32 v{o}, v{o}, v{t4}"); A(f"v_mul_u32_u24 v{o}, 160, v{o}"); A(f"v_lshl_add_u32 v{o}, v{t1}, 2, v{o}")
        A(f"v_mov_b32 v{t1}, 0x40000000"); A(f"v_cndmask_b32 v{o}, v{t1}, v{o}, s[62:63]")
        A(f"s_lshl_b32 s61, s22, 1"); A(f"s_add_u32 s61, s61, {q}"); A("s_cmp_ge_u32 s61, 13"); A("s_cselect_b64 vcc, -1, 0")
        A(f"v_cndmask_b32 v{o}, v{o}, v{t1}, vcc")
    A("s_waitcnt lgkmcnt(0)")
    A("s_barrier")
    for q in range(2):
        for sg in range(4):
            for hf in range(2):
                row = 32 * sg + 16 * hf
                A(f"ds_read_b64_tr_b16 {v(KA + (q * 4 + sg) * 4 + 2 * hf, 2)}, v{E + 4 + 2 * q} offset:{PST + row * 160}")
                A(f"ds_read_b64_tr_b16 {v(KB + (q * 4 + sg) * 4 + 2 * hf, 2)}, v{E + 5 + 2 * q} offset:{row * 96}")
    A("s_lshl_b32 s31, s24, 4"); A("s_add_u32 s31, s31, s23"); A(f"s_mul_i32 s31, s31, {SLAB_BYTES}"); A(f"s_add_u32 s31, s31, {SLAB_OFF}")
    for q in range(2):
        A(f"s_waitcnt lgkmcnt({15 if q == 0 else 0})")
        for sg in range(4):
            A(f"v_mfma_f32_16x16x32_bf16 {v(KD + 4 * q, 4)}, {v(KA + (q * 4 + sg) * 4, 4)}, {v(KB + (q * 4 + sg) * 4, 4)}, {v(KD + 4 * q, 4) if sg > 0 else 0}")
    for q in range(2):
        A(f"buffer_store_dwordx4 {v(KD + 4 * q, 4)}, v{E + 8 + q}, s[12:15], s31 offen sc0 sc1")
    return PH

def gen_p1(name="p1_kernel", stamps=False, kidx=0):
    from k2 import p2_body, zero_afr
    A = Asm(); A.endlabel = f"L{name}_end"; A.stamps = stamps; A.rl_sc = ""
    A.raw(f".globl {name}\n.p2align 8\n.type {name},@function\n{name}:")
    A("s_cmp_ge_u32 s2, 256"); A("s_cbranch_scc1 " + A.endlabel)
    A.stamp(0)
    p1_common_setup(A)
    A("s_cmp_ge_u32 s22, 4"); A(f"s_cbranch_scc1 L{name}_H")
    R = p1_C(A, name)
    A("s_waitcnt lgkmcnt(0)")
    A("s_barrier")
    A(f"s_branch L{name}_epi")
    A.raw(f"L{name}_H:")
    A.hist = []; A.vm = []
    p1_H(A, name)
    A("s_barrier")
    A(f"s_mul_i32 s31, s25, 9216"); A(f"v_lshlrev_b32 v228, 4, v1"); A(f"v_add_u32 v228, s31, v228")
    for t in range(8): A(f"ds_read_b128 {v(R['ACC'] + 4 * t, 4)}, v228 offset:{HO + 1024 * t}")
    A(f"s_lshl_b32 s31, s25, 11"); A(f"s_add_u32 s31, s31, {HO2}"); A(f"v_lshlrev_b32 v229, 4, v1"); A(f"v_add_u32 v229, s31, v229")
    A(f"ds_read_b128 {v(R['GR'], 4)}, v229")
    A(f"ds_read_b128 {v(R['SX'], 4)}, v229 offset:1024")
    A("s_waitcnt lgkmcnt(0)")
    A.raw(f"L{name}_epi:")
    A.hist = []; A.vm = []
    A("s_nop 7")
    PH = p1_epilogue(A, name, R, True)
    A("s_waitcnt vmcnt(0)")
    A("s_barrier")
    import os
    if not os.environ.get("FINE"): A.stamp(6)
    zero_afr(A, 8)
    A("s_cmp_lt_u32 s22, 4"); A(f"s_cbranch_scc1 L{name}_w")
    A("s_cmp_lg_u32 s22, 4"); A(f"s_cbranch_scc1 L{name}_rf")
    nonce_get(A, name, 175, 8)
    A("s_lshl_b32 s31, s24, 4"); A("s_add_u32 s31, s31, s23"); A("s_lshl_b32 s31, s31, 6"); A(f"s_add_u32 s31, s31, {FLAG_OFF}")
    A("v_mov_b32 v8, 0"); A("v_mov_b32 v9, s96")
    A("s_mov_b64 exec, 1")
    A("buffer_store_dword v9, v8, s[12:15], s31 offen sc0 sc1")
    A("s_mov_b64 exec, -1")
    A.raw(f"L{name}_rf:")
    A.vm = [('rl', 0), ('rl', 1)]
    A.rl_finish(0, A.rl_sc); A.rl_finish(1, A.rl_sc)
    A("s_cmp_lg_u32 s22, 4"); A(f"s_cbranch_scc1 L{name}_w")
    A("s_lshl_b32 s31, s24, 10"); A(f"s_add_u32 s31, s31, {FLAG_OFF}")
    A("v_lshlrev_b32 v8, 6, v1")
    poll_flags(A, f"L{name}_pa", 16, 8, 9, 31)
    A.raw(f"L{name}_w:")
    A("s_waitcnt lgkmcnt(0)")
    A("s_barrier")
    if not os.environ.get("FINE"): A.stamp(7)
    A.vm = []
    p2_body(A, name, PH, sc=" sc1", osc="")
    if stamps:
        A("s_waitcnt vmcnt(0)")
        A.stamp_dump(8, 9, TS_OFF + kidx * 131072, 0)
    A.raw(A.endlabel + ":")
    A("s_endpgm")
    return A.text(), kernel_desc(name, 256, 102, 256), (256, 512, 163840)
```
